```python
import torch

def _softmax(x, axis=-1):
    return torch.softmax(x, dim=axis)
def _gelu(x):
    return torch.nn.functional.gelu(x, approximate="tanh")
def _silu(x):
    return torch.nn.functional.silu(x)
def _sigmoid(x):
    return torch.sigmoid(x)
def _layernorm(x, axis=-1, eps=1e-5):
    m = x.mean(dim=axis, keepdim=True)
    v = x.var(dim=axis, keepdim=True, unbiased=False)
    return (x - m) / torch.sqrt(v + eps)
def _scatter_add(tgt, idx, src, axis=0):
    return tgt.clone().index_add_(axis, idx, src)
def _segment_sum(src, seg, n):
    out = torch.zeros((n,) + src.shape[1:], dtype=src.dtype)
    return out.index_add_(0, seg, src)
def _pad(x, pw):
    flat = tuple(v for pair in reversed(pw) for v in pair)
    return torch.nn.functional.pad(x, flat)

kernel_name = 'sequential_preLN__sliding_local_dilated__geglu_ffn__prompt'

def setup_inputs():

    _w = (lambda a: (lambda t: t.to(torch.bfloat16) if t.is_floating_point() else t)(torch.as_tensor(a)))
    def _A_setup():
        B, S, D = 1, 2048, 1024
        return {
            "x": _w((lambda *s: torch.randn(*s, dtype=torch.bfloat16) * 0.05)(B, S, D)),
            "wqkv": _w((lambda *s: torch.randn(*s, dtype=torch.bfloat16) * 0.05)(D, 3 * D)),
            "wo": _w((lambda *s: torch.randn(*s, dtype=torch.bfloat16) * 0.05)(D, D)),
        }
    _A_in = _A_setup()

    def _B_setup():
        B, S, D, F = 1, 2048, 1024, 3584
        return {
            "x": _w((lambda *s: torch.randn(*s, dtype=torch.bfloat16) * 0.05)(B, S, D)),
            "w_gate": _w((lambda *s: torch.randn(*s, dtype=torch.bfloat16) * 0.05)(D, F)),
            "w_up": _w((lambda *s: torch.randn(*s, dtype=torch.bfloat16) * 0.05)(D, F)),
            "w_down": _w((lambda *s: torch.randn(*s, dtype=torch.bfloat16) * 0.05)(F, D)),
        }
    _B_in = _B_setup()

    return {
        "A_x": _A_in["x"],
        "A_wqkv": _A_in["wqkv"],
        "A_wo": _A_in["wo"],
        "B_x": _B_in["x"],
        "B_w_gate": _B_in["w_gate"],
        "B_w_up": _B_in["w_up"],
        "B_w_down": _B_in["w_down"],
    }

def reference(A_x, A_wqkv, A_wo, B_x, B_w_gate, B_w_up, B_w_down):
    def _A_ref(x, wqkv, wo):
        B, S, D = x.shape
        H = 32; Dh = D // H
        W, dil = 8, 2
        qkv = (lambda x, *d: x.permute(*d))((x @ wqkv).reshape(B, S, 3, H, Dh), 2, 0, 3, 1, 4)
        q, k, v = qkv[0], qkv[1], qkv[2]
        scale = Dh ** -0.5
        pos = torch.arange(S)
        off = torch.arange(W) * dil
        idx = pos[:, None] - off[None, :]
        mask = idx >= 0
        idx_c = torch.where(mask, idx, 0).reshape(-1)
        kg = k[:, :, idx_c, :].reshape(B, H, S, W, Dh)
        vg = v[:, :, idx_c, :].reshape(B, H, S, W, Dh)
        logits = torch.einsum("bhsd,bhswd->bhsw", q, kg) * scale
        logits = torch.where(mask[None, None, :, :], logits, -1e9)
        attn = _softmax(logits, axis=-1)
        o = torch.einsum("bhsw,bhswd->bhsd", attn, vg)
        return (lambda x, *d: x.permute(*d))(o, 0, 2, 1, 3).reshape(B, S, D) @ wo

    def _B_ref(x, w_gate, w_up, w_down):
        return (_gelu(x @ w_gate) * (x @ w_up)) @ w_down

    x = A_x
    h = x + _A_ref(_layernorm(x, axis=-1), A_wqkv, A_wo)
    h2 = h + _B_ref(_layernorm(h, axis=-1), B_w_gate, B_w_up, B_w_down)
    return h2
```

```python
import re

TRANS = ("v_exp_f32", "v_log_f32", "v_rcp_f32", "v_rsq_f32", "v_sqrt_f32", "v_sin_f32", "v_cos_f32",
         "v_rcp_iflag_f32")

_reg_re = re.compile(r"\b([vas])(\d+)\b|\b([vas])\[(\d+):(\d+)\]|\b(vcc|exec|m0|scc)\b")


def regs_of(op):
    out = []
    for m in _reg_re.finditer(op):
        if m.group(1):
            out.append(m.group(1) + m.group(2))
        elif m.group(3):
            out += [m.group(3) + str(i) for i in range(int(m.group(4)), int(m.group(5)) + 1)]
        else:
            out.append(m.group(6))
    return out


def split_ops(s):
    ops, depth, cur = [], 0, ""
    for ch in s:
        if ch in "[(":
            depth += 1
        if ch in "])":
            depth -= 1
        if ch == "," and depth == 0:
            ops.append(cur.strip())
            cur = ""
        else:
            cur += ch
    if cur.strip():
        ops.append(cur.strip())
    return ops


class Ins:
    __slots__ = ("text", "op", "cls", "dst", "src", "srcC", "srcAB", "passes", "states", "lds_dma",
                 "wide_store", "store_data", "dpp", "perm", "rdlane", "is_label", "branch_to")

    def __init__(self, text):
        self.text = text
        self.is_label = False
        self.branch_to = None
        self.dst, self.src, self.srcC, self.srcAB = [], [], [], []
        self.passes = 0
        self.states = 1
        self.lds_dma = False
        self.wide_store = False
        self.store_data = []
        self.dpp = False
        self.perm = False
        self.rdlane = False
        t = text.split(";")[0].strip()
        if t.endswith(":"):
            self.is_label = True
            self.op = t[:-1]
            self.cls = "label"
            self.states = 0
            return
        if not t or t.startswith("."):
            self.op = ""
            self.cls = "none"
            self.states = 0
            return
        parts = t.split(None, 1)
        op = parts[0]
        self.op = op
        rest = parts[1] if len(parts) > 1 else ""
        ops = split_ops(rest)
        first_tok = [o.split()[0] if o.split() else o for o in ops]
        R = [regs_of(o) for o in first_tok]
        if op.startswith("v_mfma"):
            self.cls = "mfma"
            self.dst = R[0]
            self.srcAB = R[1] + R[2]
            self.srcC = R[3]
            self.src = self.srcAB + self.srcC
            self.passes = 8 if "32x32" in op else 4
        elif op.startswith("v_"):
            base = op.replace("_e32", "").replace("_e64", "").replace("_dpp", "")
            self.cls = "trans" if base in TRANS else "valu"
            self.dpp = "_dpp" in op or "row_" in rest or "quad_perm" in rest
            if base.startswith("v_permlane"):
                self.perm = True
                self.dst = R[0] + R[1]
                self.src = R[0] + R[1]
            elif base.startswith("v_cmp"):
                self.dst = R[0]
                self.src = sum(R[1:], [])
            elif base in ("v_readfirstlane_b32", "v_readlane_b32"):
                self.rdlane = True
                self.dst = R[0]
                self.src = sum(R[1:], [])
            elif base in ("v_add_co_u32", "v_sub_co_u32", "v_addc_co_u32", "v_subb_co_u32", "v_mad_u64_u32"):
                self.dst = R[0] + R[1]
                self.src = sum(R[2:], [])
            elif base in ("v_fmac_f32", "v_pk_fmac_f16", "v_dot2c_f32_bf16"):
                self.dst = R[0]
                self.src = sum(R, [])
            elif base == "v_nop":
                pass
            else:
                self.dst = R[0]
                self.src = sum(R[1:], [])
                if self.dpp:
                    self.src += R[0]
        elif op.startswith("ds_"):
            self.cls = "ds"
            if op.startswith("ds_read") or op.startswith("ds_bpermute") or op.startswith("ds_permute") \
                    or op.startswith("ds_swizzle"):
                self.dst = R[0]
                self.src = sum(R[1:], [])
            else:
                self.src = sum(R, [])
        elif op.startswith("buffer_") or op.startswith("global_"):
            self.cls = "vmem"
            if op in ("buffer_wbl2", "buffer_inv"):
                pass
            elif " lds" in (" " + rest) and rest.strip().endswith("lds") or "load_lds" in op:
                self.lds_dma = True
                self.src = sum(R, []) + ["m0"]
            elif "load" in op:
                self.dst = R[0]
                self.src = sum(R[1:], [])
            elif op.startswith("buffer_store") or op.startswith("buffer_atomic"):
                self.src = sum(R, [])
                self.store_data = R[0]
                self.wide_store = "x3" in op or "x4" in op
                if op.startswith("buffer_atomic") and "sc0" in rest:
                    self.dst = R[0]
            else:
                self.src = sum(R, [])
                self.store_data = R[1]
                self.wide_store = "x3" in op or "x4" in op
        elif op.startswith("s_"):
            self.cls = "salu"
            if op == "s_nop":
                self.states = int(rest.strip(), 0) + 1
            elif op.startswith("s_cbranch") or op == "s_branch":
                self.branch_to = rest.strip()
            elif op.startswith("s_load") or op.startswith("s_buffer_load") or op.startswith("s_memtime") \
                    or op.startswith("s_memrealtime"):
                self.cls = "smem"
                self.dst = R[0]
                self.src = sum(R[1:], [])
            elif op.startswith("s_cmp") or op in ("s_waitcnt", "s_barrier", "s_endpgm", "s_setprio", "s_sleep"):
                self.src = sum(R, [])
            else:
                self.dst = R[0] if R else []
                self.src = sum(R[1:], [])
        else:
            raise ValueError("unknown instruction: " + text)


def need_states(p, c):
    n = 0
    pd = set(p.dst)
    is_valu_p = p.cls in ("valu", "trans")
    is_valu_c = c.cls in ("valu", "trans")
    if is_valu_p:
        vd = {r for r in pd if r[0] in "va"}
        sd = {r for r in pd if r[0] == "s" or r == "vcc"}
        if c.cls == "mfma" and vd & set(c.src):
            n = max(n, 2)
        if c.cls == "vmem" and sd & set(c.src):
            n = max(n, 5)
        if is_valu_c and sd & set(c.src):
            n = max(n, 4 if c.rdlane else 2)
        if is_valu_c and "vcc" in sd and c.op.startswith(("v_cndmask", "v_addc", "v_subb", "v_div_fmas")):
            n = max(n, 4 if c.op.startswith("v_div_fmas") else 2)
        if c.rdlane and vd & set(c.src):
            n = max(n, 1)
        if p.cls == "trans" and c.cls != "trans" and vd & set(c.src + c.dst):
            n = max(n, 1)
        if (c.perm or c.dpp) and vd & set(c.src):
            n = max(n, 2)
        if "exec" in pd:
            n = max(n, 5)
    if p.cls == "mfma":
        big = p.passes == 8
        if c.cls == "mfma":
            if pd & set(c.srcAB):
                n = max(n, 12 if big else 8)
            if pd & set(c.srcC):
                if not (p.dst == c.srcC and p.passes == c.passes):
                    n = max(n, 10 if big else 6)
            if pd & set(c.dst) and not (p.dst == c.dst):
                n = max(n, 12 if big else 8)
        elif c.cls in ("valu", "trans", "vmem", "ds"):
            if pd & set(c.src + c.dst):
                n = max(n, 12 if big else 8)
        if is_valu_c and set(p.srcC) & set(c.dst):
            n = max(n, 7 if big else 3)
    if p.cls == "salu" and "m0" in pd and (c.lds_dma or "addtid" in c.op):
        n = max(n, 1)
    if p.wide_store and set(p.store_data) & set(c.dst):
        n = max(n, 2)
    return n


class Prog:
    def __init__(self):
        self.lines = []

    def I(self, text):
        for t in text.strip().split("\n"):
            t = t.strip()
            if t:
                self.lines.append(t)

    def label(self, name):
        self.lines.append(name + ":")

    def raw(self, text):
        self.lines.append(text)

    def C(self, text):
        self.lines.append("; " + text)

    def extend(self, other):
        self.lines += other.lines

    WINDOW = 24

    def finalize(self):
        ins = [Ins(t) for t in self.lines]
        out = []
        nnop = 0
        for c in ins:
            if c.states == 0:
                out.append(c)
                continue
            need = 0
            dist = 0
            for p in reversed(out):
                if p.states == 0:
                    continue
                if dist >= self.WINDOW:
                    break
                k = need_states(p, c)
                if k > dist:
                    need = max(need, k - dist)
                dist += p.states
            while need > 0:
                k = min(need, 16)
                out.append(Ins("s_nop %d" % (k - 1)))
                nnop += 1
                need -= k
            out.append(c)
        labels = {x.op: i for i, x in enumerate(out) if x.is_label}
        for i, b in enumerate(out):
            if b.branch_to and b.branch_to in labels:
                tgt = labels[b.branch_to]
                tail = [x for x in out[max(0, i - 3 * self.WINDOW): i + 1] if x.states]
                head = [x for x in out[tgt: tgt + 3 * self.WINDOW] if x.states][: self.WINDOW]
                seq = list(tail)
                for c in head:
                    dist = 0
                    for p in reversed(seq):
                        if dist >= self.WINDOW:
                            break
                        k = need_states(p, c)
                        if k > dist and p in tail:
                            raise RuntimeError("hazard across branch %s: '%s' -> '%s' need %d have %d" %
                                               (b.text, p.text, c.text, k, dist))
                        dist += p.states
                    seq.append(c)
        self.nnop = nnop
        txt = []
        for x in out:
            if x.is_label or x.text.startswith("."):
                txt.append(x.text)
            else:
                txt.append("    " + x.text)
        return "\n".join(txt) + "\n"


def vr(lo, n=1, k="v"):
    return "%s%d" % (k, lo) if n == 1 else "%s[%d:%d]" % (k, lo, lo + n - 1)


def ar(lo, n=1):
    return vr(lo, n, "a")


def sr(lo, n=1):
    return vr(lo, n, "s")


def kernel_desc(name, vgpr, accum, sgpr=102, wg_y=False):
    return f""".amdhsa_kernel {name}
  .amdhsa_next_free_vgpr {vgpr}
  .amdhsa_next_free_sgpr {sgpr}
  .amdhsa_accum_offset {accum}
  .amdhsa_group_segment_fixed_size 0
  .amdhsa_kernarg_size 80
  .amdhsa_user_sgpr_count 2
  .amdhsa_user_sgpr_kernarg_segment_ptr 1
  .amdhsa_system_sgpr_workgroup_id_x 1
  .amdhsa_float_denorm_mode_32 3
  .amdhsa_float_denorm_mode_16_64 3
.end_amdhsa_kernel
"""


def interleave(mfmas, others, lead=1, tail_free=2):
    out = []
    nm = len(mfmas)
    gaps = max(1, nm - lead - tail_free + 1)
    no = len(others)
    k = 0
    for i, m in enumerate(mfmas):
        out.append(m)
        gi = i - (lead - 1)
        if gi >= 0 and gi < gaps:
            tgt = ((gi + 1) * no + gaps - 1) // gaps
            while k < tgt and k < no:
                out += others[k]
                k += 1
    while k < no:
        out += others[k]
        k += 1
    return out
```

```python
import sys
from asmlib import *

NAME = "sequential_preLN__sliding_local_dilated__geglu_ffn__prompt"
MB = 1 << 20
WS_XN, WS_O, WS_H, WS_ST, WS_CS, WS_ACT = 0, 4 * MB, 8 * MB, 12 * MB, 13 * MB, 16 * MB
S_TOK, D, F = 2048, 1024, 3584
P_X, P_WQKV, P_WO, P_BX, P_WG, P_WU, P_WD, P_OUT, P_DBG, P_WS = 16, 18, 20, 22, 24, 26, 28, 30, 32, 34


def f2u(x):
    import struct
    return struct.unpack("<I", struct.pack("<f", x))[0]


def head(p, name, nwg):
    p.raw(".text")
    p.raw(f".globl {name}")
    p.raw(".p2align 8")
    p.raw(f".type {name},@function")
    p.label(name)
    p.I(f"""
    s_cmp_ge_u32 s2, {nwg}
    s_cbranch_scc1 L_{name}_end
    s_load_dwordx16 s[16:31], s[0:1], 0
    s_load_dwordx4 s[32:35], s[0:1], 64
    """)


def tail(p, name):
    p.label(f"L_{name}_end")
    p.I("s_endpgm")


def srd(p, d, base, off, nbytes):
    if off:
        p.I(f"""
        s_add_u32 s{d}, s{base}, {off}
        s_addc_u32 s{d+1}, s{base+1}, 0
        """)
    else:
        p.I(f"""
        s_mov_b32 s{d}, s{base}
        s_mov_b32 s{d+1}, s{base+1}
        """)
    p.I(f"""
    s_mov_b32 s{d+2}, {nbytes}
    s_mov_b32 s{d+3}, 0x00020000
    """)


def xgroup_reduce(p, v, tmp, op):
    p.I(f"""
    v_mov_b32 v{tmp}, v{v}
    v_permlane16_swap_b32 v{v}, v{tmp}
    {op} v{v}, v{v}, v{tmp}
    v_mov_b32 v{tmp}, v{v}
    v_permlane32_swap_b32 v{v}, v{tmp}
    {op} v{v}, v{v}, v{tmp}
    """)


def xgroup_reduce_multi(p, vs, tmps, op):
    for sw in ("v_permlane16_swap_b32", "v_permlane32_swap_b32"):
        for v, t in zip(vs, tmps):
            p.I(f"v_mov_b32 v{t}, v{v}")
        for v, t in zip(vs, tmps):
            p.I(f"{sw} v{v}, v{t}")
        for v, t in zip(vs, tmps):
            p.I(f"{op} v{v}, v{v}, v{t}")


def gen_k1():
    name = "k1_ln_kernel"
    p = Prog()
    head(p, name, 240)
    p.I("""
    v_and_b32 v1, 63, v0          ; lane
    v_lshrrev_b32 v2, 6, v0       ; wave
    s_cmp_ge_u32 s2, 128
    s_cbranch_scc1 L_k1_cs
    v_and_b32 v3, 15, v1          ; m
    v_lshrrev_b32 v4, 4, v1       ; g
    s_lshl_b32 s3, s2, 15         ; b*16 rows*2048
    v_lshlrev_b32 v5, 11, v3      ; m*2048
    v_lshl_add_u32 v5, v2, 8, v5  ; + w*256
    v_lshl_add_u32 v5, v4, 4, v5  ; + g*16
    v_lshlrev_b32 v6, 4, v1       ; lane*16
    v_lshl_add_u32 v6, v2, 12, v6 ; + w*4096
    v_lshlrev_b32 v7, 5, v3
    v_lshl_add_u32 v8, v2, 2, v7
    s_waitcnt lgkmcnt(0)
    """)
    srd(p, 36, P_X, 0, S_TOK * D * 2)
    srd(p, 40, P_WS, WS_XN, S_TOK * D * 2)
    for j in range(4):
        p.I(f"buffer_load_dwordx4 v[{16+4*j}:{19+4*j}], v5, s[36:39], s3 offen offset:{64*j}")
    for j in range(4):
        p.I(f"s_waitcnt vmcnt({3-j})")
        for r in range(4):
            x = 16 + 4 * j + r
            p.I(f"v_lshlrev_b32 v{32+2*(4*j+r)}, 16, v{x}")
            p.I(f"v_and_b32 v{33+2*(4*j+r)}, 0xffff0000, v{x}")
    for a in range(4):
        p.I(f"v_add_f32 v{10+a}, v{32+a}, v{36+a}")
    for i in range(2, 8):
        for a in range(4):
            p.I(f"v_add_f32 v{10+a}, v{10+a}, v{32+4*i+a}")
    p.I("""
    v_add_f32 v10, v10, v11
    v_add_f32 v12, v12, v13
    v_add_f32 v10, v10, v12
    """)
    xgroup_reduce(p, 10, 11, "v_add_f32")
    p.I("""
    ds_write_b32 v8, v10
    s_waitcnt lgkmcnt(0)
    s_barrier
    ds_read_b128 v[16:19], v7
    ds_read_b128 v[20:23], v7 offset:16
    s_waitcnt lgkmcnt(0)
    v_add_f32 v16, v16, v17
    v_add_f32 v18, v18, v19
    v_add_f32 v20, v20, v21
    v_add_f32 v22, v22, v23
    v_add_f32 v16, v16, v18
    v_add_f32 v20, v20, v22
    v_add_f32 v16, v16, v20
    v_mul_f32 v16, 0x3a800000, v16
    """)
    for i in range(32):
        p.I(f"v_sub_f32 v{32+i}, v{32+i}, v16")
    for a in range(4):
        p.I(f"v_mul_f32 v{10+a}, v{32+a}, v{32+a}")
    for i in range(1, 8):
        for a in range(4):
            p.I(f"v_fmac_f32 v{10+a}, v{32+4*i+a}, v{32+4*i+a}")
    p.I("""
    v_add_f32 v10, v10, v11
    v_add_f32 v12, v12, v13
    v_add_f32 v10, v10, v12
    """)
    xgroup_reduce(p, 10, 11, "v_add_f32")
    p.I(f"""
    ds_write_b32 v8, v10 offset:512
    s_waitcnt lgkmcnt(0)
    s_barrier
    ds_read_b128 v[16:19], v7 offset:512
    ds_read_b128 v[20:23], v7 offset:528
    s_waitcnt lgkmcnt(0)
    v_add_f32 v16, v16, v17
    v_add_f32 v18, v18, v19
    v_add_f32 v20, v20, v21
    v_add_f32 v22, v22, v23
    v_add_f32 v16, v16, v18
    v_add_f32 v20, v20, v22
    v_add_f32 v16, v16, v20
    v_mov_b32 v17, {f2u(1e-5):#x}
    v_fmac_f32 v17, 0x3a800000, v16
    v_rsq_f32 v16, v17
    """)
    for i in range(32):
        p.I(f"v_mul_f32 v{32+i}, v{32+i}, v16")
    for j in range(4):
        for r in range(4):
            q = 4 * j + r
            p.I(f"v_cvt_pk_bf16_f32 v{16+q}, v{32+2*q}, v{33+2*q}")
        p.I(f"buffer_store_dwordx4 v[{16+4*j}:{19+4*j}], v6, s[40:43], s3 offen offset:{1024*j}")
    p.I("s_endpgm")
    p.label("L_k1_cs")
    p.I(f"""
    s_sub_u32 s3, s2, 128
    s_cmp_ge_u32 s3, 56
    s_cselect_b32 s4, 56, 0
    s_sub_u32 s5, s3, s4
    s_lshl_b32 s6, s5, 7            ; *128 bytes
    v_lshrrev_b32 v3, 3, v1
    v_lshl_add_u32 v3, v2, 7, v3    ; + w*128
    s_movk_i32 s7, {F*2}
    v_mul_lo_u32 v3, v3, s7
    v_and_b32 v4, 7, v1
    v_lshl_add_u32 v3, v4, 4, v3
    v_add_u32 v3, s6, v3
    v_lshlrev_b32 v5, 5, v4
    v_lshl_add_u32 v5, v2, 8, v5    ; + w*256
    v_lshlrev_b32 v6, 2, v0         ; tid*4
    s_waitcnt lgkmcnt(0)
    s_cmp_ge_u32 s3, 56
    s_cselect_b32 s36, s{P_WU}, s{P_WG}
    s_cselect_b32 s37, s{P_WU+1}, s{P_WG+1}
    s_mov_b32 s38, {D*F*2}
    s_mov_b32 s39, 0x00020000
    """)
    srd(p, 40, P_WS, WS_CS, 2 * F * 4)
    for i in range(16):
        p.I(f"s_mov_b32 s8, {i*8*F*2}")
        p.I(f"buffer_load_dwordx4 v[{32+4*i}:{35+4*i}], v3, s[36:39], s8 offen")
    for i in range(16):
        p.I(f"s_waitcnt vmcnt({15-i})")
        for r in range(4):
            x = 32 + 4 * i + r
            if i == 0:
                p.I(f"v_lshlrev_b32 v{16+2*r}, 16, v{x}")
                p.I(f"v_and_b32 v{17+2*r}, 0xffff0000, v{x}")
            else:
                p.I(f"v_lshlrev_b32 v8, 16, v{x}")
                p.I(f"v_and_b32 v9, 0xffff0000, v{x}")
                p.I(f"v_add_f32 v{16+2*r}, v{16+2*r}, v8")
                p.I(f"v_add_f32 v{17+2*r}, v{17+2*r}, v9")
    for r in range(8):
        p.I(f"v_add_f32_dpp v{24+r}, v{16+r}, v{16+r} row_ror:8 row_mask:0xf bank_mask:0xf")
    xgroup_reduce_multi(p, list(range(24, 32)), list(range(16, 24)), "v_add_f32")
    p.I("""
    ds_write_b128 v5, v[24:27]
    ds_write_b128 v5, v[28:31] offset:16
    s_waitcnt lgkmcnt(0)
    s_barrier
    v_cmp_gt_u32 vcc, 64, v0
    s_and_saveexec_b64 s[10:11], vcc
    s_cbranch_execz L_k1_ln_kernel_end
    """)
    for w in range(8):
        p.I(f"ds_read_b32 v{16+w}, v6 offset:{256*w}")
    p.I("s_waitcnt lgkmcnt(0)")
    for w in range(1, 8):
        p.I(f"v_add_f32 v16, v16, v{16+w}")
    p.I("""
    s_lshl_b32 s3, s3, 8            ; (mat*56+cg)*64*4
    buffer_store_dword v16, v6, s[40:43], s3 offen
    """)
    tail(p, name)
    return name, p, kernel_desc(name, 96, 96), (240, 512, 2048)


class Loop:
    def __init__(self, tag, NSTEP, SUB, S, RX, U, wdma, xload, reads, mfmas, cnt_sreg, lead=1, tail_free=2,
                 order="rwx"):
        self.__dict__.update(locals())
        self.issued = []

    def _count(self, groups, tag):
        for g in groups:
            for t in g:
                if t.startswith("buffer_") or t.startswith("global_"):
                    self.issued.append(tag)

    def _need(self, tags):
        last = -1
        for i, t in enumerate(self.issued):
            if t in tags:
                last = i
        return len(self.issued) - 1 - last

    def prologue_issue(self, p):
        NST = self.NSTEP // self.SUB
        for st in range(min(self.S, NST)):
            for sub in range(self.SUB):
                t = st * self.SUB + sub
                if sub == 0:
                    g = self.wdma(st)
                    self._count(g, ("w", st))
                    for x in g:
                        p.I("\n".join(x))
                if t < self.RX - 1:
                    g = self.xload(t)
                    self._count(g, ("x", t))
                    for x in g:
                        p.I("\n".join(x))
        for t in range(min(self.S, NST) * self.SUB, self.RX - 1):
            g = self.xload(t)
            self._count(g, ("x", t))
            for x in g:
                p.I("\n".join(x))

    def extra_vm(self, tag, n=1):
        for _ in range(n):
            self.issued.append(tag)

    def wait_for(self, tag):
        return self._need({tag})

    def start(self, p):
        n = self._need({("w", 0)})
        p.I(f"s_waitcnt vmcnt({min(n,63)})")
        p.I("s_barrier")
        for g in self.reads(0):
            p.I("\n".join(g))

    def body(self, p):
        NSTEP, SUB, S, RX, U = self.NSTEP, self.SUB, self.S, self.RX, self.U
        NST = NSTEP // SUB
        steps = []
        pend_w = []
        for t in range(NSTEP):
            st, sub = divmod(t, SUB)
            txt = []
            tags = {("x", t)}
            bar = (sub == SUB - 1) and (st + 1 < NST)
            if bar:
                tags.add(("w", st + 1))
            n = min(self._need(tags), 63)
            txt.append(f"s_waitcnt vmcnt({n}) lgkmcnt(0)")
            if bar:
                txt.append("s_barrier")
                if st + S < NST:
                    pend_w = [(st + S, g) for g in self.wdma(st + S)]
            if pend_w:
                remaining_steps = SUB - (0 if bar else (sub + 1))
                k = (len(pend_w) + remaining_steps - 1) // remaining_steps if remaining_steps > 0 else len(pend_w)
                wnow, pend_w = pend_w[:k], pend_w[k:]
            else:
                wnow = []
            xg = self.xload(t + RX - 1) if t + RX - 1 < NSTEP else []
            rg = self.reads(t + 1) if t + 1 < NSTEP else []
            vm = [("w", st_, g) for st_, g in wnow] + [("x", t + RX - 1, g) for g in xg]
            others = []
            nr, nv = len(rg), len(vm)
            ri = vi = 0
            tot = nr + nv
            for i in range(tot):
                if vi < nv and (ri >= nr or (vi + 0.5) * nr <= (ri + 0.0) * nv + 0.5 * nv * 0 + 1e-9 * 0 and False):
                    pass
                take_v = vi < nv and (ri >= nr or (vi + 1) * (nr + 1) <= (ri + 1) * (nv + 1) - (nv + 1) // 2)
                if take_v:
                    kind, idx, g = vm[vi]
                    self._count([g], (kind, idx))
                    others.append(g)
                    vi += 1
                else:
                    others.append(rg[ri])
                    ri += 1
            txt += interleave(self.mfmas(t), others, lead=self.lead, tail_free=self.tail_free)
            steps.append(txt)
        best = (0, 0)
        for t0 in range(0, U + 1):
            n = 0
            while t0 + (n + 1) * U <= NSTEP and all(
                    steps[t0 + n * U + j] == steps[t0 + j] for j in range(U)):
                n += 1
            if n * U > best[1] * U or (n == best[1] and False):
                best = (t0, n)
        t0, n = best
        if n < 2:
            t0, n = 0, 0
        for t in range(t0):
            p.I("\n".join(steps[t]))
        if n:
            p.I(f"s_mov_b32 s{self.cnt_sreg}, {n}")
            p.label(f"L_{self.tag}_loop")
            for j in range(U):
                s = list(steps[t0 + j])
                if j == U - 1:
                    s = s[:-1] + [f"s_sub_u32 s{self.cnt_sreg}, s{self.cnt_sreg}, 1",
                                  f"s_cmp_lg_u32 s{self.cnt_sreg}, 0"] + s[-1:]
                p.I("\n".join(s))
            p.I(f"s_cbranch_scc1 L_{self.tag}_loop")
        for t in range(t0 + n * U, NSTEP):
            p.I("\n".join(steps[t]))
        self.loopinfo = (t0, n)


MFMA = "v_mfma_f32_16x16x32_bf16"


def gen_small(kind):
    name = "k3_wo_kernel" if kind == 3 else "k5_down_kernel"
    Kd = D if kind == 3 else F
    KB = Kd // 32
    SUB, S = 2, 8
    RX = S * SUB
    U = S * SUB
    p = Prog()
    head(p, name, 256)
    p.I("""
    s_and_b32 s3, s2, 7            ; xcd
    s_lshr_b32 s4, s2, 3           ; idx 0..31
    s_and_b32 s5, s3, 3
    s_lshl_b32 s5, s5, 2
    s_and_b32 s6, s4, 3
    s_add_u32 s5, s5, s6
    s_lshr_b32 s6, s3, 2
    s_lshl_b32 s6, s6, 3
    s_lshr_b32 s7, s4, 2
    s_add_u32 s6, s6, s7
    v_lshrrev_b32 v2, 6, v0
    v_and_b32 v1, 63, v0           ; lane
    v_readfirstlane_b32 s7, v2     ; wave
    v_and_b32 v3, 15, v1           ; m / i
    v_lshrrev_b32 v4, 4, v1        ; g
    """)
    ACC = 32
    V_XOFF0, V_XOFF1, V_W0, V_W1 = 5, 6, 7, 8
    V_RA = 10
    p.I(f"""
    v_lshlrev_b32 v{V_XOFF0}, 4, v1
    v_add_u32 v{V_XOFF1}, {KB*1024}, v{V_XOFF0}
    s_lshl_b32 s8, s5, 3
    s_lshl_b32 s9, s7, 1
    s_add_u32 s8, s8, s9           ; mb0
    s_mul_i32 s44, s8, {KB*1024}
    """)
    p.I(f"""
    v_lshrrev_b32 v14, 3, v1
    v_lshrrev_b32 v15, 1, v14
    v_and_b32 v15, 3, v15          ; f
    v_bfe_u32 v16, v1, 1, 2        ; pos>>1
    v_xor_b32 v16, v16, v15        ; unit
    v_and_b32 v17, 1, v1
    v_lshlrev_b32 v16, 5, v16
    v_lshl_add_u32 v16, v17, 4, v16
    v_lshl_add_u32 v14, s7, 4, v14
    v_lshl_add_u32 v{V_W0}, v14, 11, v16
    v_add_u32 v{V_W1}, {8*2048-1024}, v{V_W0}
    s_lshl_b32 s45, s6, 7
    s_lshl_b32 s46, s7, 11
    """)
    p.I(f"""
    v_lshrrev_b32 v14, 2, v3       ; r
    v_and_b32 v15, 3, v3           ; c
    v_lshl_add_u32 v16, v4, 2, v14 ; 4g+r
    v_lshrrev_b32 v17, 1, v16
    v_and_b32 v17, 3, v17          ; f
    v_lshlrev_b32 v16, 7, v16
    v_lshl_add_u32 v16, v15, 3, v16
    """)
    for u in range(4):
        p.I(f"""
        v_xor_b32 v18, {u}, v17
        v_lshl_add_u32 v{V_RA+u}, v18, 5, v16
        """)
    p.I("s_waitcnt lgkmcnt(0)")
    if kind == 3:
        srd(p, 36, P_WS, WS_O, S_TOK * D * 2)
        srd(p, 40, P_WO, 0, D * D * 2)
        srd(p, 48, P_X, 0, S_TOK * D * 2)
        srd(p, 52, P_WS, WS_H, S_TOK * D * 2)
        srd(p, 56, P_WS, WS_ST, S_TOK * 128)
    else:
        srd(p, 36, P_WS, WS_ACT, S_TOK * F * 2)
        srd(p, 40, P_WD, 0, F * D * 2)
        srd(p, 48, P_WS, WS_H, S_TOK * D * 2)
        srd(p, 52, P_OUT, 0, S_TOK * D * 2)

    AX, AW = 0, 128

    def wdma(st):
        slot = st % S
        return [[f"s_add_u32 m0, s46, {slot*8192}",
                 "s_nop 0",
                 f"buffer_load_dwordx4 v{V_W0}, s[40:43], s45 offen lds"],
                [f"buffer_load_dwordx4 v{V_W1}, s[40:43], s45 offen offset:1024 lds",
                 f"s_add_u32 s45, s45, {64*2048}"]]

    def xload(t):
        a = AX + (t % RX) * 8
        return [[f"buffer_load_dwordx4 a[{a}:{a+3}], v{V_XOFF0}, s[36:39], s44 offen"],
                [f"buffer_load_dwordx4 a[{a+4}:{a+7}], v{V_XOFF1}, s[36:39], s44 offen",
                 "s_add_u32 s44, s44, 1024"]]

    def reads(t):
        st, sub = divmod(t, SUB)
        base = (st % S) * 8192 + sub * 4096
        a = AW + (t & 1) * 16
        out = []
        for u in range(4):
            for hh in range(2):
                out.append([f"ds_read_b64_tr_b16 a[{a+4*u+2*hh}:{a+4*u+2*hh+1}], v{V_RA+u} offset:{base+hh*2048}"])
        return out

    def mfmas(t):
        ax = AX + (t % RX) * 8
        aw = AW + (t & 1) * 16
        out = []
        for u in range(4):
            for tb in range(2):
                c = ACC + (tb * 4 + u) * 4
                out.append(f"{MFMA} v[{c}:{c+3}], a[{aw+4*u}:{aw+4*u+3}], a[{ax+4*tb}:{ax+4*tb+3}], v[{c}:{c+3}]")
        return out

    L = Loop(name, KB, SUB, S, RX, U, wdma, xload, reads, mfmas, cnt_sreg=47, lead=1, tail_free=1)
    RES = 64
    if kind == 3:
        p.I(f"""
        v_lshlrev_b32 v20, 11, v3
        v_lshl_add_u32 v20, v4, 3, v20
        s_lshl_b32 s9, s8, 15          ; mb0*16*2048
        s_add_u32 s9, s9, s45          ; + cb*128
        s_add_u32 s10, s9, 32768
        """)
        for tb in range(2):
            for u in range(4):
                r = RES + (tb * 4 + u) * 2
                p.I(f"buffer_load_dwordx2 v[{r}:{r+1}], v20, s[48:51], s{9+tb} offen offset:{32*u}")
        L.extra_vm("res", 8)
    else:
        p.I(f"""
        s_lshl_b32 s9, s8, 15
        s_lshl_b32 s10, s6, 11
        s_add_u32 s9, s9, s10
        s_add_u32 s10, s9, 32768
        """)
        for tb in range(2):
            for j in range(2):
                r = RES + (tb * 2 + j) * 4
                p.I(f"buffer_load_dwordx4 v[{r}:{r+3}], v{V_XOFF0}, s[48:51], s{9+tb} offen offset:{1024*j}")
        L.extra_vm("res", 4)
    L.prologue_issue(p)
    p.I(f"s_waitcnt vmcnt({min(63, L.wait_for('res'))})")
    for q in range(16):
        p.I(f"v_lshlrev_b32 v{ACC+2*q}, 16, v{RES+q}")
        p.I(f"v_and_b32 v{ACC+2*q+1}, 0xffff0000, v{RES+q}")
    L.start(p)
    L.body(p)
    for q in range(16):
        p.I(f"v_cvt_pk_bf16_f32 v{RES+q}, v{ACC+2*q}, v{ACC+2*q+1}")
    if kind == 3:
        p.I(f"""
        s_lshl_b32 s9, s8, 15
        s_lshl_b32 s10, s6, 11
        s_add_u32 s9, s9, s10
        s_add_u32 s10, s9, 32768
        """)
        for tb in range(2):
            for j in range(2):
                r = RES + (tb * 2 + j) * 4
                p.I(f"buffer_store_dwordx4 v[{r}:{r+3}], v{V_XOFF0}, s[52:55], s{9+tb} offen offset:{1024*j}")
        for q in range(16):
            p.I(f"v_lshlrev_b32 v{ACC+2*q}, 16, v{RES+q}")
            p.I(f"v_and_b32 v{ACC+2*q+1}, 0xffff0000, v{RES+q}")
        for tb in range(2):
            b = ACC + tb * 16
            p.I(f"v_add_f32 v{20+tb}, v{b}, v{b+1}")
            p.I(f"v_add_f32 v{22+tb}, v{b+2}, v{b+3}")
            for i in range(4, 16, 2):
                p.I(f"v_add_f32 v{20+tb}, v{20+tb}, v{b+i}")
                p.I(f"v_add_f32 v{22+tb}, v{22+tb}, v{b+i+1}")
            p.I(f"v_add_f32 v{20+tb}, v{20+tb}, v{22+tb}")
        xgroup_reduce_multi(p, [20, 21], [22, 23], "v_add_f32")
        p.I("""
        v_mul_f32 v24, 0x3c800000, v20
        v_mul_f32 v26, 0x3c800000, v21
        """)
        for tb in range(2):
            b = ACC + tb * 16
            for i in range(16):
                p.I(f"v_sub_f32 v{b+i}, v{b+i}, v{24+2*tb}")
            p.I(f"v_mul_f32 v{20+tb}, v{b}, v{b}")
            p.I(f"v_mul_f32 v{22+tb}, v{b+1}, v{b+1}")
            for i in range(2, 16, 2):
                p.I(f"v_fmac_f32 v{20+tb}, v{b+i}, v{b+i}")
                p.I(f"v_fmac_f32 v{22+tb}, v{b+i+1}, v{b+i+1}")
            p.I(f"v_add_f32 v{20+tb}, v{20+tb}, v{22+tb}")
        xgroup_reduce_multi(p, [20, 21], [22, 23], "v_add_f32")
        p.I(f"""
        v_mov_b32 v25, v20
        v_mov_b32 v27, v21
        v_lshlrev_b32 v20, 7, v3       ; m*128
        s_lshl_b32 s9, s8, 11          ; mb0*16*128
        s_lshl_b32 s10, s6, 3
        s_add_u32 s9, s9, s10
        v_cmp_gt_u32 vcc, 16, v1
        s_and_saveexec_b64 s[10:11], vcc
        buffer_store_dwordx2 v[24:25], v20, s[56:59], s9 offen
        buffer_store_dwordx2 v[26:27], v20, s[56:59], s9 offen offset:2048
        """)
    else:
        p.I(f"""
        v_lshlrev_b32 v20, 11, v3      ; m*2048
        v_and_b32 v21, 1, v4
        v_lshrrev_b32 v22, 1, v4
        v_lshl_add_u32 v20, v21, 5, v20
        v_lshl_add_u32 v20, v22, 4, v20   ; (g>>1)*16B
        s_lshl_b32 s9, s8, 15
        s_lshl_b32 s10, s6, 7
        s_add_u32 s9, s9, s10
        s_add_u32 s10, s9, 32768
        """)
        for tb in range(2):
            for j in range(2):
                r = RES + (tb * 2 + j) * 4
                p.I(f"v_permlane16_swap_b32 v{r}, v{r+2}")
                p.I(f"v_permlane16_swap_b32 v{r+1}, v{r+3}")
        for tb in range(2):
            for j in range(2):
                r = RES + (tb * 2 + j) * 4
                p.I(f"buffer_store_dwordx4 v[{r}:{r+3}], v20, s[52:55], s{9+tb} offen offset:{64*j}")
    tail(p, name)
    return name, p, kernel_desc(name, 256 + 160, 256), (256, 256, S * 8192)


def gen_k4():
    name = "k4_ffn_kernel"
    KB = D // 32
    S, RX, U = 8, 8, 8
    SLOT = 14336
    p = Prog()
    head(p, name, 256)
    p.I("""
    s_and_b32 s3, s2, 7            ; xcd
    s_lshr_b32 s4, s2, 3           ; idx 0..31
    s_and_b32 s5, s3, 1
    s_lshl_b32 s5, s5, 2
    s_and_b32 s6, s4, 3
    s_add_u32 s5, s5, s6
    s_lshr_b32 s6, s3, 1
    s_lshl_b32 s6, s6, 3
    s_lshr_b32 s7, s4, 2
    s_add_u32 s6, s6, s7
    v_lshrrev_b32 v226, 6, v0
    v_and_b32 v225, 63, v0         ; lane
    v_readfirstlane_b32 s7, v226   ; wave
    v_and_b32 v227, 15, v225       ; m / i
    v_lshrrev_b32 v228, 4, v225    ; g
    """)
    V_LANE, V_M, V_G = 225, 227, 228
    V_X = 229
    V_W = 233
    V_RA = 237
    V_T = 240
    p.I(f"""
    v_lshlrev_b32 v{V_X}, 4, v{V_LANE}
    v_add_u32 v{V_X+1}, {KB*1024}, v{V_X}
    v_add_u32 v{V_X+2}, {2*KB*1024}, v{V_X}
    v_add_u32 v{V_X+3}, {3*KB*1024}, v{V_X}
    s_lshl_b32 s8, s5, 4
    s_lshl_b32 s9, s7, 2
    s_add_u32 s8, s8, s9
    s_lshl_b32 s44, s8, 15         ; x soffset
    s_and_b32 s10, s6, 1
    """)
    p.I(f"""
    s_and_b32 s11, s7, 1
    s_lshl_b32 s12, s11, 8         ; t0*64
    s_mul_i32 s13, s6, 224
    s_movk_i32 s14, {F*2}
    s_mov_b32 s15, 0x4925          ; ceil(2^18/14)
    """)
    for j in range(4):
        t = V_T
        p.I(f"""
        v_add_u32 v{t}, s12, v{V_LANE}
        v_add_u32 v{t}, {64*j}, v{t}           ; q
        v_mul_u32_u24 v{t+1}, s15, v{t}
        v_lshrrev_b32 v{t+1}, 18, v{t+1}       ; row
        v_mul_u32_u24 v{t+2}, 14, v{t+1}
        v_sub_u32 v{t+2}, v{t}, v{t+2}         ; ch
        v_lshrrev_b32 v{t+3}, 1, v{t+2}        ; s
        v_add_u32 v{t+3}, s10, v{t+3}          ; s + parity
        v_cmp_eq_u32 vcc, 7, v{t+3}
        v_cndmask_b32 v{t+3}, v{t+3}, 0, vcc
        v_and_b32 v{t+2}, 1, v{t+2}
        v_lshlrev_b32 v{t+3}, 5, v{t+3}
        v_lshl_add_u32 v{t+3}, v{t+2}, 4, v{t+3}
        v_mul_lo_u32 v{t+1}, v{t+1}, s14
        v_add3_u32 v{V_W+j}, v{t+1}, v{t+3}, s13
        """)
        if j:
            p.I(f"v_subrev_u32 v{V_W+j}, {1024*j}, v{V_W+j}")
    p.I(f"""
    v_lshrrev_b32 v{V_T}, 2, v{V_M}
    v_and_b32 v{V_T+1}, 3, v{V_M}
    v_lshl_add_u32 v{V_T}, v{V_G}, 2, v{V_T}
    v_mul_u32_u24 v{V_T}, 224, v{V_T}
    v_lshl_add_u32 v{V_RA}, v{V_T+1}, 3, v{V_T}
    v_add_u32 v{V_RA+1}, {4*SLOT}, v{V_RA}
    s_mov_b32 s45, 0               ; w soffset
    s_lshr_b32 s12, s7, 1
    s_mul_i32 s46, s12, 7168
    s_lshl_b32 s13, s11, 12
    s_add_u32 s46, s46, s13
    s_waitcnt lgkmcnt(0)
    s_cmp_eq_u32 s12, 1
    s_cselect_b32 s40, s{P_WU}, s{P_WG}
    s_cselect_b32 s41, s{P_WU+1}, s{P_WG+1}
    s_mov_b32 s42, {D*F*2}
    s_mov_b32 s43, 0x00020000
    """)
    srd(p, 36, P_WS, WS_H, S_TOK * D * 2)
    srd(p, 48, P_WS, WS_ST, S_TOK * 128)
    srd(p, 52, P_WS, WS_CS, 2 * F * 4)
    srd(p, 56, P_WS, WS_ACT, S_TOK * F * 2)
    p.I(f"""
    v_lshlrev_b32 v{V_T}, 7, v{V_LANE}     ; token*128
    s_lshl_b32 s9, s8, 11                  ; mb0*16*128
    """)
    for j in range(8):
        p.I(f"buffer_load_dwordx4 v[{4*j}:{4*j+3}], v{V_T}, s[48:51], s9 offen offset:{16*j}")
    p.I(f"""
    v_lshlrev_b32 v{V_T+1}, 4, v{V_G}      ; g*16 bytes
    s_mul_i32 s12, s6, 448
    s_lshl_b32 s13, s10, 6
    s_add_u32 s13, s12, s13
    s_cmp_eq_u32 s10, 1
    s_cselect_b32 s14, 0, 384
    s_add_u32 s14, s12, s14                ; slot 6
    s_add_u32 s15, s13, {F*4}
    s_add_u32 s12, s14, {F*4}
    """)
    CSR = 168
    for s in range(14):
        mat, sl = divmod(s, 7)
        so = (13 if sl < 6 else 14) if mat == 0 else (15 if sl < 6 else 12)
        off = 64 * sl if sl < 6 else 0
        p.I(f"buffer_load_dwordx4 v[{CSR+4*s}:{CSR+4*s+3}], v{V_T+1}, s[52:55], s{so} offen offset:{off}")

    AX, AW = 0, 128

    def make(variant):
        nd = 4 if variant == 0 else 3

        def wdma(st):
            slot = st % S
            g = [[f"s_add_u32 m0, s46, {slot*SLOT}", "s_nop 0",
                  f"buffer_load_dwordx4 v{V_W}, s[40:43], s45 offen lds"]]
            for j in range(1, nd):
                g.append([f"buffer_load_dwordx4 v{V_W+j}, s[40:43], s45 offen offset:{1024*j} lds"])
            g[-1].append(f"s_add_u32 s45, s45, {32*F*2}")
            return g

        def xload(t):
            a = AX + (t % RX) * 16
            g = [[f"buffer_load_dwordx4 a[{a+4*j}:{a+4*j+3}], v{V_X+j}, s[36:39], s44 offen"] for j in range(4)]
            g[-1].append("s_add_u32 s44, s44, 1024")
            return g

        def reads(t):
            slot = t % S
            ra = V_RA + (slot >= 4)
            base = (slot % 4) * SLOT
            a = AW + (t & 1) * 56
            out = []
            for s in range(14):
                mat, sl = divmod(s, 7)
                for hh in range(2):
                    off = base + mat * 7168 + hh * 3584 + sl * 32
                    out.append([f"ds_read_b64_tr_b16 a[{a+4*s+2*hh}:{a+4*s+2*hh+1}], v{ra} offset:{off}"])
            return out

        def mfmas(t):
            ax = AX + (t % RX) * 16
            aw = AW + (t & 1) * 56
            out = []
            for s in range(14):
                for tb in range(4):
                    c = tb * 56 + s * 4
                    out.append(f"{MFMA} v[{c}:{c+3}], a[{aw+4*s}:{aw+4*s+3}], a[{ax+4*tb}:{ax+4*tb+3}], v[{c}:{c+3}]")
            return out

        L = Loop(f"{name}_v{variant}", KB, 1, S, RX, U, wdma, xload, reads, mfmas, cnt_sreg=47, lead=1,
                 tail_free=4)
        L.extra_vm("st", 8)
        L.extra_vm("cs", 14)
        return L

    def stats_and_init(q, L):
        q.I(f"s_waitcnt vmcnt({min(63, L.wait_for('st'))})")
        T = V_T
        q.I(f"v_add_f32 v{T}, v0, v2")
        q.I(f"v_add_f32 v{T+1}, v1, v3")
        for j in range(2, 16):
            q.I(f"v_add_f32 v{T}, v{T}, v{2*j}")
            q.I(f"v_add_f32 v{T+1}, v{T+1}, v{2*j+1}")
        q.I(f"v_mul_f32 v{T}, 0x3d800000, v{T}      ; mean")
        for j in range(16):
            q.I(f"v_sub_f32 v{2*j}, v{2*j}, v{T}")
        q.I(f"v_mul_f32 v{T+2}, v0, v0")
        for j in range(1, 16):
            q.I(f"v_fmac_f32 v{T+2}, v{2*j}, v{2*j}")
        q.I(f"""
        v_fmac_f32 v{T+1}, 0x42800000, v{T+2}     ; M2 += 64*sum d^2
        v_mov_b32 v{T+2}, {f2u(1e-5):#x}
        v_fmac_f32 v{T+2}, 0x3a800000, v{T+1}     ; var+eps
        v_sub_f32 v{T}, 0, v{T}                   ; -mean
        v_lshlrev_b32 v{T+3}, 2, v{V_M}
        """)
        for tb in range(4):
            q.I(f"ds_bpermute_b32 v{244+tb}, v{T+3}, v{T} offset:{64*tb}")
            q.I(f"ds_bpermute_b32 v{248+tb}, v{T+3}, v{T+2} offset:{64*tb}")
        q.I(f"s_waitcnt vmcnt({min(63, L.wait_for('cs'))}) lgkmcnt(0)")
        for tb in range(4):
            for r in range(0, 56, 2):
                pass
        for tb in range(4):
            for r in range(56):
                q.I(f"v_mul_f32 v{tb*56+r}, v{244+tb}, v{CSR+r}")

    p.I(f"""
    s_cmp_eq_u32 s11, 1
    s_cbranch_scc1 L_{name}_var1
    """)
    for variant in range(2):
        if variant == 1:
            p.label(f"L_{name}_var1")
        L = make(variant)
        L.prologue_issue(p)
        stats_and_init(p, L)
        L.start(p)
        L.body(p)
        if variant == 0:
            p.I("s_nop 7")
            p.I(f"s_branch L_{name}_epi")
    p.label(f"L_{name}_epi")
    C1 = -2.0 * 1.4426950408889634 * 0.7978845608028654
    C2 = C1 * 0.044715
    T = V_T
    p.I(f"""
    s_mul_i32 s9, s6, 7
    s_add_u32 s12, s9, s10
    s_lshr_b32 s12, s12, 1
    s_add_u32 s13, s9, 6
    s_cmp_eq_u32 s10, 1
    s_cselect_b32 s13, s9, s13
    s_lshr_b32 s13, s13, 1
    s_mul_i32 s14, s8, {112*1024}
    s_lshl_b32 s12, s12, 10
    s_lshl_b32 s13, s13, 10
    s_add_u32 s12, s12, s14
    s_add_u32 s13, s13, s14
    s_lshl_b32 s14, s10, 3
    s_add_u32 s13, s13, s14
    s_mov_b32 s14, {f2u(C1):#x}
    s_mov_b32 s15, {f2u(C2):#x}
    """)
    for tb in range(4):
        vrr = 248 + tb
        p.I(f"""
        v_rsq_f32 v{T}, v{vrr}
        v_rcp_f32 v{T+1}, v{vrr}
        v_mul_f32 v{T+2}, s14, v{T}
        v_mul_f32 v{T+3}, s15, v{T}
        v_mul_f32 v{T+3}, v{T+3}, v{T+1}
        """)
        c1, c2 = T + 2, T + 3
        for sl in range(7):
            g = tb * 56 + sl * 4
            u = tb * 56 + (7 + sl) * 4
            E = 244
            for r in range(4):
                p.I(f"v_mul_f32 v{252+r}, v{g+r}, v{g+r}")
            for r in range(4):
                p.I(f"v_fma_f32 v{252+r}, v{252+r}, v{c2}, v{c1}")
            for r in range(4):
                p.I(f"v_mul_f32 v{252+r}, v{252+r}, v{g+r}")
            for r in range(4):
                p.I(f"v_exp_f32 v{252+r}, v{252+r}")
            for r in range(4):
                p.I(f"v_mul_f32 v{u+r}, v{u+r}, v{g+r}")
            for r in range(4):
                p.I(f"v_fma_f32 v{252+r}, v{252+r}, v{vrr}, v{vrr}")
            for r in range(4):
                p.I(f"v_rcp_f32 v{252+r}, v{252+r}")
            for r in range(4):
                p.I(f"v_mul_f32 v{u+r}, v{u+r}, v{252+r}")
            dq = tb * 56 + sl * 2
            p.I(f"v_cvt_pk_bf16_f32 v{dq}, v{u}, v{u+1}")
            p.I(f"v_cvt_pk_bf16_f32 v{dq+1}, v{u+2}, v{u+3}")
            if sl in (1, 3, 5):
                d0 = tb * 56 + (sl - 1) * 2
                p.I(f"buffer_store_dwordx4 v[{d0}:{d0+3}], v{V_X}, s[56:59], s12 offen offset:{1024*(sl//2)}")
            if sl == 6:
                p.I(f"buffer_store_dwordx2 v[{dq}:{dq+1}], v{V_X}, s[56:59], s13 offen")
        if tb < 3:
            p.I(f"s_add_u32 s12, s12, {112*1024}")
            p.I(f"s_add_u32 s13, s13, {112*1024}")
    tail(p, name)
    return name, p, kernel_desc(name, 256 + 240, 256), (256, 256, S * SLOT)


def gen_k2():
    name = "k2_qkv_kernel"
    KB = D // 32
    S, RX, U = 8, 8, 8
    SLOT = 12288
    HALO = S * SLOT
    p = Prog()
    head(p, name, 256)
    p.I("""
    s_and_b32 s3, s2, 7            ; xcd
    s_lshr_b32 s4, s2, 3           ; idx 0..31
    s_and_b32 s5, s3, 1
    s_lshl_b32 s5, s5, 3
    s_and_b32 s6, s4, 7
    s_add_u32 s5, s5, s6
    s_lshr_b32 s6, s3, 1
    s_lshl_b32 s6, s6, 2
    s_lshr_b32 s7, s4, 3
    s_add_u32 s6, s6, s7
    v_lshrrev_b32 v2, 6, v0
    v_and_b32 v1, 63, v0           ; lane
    v_readfirstlane_b32 s7, v2     ; wave
    v_and_b32 v3, 15, v1           ; m / i
    v_lshrrev_b32 v4, 4, v1        ; g
    """)
    V_X = 5
    V_W = 7
    V_RA = 10
    V_HA = 18
    ACC = 32
    ACCH = 128
    p.I(f"""
    v_lshlrev_b32 v{V_X}, 4, v1
    v_add_u32 v{V_X+1}, {KB*1024}, v{V_X}
    v_add_u32 v{V_HA}, {HALO}, v{V_X}
    s_lshl_b32 s8, s5, 3
    s_lshl_b32 s9, s7, 1
    s_add_u32 s8, s8, s9
    s_lshl_b32 s44, s8, 15         ; x soffset
    """)
    p.I(f"""
    v_lshrrev_b32 v20, 3, v1        ; r8
    v_bfe_u32 v21, v1, 4, 1         ; (r8>>1)&1
    s_and_b32 s9, s7, 1
    s_lshl_b32 s9, s9, 1
    v_or_b32 v21, s9, v21           ; f
    v_bfe_u32 v22, v1, 1, 2
    v_xor_b32 v22, v22, v21         ; unit
    v_and_b32 v23, 1, v1
    v_lshlrev_b32 v22, 5, v22
    v_lshl_add_u32 v22, v23, 4, v22
    v_lshl_add_u32 v20, s7, 3, v20  ; row
    s_movk_i32 s9, 6144
    v_mul_lo_u32 v20, v20, s9
    v_add_u32 v{V_W}, v20, v22
    v_add_u32 v{V_W+1}, 2048, v{V_W}
    v_add_u32 v{V_W+2}, 4096, v{V_W}
    s_lshl_b32 s45, s6, 7
    s_lshl_b32 s46, s7, 10          ; w*1024
    """)
    p.I(f"""
    v_lshrrev_b32 v20, 2, v3        ; r
    v_and_b32 v21, 3, v3            ; c
    v_lshl_add_u32 v22, v4, 3, v20  ; 8g+r
    v_lshrrev_b32 v23, 1, v20
    v_and_b32 v24, 1, v4
    v_lshl_or_b32 v23, v24, 1, v23  ; f
    v_lshlrev_b32 v22, 7, v22
    v_lshl_add_u32 v22, v21, 3, v22
    """)
    for u in range(4):
        p.I(f"""
        v_xor_b32 v24, {u}, v23
        v_lshl_add_u32 v{V_RA+u}, v24, 5, v22
        v_add_u32 v{V_RA+4+u}, {4*SLOT}, v{V_RA+u}
        """)
    p.I("s_waitcnt lgkmcnt(0)")
    srd(p, 36, P_WS, WS_XN, S_TOK * D * 2)
    srd(p, 40, P_WQKV, 0, D * 3 * D * 2)
    srd(p, 52, P_WS, WS_O, S_TOK * D * 2)
    p.I(f"""
    s_lshl_b32 s9, s5, 3
    s_sub_u32 s9, s9, 1
    s_max_i32 s9, s9, 0
    s_lshl_b32 s9, s9, 15
    s_lshl_b32 s10, s7, 13
    s_add_u32 s9, s9, s10
    s_add_u32 s10, s10, {HALO}
    """)
    halo_dmas = []
    for j in range(2):
        g = [f"s_add_u32 m0, s10, {4096*j}", "s_nop 0"]
        for i in range(4):
            g.append(f"buffer_load_dwordx4 v{V_X}, s[36:39], s9 offen offset:{1024*i} lds")
        g.append("s_add_u32 s9, s9, 4096")
        halo_dmas.append(g)

    AX, AW, AH = 0, 64, 160

    def accr(tb, part, u):
        return ACC + ((tb * 3 + part) * 4 + u) * 4

    def make(variant):
        hd, kind = variant & 1, variant >> 1

        def wdma(st):
            slot = st % S
            g = []
            for part in range(3):
                g.append([f"s_add_u32 m0, s46, {slot*SLOT + part*4096}", "s_nop 0",
                          f"buffer_load_dwordx4 v{V_W+part}, s[40:43], s45 offen lds"])
            g[-1].append(f"s_add_u32 s45, s45, {32*6144}")
            return g

        def xload(t):
            a = AX + (t % RX) * 8
            g = [[f"buffer_load_dwordx4 a[{a+4*j}:{a+4*j+3}], v{V_X+j}, s[36:39], s44 offen"] for j in range(2)]
            g[-1].append("s_add_u32 s44, s44, 1024")
            return g

        def reads(t):
            slot = t % S
            hi = 4 if slot >= 4 else 0
            base = (slot % 4) * SLOT
            a = AW + (t & 1) * 48
            out = []
            for part in range(3):
                for u in range(4):
                    for hh in range(2):
                        r = a + (part * 4 + u) * 4 + 2 * hh
                        out.append([f"ds_read_b64_tr_b16 a[{r}:{r+1}], v{V_RA+hi+u} offset:{base+part*4096+hh*512}"])
            ah = AH + (t & 1) * 4
            out.append([f"ds_read_b128 a[{ah}:{ah+3}], v{V_HA} offset:{(t%U)*1024}"] +
                       ([f"v_add_u32 v{V_HA}, {U*1024}, v{V_HA}"] if t % U == U - 1 else []))
            return out

        def mfmas(t):
            ax = AX + (t % RX) * 8
            aw = AW + (t & 1) * 48
            ah = AH + (t & 1) * 4
            first = t == 0
            out = []
            for part in range(3):
                for u in range(4):
                    w = f"a[{aw+(part*4+u)*4}:{aw+(part*4+u)*4+3}]"
                    for tb in range(2):
                        c = accr(tb, part, u)
                        x = f"a[{ax+4*tb}:{ax+4*tb+3}]"
                        cc = f"v[{c}:{c+3}]"
                        a_, b_ = (w, x) if part < 2 else (x, w)
                        out.append(f"{MFMA} {cc}, {a_}, {b_}, {cc}")
            for db in range(2):
                part = 1 + kind
                u = 2 * hd + db
                w = f"a[{aw+(part*4+u)*4}:{aw+(part*4+u)*4+3}]"
                x = f"a[{ah}:{ah+3}]"
                cc = f"v[{ACCH+4*db}:{ACCH+4*db+3}]"
                a_, b_ = (w, x) if part < 2 else (x, w)
                out.append(f"{MFMA} {cc}, {a_}, {b_}, {cc}")
            return out

        L = Loop(f"{name}_v{variant}", KB, 1, S, RX, U, wdma, xload, reads, mfmas, cnt_sreg=47, lead=1,
                 tail_free=2)
        return L

    for g in halo_dmas:
        p.I("\n".join(g))
    for r in range(104):
        p.I(f"v_mov_b32 v{ACC+r}, 0")
    for v in range(1, 4):
        p.I(f"""
        s_cmp_eq_u32 s7, {v}
        s_cbranch_scc1 L_{name}_var{v}
        """)
    for variant in range(4):
        if variant:
            p.label(f"L_{name}_var{variant}")
        L = make(variant)
        L.extra_vm(("w", 0), 8)
        L.prologue_issue(p)
        L.start(p)
        L.body(p)
        if variant < 3:
            p.I("s_nop 7")
            p.I(f"s_branch L_{name}_epi")
    p.label(f"L_{name}_epi")
    QP = 136
    KP = 152
    VP = 176
    HP = 200
    BIAS = 204

    def qp(hd, tb): return QP + (hd * 2 + tb) * 4
    def kp(hd, i): return KP + (hd * 3 + i) * 4
    def vp(hd, db, i): return VP + ((hd * 2 + db) * 3 + i) * 2

    NEG = f2u(-1e30)
    p.I(f"""
    v_lshlrev_b32 v20, 2, v4          ; 4g
    v_sub_u32 v20, v20, v3            ; 4g - m
    v_mov_b32 v21, {NEG:#x}
    s_or_b32 s9, s5, s7
    s_cmp_eq_u32 s9, 0
    s_cselect_b32 s9, 64, 2
    """)
    for r in range(4):
        p.I(f"""
        v_add_u32 v22, {r}, v20           ; d = j - m
        v_and_b32 v23, 1, v22
        v_lshl_add_u32 v24, v23, 8, v22
        v_cmp_ge_i32 vcc, 0, v24
        v_cndmask_b32 v{BIAS+8+r}, v21, 0, vcc
        v_lshlrev_b32 v23, 8, v23
        v_sub_u32 v24, v22, v23
        v_cmp_le_i32 vcc, 2, v24
        v_cndmask_b32 v{BIAS+4+r}, v21, 0, vcc
        v_cmp_le_i32 vcc, s9, v24
        v_cndmask_b32 v{BIAS+r}, v21, 0, vcc
        """)
    for hd in range(2):
        for tb in range(2):
            for db in range(2):
                for part, dst in ((0, qp(hd, tb) + 2 * db), (1, kp(hd, 1 + tb) + 2 * db), (2, vp(hd, db, 1 + tb))):
                    c = accr(tb, part, 2 * hd + db)
                    p.I(f"v_cvt_pk_bf16_f32 v{dst}, v{c}, v{c+1}")
                    p.I(f"v_cvt_pk_bf16_f32 v{dst+1}, v{c+2}, v{c+3}")
    for i in range(4):
        p.I(f"v_cvt_pk_bf16_f32 v{HP+i}, v{ACCH+2*i}, v{ACCH+2*i+1}")
    p.I(f"""
    s_lshl_b32 s9, s7, 12
    v_add_u32 v20, s9, v{V_X}
    s_and_b32 s10, s7, 1
    s_lshl_b32 s10, s10, 11
    s_lshr_b32 s11, s7, 1
    s_lshl_b32 s11, s11, 10
    s_add_u32 s10, s10, s11
    v_add_u32 v21, s10, v{V_X}
    s_barrier
    ds_write_b128 v21, v[{HP}:{HP+3}]
    """)
    for hd in range(2):
        k = kp(hd, 2)
        p.I(f"ds_write_b128 v20, v[{k}:{k+3}] offset:{4096+hd*2048}")
        for db in range(2):
            v = vp(hd, db, 2)
            p.I(f"ds_write_b64 v20, v[{v}:{v+1}] offset:{4096+hd*2048+1024+8*db}")
    p.I("""
    s_waitcnt lgkmcnt(0)
    s_barrier
    """)
    for hd in range(2):
        k = kp(hd, 0)
        p.I(f"ds_read_b128 v[{k}:{k+3}], v20 offset:{hd*2048}")
        for db in range(2):
            v = vp(hd, db, 0)
            p.I(f"ds_read_b64 v[{v}:{v+1}], v20 offset:{hd*2048+1024+8*db}")
    chains = [(hd, tb) for hd in range(2) for tb in (1, 0)]
    SR = 32
    MX = 64
    TM = 68
    SM = 72
    PP = 76
    OO = 96
    CSC = f2u(32 ** -0.5 * 1.4426950408889634)
    p.I(f"s_mov_b32 s9, {CSC:#x}")
    waited = False
    for ci, (hd, tb) in enumerate(chains):
        s = SR + ci * 8
        q = qp(hd, tb)
        kc = kp(hd, 1 + tb)
        p.I(f"{MFMA} v[{s+4}:{s+7}], v[{kc}:{kc+3}], v[{q}:{q+3}], v[{BIAS+8}:{BIAS+11}]")
    for ci, (hd, tb) in enumerate(chains):
        s = SR + ci * 8
        q = qp(hd, tb)
        kv = kp(hd, tb)
        if tb == 0 and not waited:
            p.I("s_waitcnt lgkmcnt(0)")
            waited = True
        b = BIAS + 4 * tb
        p.I(f"{MFMA} v[{s}:{s+3}], v[{kv}:{kv+3}], v[{q}:{q+3}], v[{b}:{b+3}]")
    for ci in range(4):
        s = SR + ci * 8
        p.I(f"v_max3_f32 v{MX+ci}, v{s+4}, v{s+5}, v{s+6}")
        p.I(f"v_max3_f32 v{MX+ci}, v{MX+ci}, v{s+7}, v{s}")
        p.I(f"v_max3_f32 v{MX+ci}, v{MX+ci}, v{s+1}, v{s+2}")
        p.I(f"v_max_f32 v{MX+ci}, v{MX+ci}, v{s+3}")
    xgroup_reduce_multi(p, [MX + i for i in range(4)], [TM + i for i in range(4)], "v_max_f32")
    for ci in range(4):
        p.I(f"v_mul_f32 v{MX+ci}, s9, v{MX+ci}")
    for ci in range(4):
        s = SR + ci * 8
        for r in range(8):
            p.I(f"v_fma_f32 v{s+r}, v{s+r}, s9, -v{MX+ci}")
        for r in range(8):
            p.I(f"v_exp_f32 v{s+r}, v{s+r}")
    for ci in range(4):
        s = SR + ci * 8
        for r in range(4):
            p.I(f"v_cvt_pk_bf16_f32 v{PP+4*ci+r}, v{s+2*r}, v{s+2*r+1}")
    for ci, (hd, tb) in enumerate(chains):
        for db in range(2):
            v = vp(hd, db, tb)
            o = OO + ci * 8 + db * 4
            p.I(f"{MFMA} v[{o}:{o+3}], v[{v}:{v+3}], v[{PP+4*ci}:{PP+4*ci+3}], 0")
    for ci in range(4):
        s = SR + ci * 8
        p.I(f"v_add_f32 v{SM+ci}, v{s}, v{s+1}")
        p.I(f"v_add_f32 v{TM+ci}, v{s+2}, v{s+3}")
        p.I(f"v_add_f32 v{SM+ci}, v{SM+ci}, v{s+4}")
        p.I(f"v_add_f32 v{TM+ci}, v{TM+ci}, v{s+5}")
        p.I(f"v_add_f32 v{SM+ci}, v{SM+ci}, v{s+6}")
        p.I(f"v_add_f32 v{TM+ci}, v{TM+ci}, v{s+7}")
        p.I(f"v_add_f32 v{SM+ci}, v{SM+ci}, v{TM+ci}")
    xgroup_reduce_multi(p, [SM + i for i in range(4)], [TM + i for i in range(4)], "v_add_f32")
    for ci in range(4):
        p.I(f"v_rcp_f32 v{SM+ci}, v{SM+ci}")
    p.I(f"""
    s_lshl_b32 s9, s8, 15
    s_lshl_b32 s10, s6, 11
    s_add_u32 s9, s9, s10
    s_add_u32 s10, s9, 32768
    """)
    for ci, (hd, tb) in enumerate(chains):
        o = OO + ci * 8
        for r in range(8):
            p.I(f"v_mul_f32 v{o+r}, v{o+r}, v{SM+ci}")
        d = SR + ci * 4
        for r in range(4):
            p.I(f"v_cvt_pk_bf16_f32 v{d+r}, v{o+2*r}, v{o+2*r+1}")
        p.I(f"buffer_store_dwordx4 v[{d}:{d+3}], v{V_X}, s[52:55], s{9+tb} offen offset:{1024*hd}")
    tail(p, name)
    return name, p, kernel_desc(name, 256 + 168, 256), (256, 256, HALO + 32768)


def main():
    ks = [gen_k1(), gen_k2(), gen_small(3), gen_k4(), gen_small(5)]
    ref = open(f"cdna_kernels/{NAME}.s.ref").read().split("\n")
    hdr = [l for l in ref if l.startswith(";") and "@launch" not in l]
    out = "\n".join(hdr) + "\n"
    for name, p, desc, (g, b, lds) in ks:
        out += f"; @launch kernel={name} grid=({g},1,1) block=({b},1,1) lds={lds}\n"
    out += '.amdgcn_target "amdgcn-amd-amdhsa--gfx950"\n'
    for name, p, desc, _ in ks:
        out += p.finalize()
    out += '.section .rodata,"a"\n'
    for name, p, desc, _ in ks:
        out += ".p2align 6\n" + desc
    dst = sys.argv[1] if len(sys.argv) > 1 else f"cdna_kernels/{NAME}.s"
    open(dst, "w").write(out)
    print("wrote", dst, len(out), "bytes")


if __name__ == "__main__":
    main()
```

```python
import re

TRANS = ("v_exp_f32", "v_log_f32", "v_rcp_f32", "v_rsq_f32", "v_sqrt_f32", "v_sin_f32", "v_cos_f32",
         "v_rcp_iflag_f32")

_reg_re = re.compile(r"\b([vas])(\d+)\b|\b([vas])\[(\d+):(\d+)\]|\b(vcc|exec|m0|scc)\b")


def regs_of(op):
    out = []
    for m in _reg_re.finditer(op):
        if m.group(1):
            out.append(m.group(1) + m.group(2))
        elif m.group(3):
            out += [m.group(3) + str(i) for i in range(int(m.group(4)), int(m.group(5)) + 1)]
        else:
            out.append(m.group(6))
    return out


def split_ops(s):
    ops, depth, cur = [], 0, ""
    for ch in s:
        if ch in "[(":
            depth += 1
        if ch in "])":
            depth -= 1
        if ch == "," and depth == 0:
            ops.append(cur.strip())
            cur = ""
        else:
            cur += ch
    if cur.strip():
        ops.append(cur.strip())
    return ops


class Ins:
    __slots__ = ("text", "op", "cls", "dst", "src", "srcC", "srcAB", "passes", "states", "lds_dma",
                 "wide_store", "store_data", "dpp", "perm", "rdlane", "is_label", "branch_to")

    def __init__(self, text):
        self.text = text
        self.is_label = False
        self.branch_to = None
        self.dst, self.src, self.srcC, self.srcAB = [], [], [], []
        self.passes = 0
        self.states = 1
        self.lds_dma = False
        self.wide_store = False
        self.store_data = []
        self.dpp = False
        self.perm = False
        self.rdlane = False
        t = text.split(";")[0].strip()
        if t.endswith(":"):
            self.is_label = True
            self.op = t[:-1]
            self.cls = "label"
            self.states = 0
            return
        if not t or t.startswith("."):
            self.op = ""
            self.cls = "none"
            self.states = 0
            return
        parts = t.split(None, 1)
        op = parts[0]
        self.op = op
        rest = parts[1] if len(parts) > 1 else ""
        ops = split_ops(rest)
        first_tok = [o.split()[0] if o.split() else o for o in ops]
        R = [regs_of(o) for o in first_tok]
        if op.startswith("v_mfma"):
            self.cls = "mfma"
            self.dst = R[0]
            self.srcAB = R[1] + R[2]
            self.srcC = R[3]
            self.src = self.srcAB + self.srcC
            self.passes = 8 if "32x32" in op else 4
        elif op.startswith("v_"):
            base = op.replace("_e32", "").replace("_e64", "").replace("_dpp", "")
            self.cls = "trans" if base in TRANS else "valu"
            self.dpp = "_dpp" in op or "row_" in rest or "quad_perm" in rest
            if base.startswith("v_permlane"):
                self.perm = True
                self.dst = R[0] + R[1]
                self.src = R[0] + R[1]
            elif base.startswith("v_cmp"):
                self.dst = R[0]
                self.src = sum(R[1:], [])
            elif base in ("v_readfirstlane_b32", "v_readlane_b32"):
                self.rdlane = True
                self.dst = R[0]
                self.src = sum(R[1:], [])
            elif base in ("v_add_co_u32", "v_sub_co_u32", "v_addc_co_u32", "v_subb_co_u32", "v_mad_u64_u32"):
                self.dst = R[0] + R[1]
                self.src = sum(R[2:], [])
            elif base in ("v_fmac_f32", "v_pk_fmac_f16", "v_dot2c_f32_bf16"):
                self.dst = R[0]
                self.src = sum(R, [])
            elif base == "v_nop":
                pass
            else:
                self.dst = R[0]
                self.src = sum(R[1:], [])
                if self.dpp:
                    self.src += R[0]
        elif op.startswith("ds_"):
            self.cls = "ds"
            if op.startswith("ds_read") or op.startswith("ds_bpermute") or op.startswith("ds_permute") \
                    or op.startswith("ds_swizzle"):
                self.dst = R[0]
                self.src = sum(R[1:], [])
            else:
                self.src = sum(R, [])
        elif op.startswith("buffer_") or op.startswith("global_"):
            self.cls = "vmem"
            if op in ("buffer_wbl2", "buffer_inv"):
                pass
            elif " lds" in (" " + rest) and rest.strip().endswith("lds") or "load_lds" in op:
                self.lds_dma = True
                self.src = sum(R, []) + ["m0"]
            elif "load" in op:
                self.dst = R[0]
                self.src = sum(R[1:], [])
            elif op.startswith("buffer_store") or op.startswith("buffer_atomic"):
                self.src = sum(R, [])
                self.store_data = R[0]
                self.wide_store = "x3" in op or "x4" in op
                if op.startswith("buffer_atomic") and "sc0" in rest:
                    self.dst = R[0]
            else:
                self.src = sum(R, [])
                self.store_data = R[1]
                self.wide_store = "x3" in op or "x4" in op
        elif op.startswith("s_"):
            self.cls = "salu"
            if op == "s_nop":
                self.states = int(rest.strip(), 0) + 1
            elif op.startswith("s_cbranch") or op == "s_branch":
                self.branch_to = rest.strip()
            elif op.startswith("s_load") or op.startswith("s_buffer_load") or op.startswith("s_memtime") \
                    or op.startswith("s_memrealtime"):
                self.cls = "smem"
                self.dst = R[0]
                self.src = sum(R[1:], [])
            elif op.startswith("s_cmp") or op in ("s_waitcnt", "s_barrier", "s_endpgm", "s_setprio", "s_sleep"):
                self.src = sum(R, [])
            else:
                self.dst = R[0] if R else []
                self.src = sum(R[1:], [])
        else:
            raise ValueError("unknown instruction: " + text)


def need_states(p, c):
    n = 0
    pd = set(p.dst)
    is_valu_p = p.cls in ("valu", "trans")
    is_valu_c = c.cls in ("valu", "trans")
    if is_valu_p:
        vd = {r for r in pd if r[0] in "va"}
        sd = {r for r in pd if r[0] == "s" or r == "vcc"}
        if c.cls == "mfma" and vd & set(c.src):
            n = max(n, 2)
        if c.cls == "vmem" and sd & set(c.src):
            n = max(n, 5)
        if is_valu_c and sd & set(c.src):
            n = max(n, 4 if c.rdlane else 2)
        if is_valu_c and "vcc" in sd and c.op.startswith(("v_cndmask", "v_addc", "v_subb", "v_div_fmas")):
            n = max(n, 4 if c.op.startswith("v_div_fmas") else 2)
        if c.rdlane and vd & set(c.src):
            n = max(n, 1)
        if p.cls == "trans" and c.cls != "trans" and vd & set(c.src + c.dst):
            n = max(n, 1)
        if (c.perm or c.dpp) and vd & set(c.src):
            n = max(n, 2)
        if "exec" in pd:
            n = max(n, 5)
    if p.cls == "mfma":
        big = p.passes == 8
        if c.cls == "mfma":
            if pd & set(c.srcAB):
                n = max(n, 12 if big else 8)
            if pd & set(c.srcC):
                if not (p.dst == c.srcC and p.passes == c.passes):
                    n = max(n, 10 if big else 6)
            if pd & set(c.dst) and not (p.dst == c.dst):
                n = max(n, 12 if big else 8)
        elif c.cls in ("valu", "trans", "vmem", "ds"):
            if pd & set(c.src + c.dst):
                n = max(n, 12 if big else 8)
        if is_valu_c and set(p.srcC) & set(c.dst):
            n = max(n, 7 if big else 3)
    if p.cls == "salu" and "m0" in pd and (c.lds_dma or "addtid" in c.op):
        n = max(n, 1)
    if p.wide_store and set(p.store_data) & set(c.dst):
        n = max(n, 2)
    return n


class Prog:
    def __init__(self):
        self.lines = []

    def I(self, text):
        for t in text.strip().split("\n"):
            t = t.strip()
            if t:
                self.lines.append(t)

    def label(self, name):
        self.lines.append(name + ":")

    def raw(self, text):
        self.lines.append(text)

    def C(self, text):
        self.lines.append("; " + text)

    def extend(self, other):
        self.lines += other.lines

    WINDOW = 24

    def finalize(self):
        ins = [Ins(t) for t in self.lines]
        out = []
        nnop = 0
        for c in ins:
            if c.states == 0:
                out.append(c)
                continue
            need = 0
            dist = 0
            for p in reversed(out):
                if p.states == 0:
                    continue
                if dist >= self.WINDOW:
                    break
                k = need_states(p, c)
                if k > dist:
                    need = max(need, k - dist)
                dist += p.states
            while need > 0:
                k = min(need, 16)
                out.append(Ins("s_nop %d" % (k - 1)))
                nnop += 1
                need -= k
            out.append(c)
        labels = {x.op: i for i, x in enumerate(out) if x.is_label}
        for i, b in enumerate(out):
            if b.branch_to and b.branch_to in labels:
                tgt = labels[b.branch_to]
                tail = [x for x in out[max(0, i - 3 * self.WINDOW): i + 1] if x.states]
                head = [x for x in out[tgt: tgt + 3 * self.WINDOW] if x.states][: self.WINDOW]
                seq = list(tail)
                for c in head:
                    dist = 0
                    for p in reversed(seq):
                        if dist >= self.WINDOW:
                            break
                        k = need_states(p, c)
                        if k > dist and p in tail:
                            raise RuntimeError("hazard across branch %s: '%s' -> '%s' need %d have %d" %
                                               (b.text, p.text, c.text, k, dist))
                        dist += p.states
                    seq.append(c)
        self.nnop = nnop
        if getattr(self, "paged", None):
            out = self._insert_page_stubs(out)
        txt = []
        for x in out:
            if x.is_label or x.text.startswith("."):
                txt.append(x.text)
            else:
                txt.append("    " + x.text)
        return "\n".join(txt) + "\n"


    def _sizes(self, out):
        import subprocess, tempfile, os
        body = ['.amdgcn_target "amdgcn-amd-amdhsa--gfx950"']
        labels = {x.op for x in out if x.is_label}
        for x in out:
            if x.states == 0:
                if x.is_label:
                    body.append(x.text)
                continue
            if x.branch_to and x.branch_to not in labels:
                body.append("s_nop 0")
            else:
                body.append(x.text)
        d = tempfile.mkdtemp()
        open(d + "/t.s", "w").write("\n".join(body) + "\n")
        subprocess.run(["clang", "-x", "assembler", "-target", "amdgcn-amd-amdhsa",
                        "-mcpu=gfx950", "-c", d + "/t.s", "-o", d + "/t.o"], check=True)
        dis = subprocess.run(["llvm-objdump", "-d", "--mcpu=gfx950", d + "/t.o"],
                             capture_output=True, text=True, check=True).stdout
        sizes = []
        for l in dis.split("\n"):
            m = re.search(r"//\s*[0-9A-Fa-f]{12}:((?:\s+[0-9A-Fa-f]{8})+)", l)
            if m:
                sizes.append(4 * len(m.group(1).split()))
        n = sum(1 for x in out if x.states)
        assert len(sizes) == n, (len(sizes), n)
        return sizes

    def _insert_page_stubs(self, out):
        name, nw = self.paged
        sizes = iter(self._sizes(out))
        res = []
        off = 0
        k = 0
        for x in out:
            if x.states == 0:
                res.append(x)
                continue
            sz = next(sizes)
            page_end = (off // 4096 + 1) * 4096
            if off + sz + 4 > page_end:
                res.append(Ins(f"s_branch L_{name}_pg{k}_skip"))
                res.append(Ins(".p2align 12"))
                res.append(Ins(f"L_{name}_pg{k}:"))
                res.append(Ins(f"s_branch L_{name}_pg{k+nw}"))
                res.append(Ins("s_nop 0"))
                res.append(Ins(f"L_{name}_pg{k}_skip:"))
                off = page_end + 8
                k += 1
            res.append(x)
            off += sz
        for j in range(k, k + nw):
            res.append(Ins(f".set L_{name}_pg{j}, L_{name}_pgret"))
        self.code_bytes = off
        return res


def vr(lo, n=1, k="v"):
    return "%s%d" % (k, lo) if n == 1 else "%s[%d:%d]" % (k, lo, lo + n - 1)


def ar(lo, n=1):
    return vr(lo, n, "a")


def sr(lo, n=1):
    return vr(lo, n, "s")


def kernel_desc(name, vgpr, accum, sgpr=102, wg_y=False):
    return f""".amdhsa_kernel {name}
  .amdhsa_next_free_vgpr {vgpr}
  .amdhsa_next_free_sgpr {sgpr}
  .amdhsa_accum_offset {accum}
  .amdhsa_group_segment_fixed_size 0
  .amdhsa_kernarg_size 80
  .amdhsa_user_sgpr_count 2
  .amdhsa_user_sgpr_kernarg_segment_ptr 1
  .amdhsa_system_sgpr_workgroup_id_x 1
  .amdhsa_float_denorm_mode_32 3
  .amdhsa_float_denorm_mode_16_64 3
.end_amdhsa_kernel
"""


def interleave(mfmas, others, lead=1, tail_free=2):
    out = []
    nm = len(mfmas)
    gaps = max(1, nm - lead - tail_free + 1)
    no = len(others)
    k = 0
    for i, m in enumerate(mfmas):
        out.append(m)
        gi = i - (lead - 1)
        if gi >= 0 and gi < gaps:
            tgt = ((gi + 1) * no + gaps - 1) // gaps
            while k < tgt and k < no:
                out += others[k]
                k += 1
    while k < no:
        out += others[k]
        k += 1
    return out
```

```python
import sys
from asmlib import *

NAME = "sequential_preLN__sliding_local_dilated__geglu_ffn__prompt"
MB = 1 << 20
WS_XN, WS_O, WS_H, WS_ST, WS_ACT = 0, 4 * MB, 8 * MB, 12 * MB, 16 * MB
WS_MX, WS_MEAN, WS_RM, WS_FLAG, WS_EX = 13 * MB, 13 * MB + 65536, 13 * MB + 131072, 14 * MB, 32 * MB
import os
if os.environ.get("REUSE") == "1":
    WS_H, WS_EX = WS_XN, WS_O
if os.environ.get("REUSE") == "2":
    WS_H = WS_XN
    WS_O = WS_ACT
S_TOK, D, F = 2048, 1024, 3584
P_X, P_WQKV, P_WO, P_BX, P_WG, P_WU, P_WD, P_OUT, P_DBG, P_WS = 16, 18, 20, 22, 24, 26, 28, 30, 32, 34


import os
def envint(k, d):
    return int(os.environ.get(k, d))
K2_P0, K2_RATE = envint("K2_P0", 2), float(os.environ.get("K2_RATE", 1.5))
K3_P0, K3_RATE = envint("K3_P0", 4), float(os.environ.get("K3_RATE", 2))
K4_P0, K4_RATE = envint("K4_P0", 2), float(os.environ.get("K4_RATE", 1.5))
K5_P0, K5_RATE = envint("K5_P0", 4), float(os.environ.get("K5_RATE", 1.5))
K5_R, K5_FLAGLAG, K5_MODE = envint("K5_R", 16), envint("K5_FLAGLAG", 5), envint("K5_MODE", 0)
STPOL = os.environ.get("STPOL", " sc0 sc1")
PF1, PF2, PF3, PF4 = envint("PF1", 1), envint("PF2", 1), envint("PF3", 0), envint("PF4", 2)
PF2T, PF3T = envint("PF2T", 25), envint("PF3T", 12)
K3_S, K5_S = envint("K3_S", 4), envint("K5_S", 8)
INPOL = os.environ.get("INPOL", "")
ROT = envint("ROT", 0)
FAKE5 = envint("FAKE5", 28)


def f2u(x):
    import struct
    return struct.unpack("<I", struct.pack("<f", x))[0]


def head(p, name, nwg):
    p.raw(".text")
    p.raw(f".globl {name}")
    p.raw(".p2align 12")
    p.raw(f".type {name},@function")
    p.label(name)
    p.I(f"""
    s_cmp_ge_u32 s2, {nwg}
    s_cbranch_scc1 L_{name}_end
    s_load_dwordx16 s[16:31], s[0:1], 0
    s_load_dwordx4 s[32:35], s[0:1], 64
    """)
    stamp(p, 0)


import os
STAMP = int(os.environ.get("STAMP", "0"))
STEPV = {"k2": 31, "k3": 31, "k4": 238, "k5": 127}
WS_STAMP = 200 * MB


def stamp(p, i):
    if STAMP:
        p.I(f"""
        s_memtime s[{64+4*i}:{65+4*i}]
        s_memrealtime s[{66+4*i}:{67+4*i}]
        """)


def pstamp(p, i):
    if STAMP == 3:
        p.I(f"s_memtime s[{84+2*i}:{85+2*i}]")


def stamp_out(p, kid, n):
    if not STAMP:
        return
    p.I("s_waitcnt vmcnt(0) lgkmcnt(0)")
    stamp(p, n - 1)
    p.I("s_mov_b64 exec, -1")
    srd(p, 96, P_WS, WS_STAMP + kid * (1 << 20), 1 << 20)
    p.I(f"""
    s_waitcnt lgkmcnt(0)
    s_lshl_b32 s100, s2, 10
    s_lshl_b32 s101, s7, 7
    s_add_u32 s100, s100, s101
    v_mov_b32 v0, 0
    s_mov_b64 exec, 1
    """)
    for i in range(n):
        for j in range(4):
            p.I(f"v_mov_b32 v{4+j}, s{64+4*i+j}")
        p.I(f"buffer_store_dwordx4 v[4:7], v0, s[96:99], s100 offen offset:{16*i}")
        p.I("s_nop 1")
    if STAMP == 3:
        for i in range(5):
            p.I(f"v_mov_b32 v4, s{84+2*i}")
            p.I(f"buffer_store_dword v4, v0, s[96:99], s100 offen offset:{64+4*i}")
    if STAMP == 2:
        sv = STEPV["k%d" % kid]
        p.I(f"""
        s_mov_b64 exec, -1
        v_mbcnt_lo_u32_b32 v0, -1, 0
        v_mbcnt_hi_u32_b32 v0, -1, v0
        v_lshlrev_b32 v0, 2, v0
        s_lshl_b32 s100, s2, 10
        s_lshl_b32 s101, s7, 8
        s_add_u32 s100, s100, s101
        s_add_u32 s100, s100, {512*1024}
        buffer_store_dword v{sv}, v0, s[96:99], s100 offen
        """)


HOP = envint("HOP", 1)


def hop(p, name, nw=4):
    pstamp(p, 1)
    if not HOP:
        pstamp(p, 2)
        return
    p.paged = (name, nw)
    for w in range(nw - 1):
        p.I(f"s_cmp_eq_u32 s7, {w}")
        p.I(f"s_cbranch_scc1 L_{name}_pg{w}")
    p.I(f"s_branch L_{name}_pg{nw-1}")
    p.label(f"L_{name}_pgret")
    pstamp(p, 2)


def tail(p, name):
    p.label(f"L_{name}_end")
    p.I("s_endpgm")


def srd(p, d, base, off, nbytes):
    if off:
        p.I(f"""
        s_add_u32 s{d}, s{base}, {off}
        s_addc_u32 s{d+1}, s{base+1}, 0
        """)
    else:
        p.I(f"""
        s_mov_b32 s{d}, s{base}
        s_mov_b32 s{d+1}, s{base+1}
        """)
    p.I(f"""
    s_mov_b32 s{d+2}, {nbytes}
    s_mov_b32 s{d+3}, 0x00020000
    """)


def xgroup_reduce(p, v, tmp, op):
    p.I(f"""
    v_mov_b32 v{tmp}, v{v}
    v_permlane16_swap_b32 v{v}, v{tmp}
    {op} v{v}, v{v}, v{tmp}
    v_mov_b32 v{tmp}, v{v}
    v_permlane32_swap_b32 v{v}, v{tmp}
    {op} v{v}, v{v}, v{tmp}
    """)


def xgroup_reduce_multi(p, vs, tmps, op):
    for sw in ("v_permlane16_swap_b32", "v_permlane32_swap_b32"):
        for v, t in zip(vs, tmps):
            p.I(f"v_mov_b32 v{t}, v{v}")
        for v, t in zip(vs, tmps):
            p.I(f"{sw} v{v}, v{t}")
        for v, t in zip(vs, tmps):
            p.I(f"{op} v{v}, v{v}, v{t}")


def gen_k1():
    name = "k1_ln_kernel"
    p = Prog()
    head(p, name, 256)
    p.I("""
    v_and_b32 v1, 63, v0          ; lane
    v_lshrrev_b32 v2, 6, v0       ; wave
    s_cmp_ge_u32 s2, 128
    s_cbranch_scc1 L_k1_aux
    s_and_b32 s4, s2, 3
    s_lshl_b32 s4, s4, 5
    s_bfe_u32 s5, s2, 0x10002
    s_lshl_b32 s5, s5, 4
    s_add_u32 s4, s4, s5
    s_lshr_b32 s5, s2, 3
    s_add_u32 s4, s4, s5
    v_and_b32 v3, 15, v1          ; m
    v_lshrrev_b32 v4, 4, v1       ; g
    s_lshl_b32 s3, s4, 15
    v_lshlrev_b32 v5, 11, v3      ; m*2048
    v_lshl_add_u32 v5, v2, 8, v5  ; + w*256
    v_lshl_add_u32 v5, v4, 4, v5  ; + g*16
    v_lshlrev_b32 v6, 4, v1       ; lane*16
    v_lshl_add_u32 v6, v2, 13, v6 ; + w*4 kb*2048
    s_lshr_b32 s5, s4, 1
    s_lshl_b32 s5, s5, 16
    s_and_b32 s6, s4, 1
    s_lshl_b32 s6, s6, 10
    s_add_u32 s5, s5, s6
    s_add_u32 s6, s5, 4096
    v_lshlrev_b32 v7, 5, v3
    v_lshl_add_u32 v8, v2, 2, v7
    s_waitcnt lgkmcnt(0)
    """)
    srd(p, 36, P_X, 0, S_TOK * D * 2)
    for j in range(4):
        p.I(f"buffer_load_dwordx4 v[{16+4*j}:{19+4*j}], v5, s[36:39], s3 offen offset:{64*j}{INPOL}")
    srd(p, 40, P_WS, WS_XN, S_TOK * D * 2)
    srd(p, 44, P_WS, WS_MX, S_TOK * 4)
    for j in range(4):
        p.I(f"s_waitcnt vmcnt({3-j})")
        for r in range(4):
            x = 16 + 4 * j + r
            p.I(f"v_lshlrev_b32 v{32+2*(4*j+r)}, 16, v{x}")
            p.I(f"v_and_b32 v{33+2*(4*j+r)}, 0xffff0000, v{x}")
    p.I("v_pk_add_f32 v[10:11], v[32:33], v[34:35]")
    p.I("v_pk_add_f32 v[12:13], v[36:37], v[38:39]")
    for i in range(2, 8):
        p.I(f"v_pk_add_f32 v[10:11], v[10:11], v[{32+4*i}:{33+4*i}]")
        p.I(f"v_pk_add_f32 v[12:13], v[12:13], v[{34+4*i}:{35+4*i}]")
    p.I("""
    v_pk_add_f32 v[10:11], v[10:11], v[12:13]
    v_add_f32 v10, v10, v11
    """)
    xgroup_reduce(p, 10, 11, "v_add_f32")
    p.I("""
    ds_write_b32 v8, v10
    s_waitcnt lgkmcnt(0)
    s_barrier
    ds_read_b128 v[16:19], v7
    ds_read_b128 v[20:23], v7 offset:16
    s_waitcnt lgkmcnt(0)
    v_pk_add_f32 v[16:17], v[16:17], v[18:19]
    v_pk_add_f32 v[20:21], v[20:21], v[22:23]
    v_pk_add_f32 v[16:17], v[16:17], v[20:21]
    v_add_f32 v16, v16, v17
    v_mul_f32 v14, 0x3a800000, v16
    """)
    for i in range(16):
        p.I(f"v_pk_add_f32 v[{32+2*i}:{33+2*i}], v[{32+2*i}:{33+2*i}], v[14:15] op_sel_hi:[1,0] neg_lo:[0,1] neg_hi:[0,1]")
    p.I("v_pk_mul_f32 v[10:11], v[32:33], v[32:33]")
    p.I("v_pk_mul_f32 v[12:13], v[34:35], v[34:35]")
    for i in range(1, 8):
        p.I(f"v_pk_fma_f32 v[10:11], v[{32+4*i}:{33+4*i}], v[{32+4*i}:{33+4*i}], v[10:11]")
        p.I(f"v_pk_fma_f32 v[12:13], v[{34+4*i}:{35+4*i}], v[{34+4*i}:{35+4*i}], v[12:13]")
    p.I("""
    v_pk_add_f32 v[10:11], v[10:11], v[12:13]
    v_add_f32 v10, v10, v11
    """)
    xgroup_reduce(p, 10, 11, "v_add_f32")
    p.I(f"""
    ds_write_b32 v8, v10 offset:512
    s_waitcnt lgkmcnt(0)
    s_barrier
    ds_read_b128 v[16:19], v7 offset:512
    ds_read_b128 v[20:23], v7 offset:528
    s_waitcnt lgkmcnt(0)
    v_pk_add_f32 v[16:17], v[16:17], v[18:19]
    v_pk_add_f32 v[20:21], v[20:21], v[22:23]
    v_pk_add_f32 v[16:17], v[16:17], v[20:21]
    v_add_f32 v16, v16, v17
    v_mov_b32 v17, {f2u(1e-5):#x}
    v_fmac_f32 v17, 0x3a800000, v16
    v_rsq_f32 v12, v17
    """)
    for j in range(4):
        for r in range(4):
            q = 4 * j + r
            p.I(f"v_pk_mul_f32 v[{32+2*q}:{33+2*q}], v[{32+2*q}:{33+2*q}], v[12:13] op_sel_hi:[1,0]")
        for r in range(4):
            q = 4 * j + r
            p.I(f"v_cvt_pk_bf16_f32 v{16+q}, v{32+2*q}, v{33+2*q}")
        p.I(f"buffer_store_dwordx4 v[{16+4*j}:{19+4*j}], v6, s[40:43], s{5+j//2} offen offset:{2048*(j&1)}{STPOL}")
    p.I("""
    v_cmp_gt_u32 vcc, 16, v0
    s_and_saveexec_b64 s[10:11], vcc
    s_cbranch_execz L_k1_ln_kernel_end
    v_lshlrev_b32 v3, 2, v0
    s_lshl_b32 s4, s4, 6
    buffer_store_dword v14, v3, s[44:47], s4 offen
    s_endpgm
    """)
    p.label("L_k1_aux")
    p.I(f"""
    s_cmp_ge_u32 s2, 192
    s_cbranch_scc1 L_k1_pf
    s_sub_u32 s3, s2, 128
    s_lshl_b32 s3, s3, 15           ; *16 rows*2048
    v_lshlrev_b32 v3, 4, v1
    v_lshl_add_u32 v3, v2, 12, v3   ; + w*2 rows
    s_waitcnt lgkmcnt(0)
    """)
    srd(p, 36, P_WO, 0, D * D * 2)
    for j in range(4):
        p.I(f"buffer_load_dwordx4 v[{16+4*j}:{19+4*j}], v3, s[36:39], s3 offen offset:{1024*j}")
    srd(p, 40, P_WS, WS_RM, 4096)
    for j in range(4):
        p.I(f"s_waitcnt vmcnt({3-j})")
        for r in range(4):
            x = 16 + 4 * j + r
            p.I(f"v_lshlrev_b32 v{32+2*(4*j+r)}, 16, v{x}")
            p.I(f"v_and_b32 v{33+2*(4*j+r)}, 0xffff0000, v{x}")
    for row in range(2):
        b = 32 + 16 * row
        a = 10 + 2 * row
        p.I(f"v_pk_add_f32 v[{a}:{a+1}], v[{b}:{b+1}], v[{b+2}:{b+3}]")
        for i in range(2, 8):
            p.I(f"v_pk_add_f32 v[{a}:{a+1}], v[{a}:{a+1}], v[{b+2*i}:{b+2*i+1}]")
    p.I("""
    v_add_f32 v10, v10, v11
    v_add_f32 v11, v12, v13
    """)
    for sh in (1, 2, 4, 8):
        p.I(f"v_add_f32_dpp v12, v10, v10 row_ror:{sh} row_mask:0xf bank_mask:0xf")
        p.I(f"v_add_f32_dpp v13, v11, v11 row_ror:{sh} row_mask:0xf bank_mask:0xf")
        p.I("v_mov_b32 v10, v12")
        p.I("v_mov_b32 v11, v13")
    xgroup_reduce_multi(p, [10, 11], [12, 13], "v_add_f32")
    p.I(f"""
    v_mul_f32 v10, 0x3a800000, v10
    v_mul_f32 v11, 0x3a800000, v11
    v_cvt_pk_bf16_f32 v12, v10, v11
    v_lshlrev_b32 v14, 16, v12
    v_and_b32 v15, 0xffff0000, v12
    v_sub_f32 v10, v10, v14
    v_sub_f32 v11, v11, v15
    v_cvt_pk_bf16_f32 v13, v10, v11
    s_sub_u32 s3, s2, 128
    s_lshr_b32 s4, s3, 1
    s_lshl_b32 s4, s4, 6                  ; kb*64
    s_and_b32 s5, s3, 1
    s_lshl_b32 s5, s5, 3                  ; (j>>4)*4*2
    s_add_u32 s4, s4, s5
    v_lshrrev_b32 v3, 1, v2               ; g = (2w)>>2
    v_lshlrev_b32 v3, 4, v3
    v_and_b32 v4, 1, v2
    v_lshl_add_u32 v3, v4, 2, v3          ; + (2w&3)*2
    v_cmp_eq_u32 vcc, 0, v1
    s_and_saveexec_b64 s[10:11], vcc
    buffer_store_dword v12, v3, s[40:43], s4 offen
    buffer_store_dword v13, v3, s[40:43], s4 offen offset:2048
    s_endpgm
    """)
    p.label("L_k1_pf")
    p.I(f"""
    s_sub_u32 s3, s2, 192
    s_lshl_b32 s4, s3, 16           ; *512 lines*128
    v_lshlrev_b32 v3, 7, v0
    s_lshl_b32 s5, s3, 11
    v_mov_b32 v6, 0
    s_waitcnt lgkmcnt(0)
    """)
    srd(p, 36, P_WQKV, 0, D * 3 * D * 2)
    srd(p, 40, P_WS, WS_FLAG, 1024 * 128)
    if PF1:
        p.I(f"""
        buffer_load_dword v4, v3, s[36:39], s4 offen
        s_add_u32 s4, s4, {64*65536}
        buffer_load_dword v5, v3, s[36:39], s4 offen
        """)
    p.I(f"""
    v_cmp_gt_u32 vcc, 16, v0
    s_and_saveexec_b64 s[10:11], vcc
    s_cbranch_execz L_k1_ln_kernel_end
    buffer_store_dword v6, v3, s[40:43], s5 offen
    """)
    tail(p, name)
    return name, p, kernel_desc(name, 64, 64), (256, 512, 2048)


class VStep:
    def __init__(self, mfmas, reads, xneed, wneed, extra=None, post=None):
        self.mfmas, self.reads, self.xneed, self.wneed = mfmas, reads, list(xneed), list(wneed)
        self.extra = extra or []
        self.post = post or []


def merge_step(mfmas, reads, vm, lead=1, tail_free=3, rpg=2):
    nm = len(mfmas)
    gaps = [[] for _ in range(nm)]
    usable = max(1, nm - tail_free - (lead - 1))
    nr = len(reads)
    span = max(1, min(usable, nr if nr <= usable else usable))
    for i, r in enumerate(reads):
        gi = lead - 1 + (i * span) // max(nr, 1)
        gaps[gi].append(("r", r))
    nv = len(vm)
    vspan = max(1, nm - 1 - (lead - 1))
    for i, v in enumerate(vm):
        gi = lead - 1 + ((2 * i + 1) * vspan) // (2 * nv)
        gaps[gi].append(("v", v))
    out = []
    order = []
    for i, m in enumerate(mfmas):
        out.append(m)
        for kind, g in gaps[i]:
            if kind == "v":
                order.append(g)
                out += g[2]
            else:
                out += g
    return out, order


class Loop:
    def __init__(self, tag, vsteps, NST, SUB, S, RX, U, wdma, xload, cnt_sreg, lead=1, tail_free=3,
                 P0=2, RATE=2.0):
        self.__dict__.update(locals())
        self.issued = []
        self.queue = []
        for st in range(NST):
            self.queue += [("w", st, g) for g in wdma(st)]
            for sub in range(SUB):
                t = st * SUB + sub
                self.queue += [("x", t, g) for g in xload(t)]
        self.qi = 0
        self.w_last = {}
        self.x_last = {}
        for i, v in enumerate(vsteps):
            for w in v.wneed:
                self.w_last[w] = i
            for x in v.xneed:
                self.x_last[x] = i
        self.w_free = set()
        self.tot_mfma = sum(len(v.mfmas) for v in vsteps)

    def _count(self, g, tag):
        for t in g:
            if t.startswith("buffer_") or t.startswith("global_"):
                self.issued.append(tag)

    def _need(self, tags):
        last = -1
        for i, t in enumerate(self.issued):
            if t in tags:
                last = i
        return len(self.issued) - 1 - last

    def _allowed(self, item, i):
        kind, idx, g = item
        if kind == "w":
            return idx < self.S or (idx - self.S) in self.w_free
        return idx < self.RX or self.x_last[idx - self.RX] < i

    def prologue_issue(self, p, upto=None):
        lim = self.P0 if upto is None else upto
        while self.qi < len(self.queue):
            kind, idx, g = self.queue[self.qi]
            st = idx if kind == "w" else idx // self.SUB
            if st >= lim or not self._allowed(self.queue[self.qi], 0):
                break
            self._count(g, (kind, idx))
            p.I("\n".join(g))
            self.qi += 1

    def extra_vm(self, tag, n=1):
        for _ in range(n):
            self.issued.append(tag)

    def wait_for(self, tag):
        return self._need({tag})

    def start(self, p):
        self.landed = set(self.vsteps[0].wneed)
        n = self._need({("w", w) for w in self.landed})
        pstamp(p, 3)
        p.I(f"s_waitcnt vmcnt({min(n,63)})")
        pstamp(p, 4)
        p.I("s_barrier")
        self.nbar = 1
        stamp(p, 1)
        if STAMP == 2:
            p.I("s_memtime s[80:81]")
        for g in self.vsteps[0].reads:
            p.I("\n".join(g))

    def body(self, p):
        import math
        U = self.U
        vs = self.vsteps
        N = len(vs)
        steps = []
        xl = set()
        per_mfma = len(self.queue) / self.tot_mfma
        for i, v in enumerate(vs):
            txt = []
            tags = {("x", x) for x in v.xneed if x not in xl}
            xl |= set(v.xneed)
            nxt = vs[i + 1] if i + 1 < N else None
            neww = [w for w in (nxt.wneed if nxt else []) if w not in self.landed]
            tags |= {("w", w) for w in neww}
            for j in range(self.qi, len(self.queue)):
                assert (self.queue[j][0], self.queue[j][1]) not in tags, "load not issued in time"
            if tags:
                n = min(self._need(tags), 63)
                txt.append(f"s_waitcnt vmcnt({n}) lgkmcnt(0)")
            else:
                txt.append("s_waitcnt lgkmcnt(0)")
            if neww:
                txt.append("s_barrier")
                self.nbar += 1
                self.landed |= set(neww)
                self.w_free |= {w for w, l in self.w_last.items() if l <= i}
            if STAMP == 2:
                sv = STEPV[self.tag[:2]]
                txt += [f"v_writelane_b32 v{sv}, s80, {i}", "s_memtime s[80:81]"]
            vm = []
            budget = int(math.ceil(per_mfma * len(v.mfmas) * self.RATE))
            while self.qi < len(self.queue) and budget > 0 and self._allowed(self.queue[self.qi], i):
                vm.append(self.queue[self.qi])
                self.qi += 1
                budget -= 1
            vm += [("e", i, g) for g in v.extra]
            body, order = merge_step(v.mfmas, nxt.reads if nxt else [], vm, self.lead, self.tail_free)
            for kind, idx, g in order:
                self._count(g, (kind, idx))
            txt += body
            if v.post:
                txt += v.post(self) if callable(v.post) else v.post
            steps.append(txt)
        best = (0, 0)
        for t0 in range(0, max(0, N - U)):
            n = 0
            while t0 + (n + 1) * U <= N and all(steps[t0 + n * U + j] == steps[t0 + j] for j in range(U)):
                n += 1
            if n > best[1]:
                best = (t0, n)
        t0, n = best
        if n < 2:
            t0, n = 0, 0
        for t in range(t0):
            p.I("\n".join(steps[t]))
        if n:
            p.I(f"s_mov_b32 s{self.cnt_sreg}, {n}")
            p.label(f"L_{self.tag}_loop")
            for j in range(U):
                s = list(steps[t0 + j])
                if j == U - 1:
                    assert s[-1].startswith("v_mfma")
                    s = s[:-1] + [f"s_sub_u32 s{self.cnt_sreg}, s{self.cnt_sreg}, 1",
                                  f"s_cmp_lg_u32 s{self.cnt_sreg}, 0"] + s[-1:]
                p.I("\n".join(s))
            p.I(f"s_cbranch_scc1 L_{self.tag}_loop")
        for t in range(t0 + n * U, N):
            p.I("\n".join(steps[t]))
        print(self.tag, "loop: t0", t0, "iters", n, "of", U, "vsteps", N, file=sys.stderr)
        stamp(p, 2)


MFMA = "v_mfma_f32_16x16x32_bf16"


WGMAP_4x8 = """
    s_and_b32 s3, s2, 7            ; xcd
    s_lshr_b32 s4, s2, 3           ; idx 0..31
    s_and_b32 s5, s3, 3
    s_lshl_b32 s5, s5, 2
    s_and_b32 s6, s4, 3
    s_add_u32 s5, s5, s6
    s_lshr_b32 s6, s3, 2
    s_lshl_b32 s6, s6, 3
    s_lshr_b32 s7, s4, 2
    s_add_u32 s6, s6, s7
"""
LANES = """
    v_lshrrev_b32 v2, 6, v0
    v_and_b32 v1, 63, v0           ; lane
    v_readfirstlane_b32 s7, v2     ; wave
    v_and_b32 v3, 15, v1           ; m / i
    v_lshrrev_b32 v4, 4, v1        ; g
"""


def gen_k3():
    name = "k3_wo_kernel"
    KB = D // 32
    SUB, S = 2, K3_S
    RX = S * SUB
    TAB = S * 8192
    ZERO = TAB + 4096
    p = Prog()
    head(p, name, 256)
    p.I(WGMAP_4x8)
    p.I(LANES)
    p.I(f"""
    s_cmp_eq_u32 s7, 4
    s_cbranch_scc1 L_{name}_helper
    """)
    ACC, ACCM, RES = 32, 84, 64
    V_X, V_W0, V_W1, V_TAB = 5, 7, 8, 9
    V_RA = 10
    p.I(f"""
    v_lshlrev_b32 v{V_X}, 4, v1
    s_lshl_b32 s8, s5, 3
    s_lshl_b32 s9, s7, 1
    s_add_u32 s8, s8, s9           ; mb0
    s_lshl_b32 s9, s8, 15          ; (mb0/2)*64KB
    v_add_u32 v6, s9, v{V_X}
    s_and_b32 s14, s3, {3 if ROT else 0}
    s_lshl_b32 s44, s14, 14
    v_lshrrev_b32 v14, 3, v1
    v_lshrrev_b32 v15, 1, v14
    v_and_b32 v15, 3, v15          ; f
    v_bfe_u32 v16, v1, 1, 2        ; pos>>1
    v_xor_b32 v16, v16, v15        ; unit
    v_and_b32 v17, 1, v1
    v_lshlrev_b32 v16, 5, v16
    v_lshl_add_u32 v16, v17, 4, v16
    v_lshl_add_u32 v14, s7, 4, v14
    v_lshl_add_u32 v{V_W0}, v14, 11, v16
    s_lshl_b32 s9, s6, 7
    v_add_u32 v{V_W0}, s9, v{V_W0} ; + cb*128
    v_add_u32 v{V_W1}, {8*2048-1024}, v{V_W0}
    s_lshl_b32 s45, s14, 19
    s_lshl_b32 s46, s7, 11
    s_waitcnt lgkmcnt(0)
    """)
    srd(p, 40, P_WO, 0, D * D * 2)
    srd(p, 36, P_WS, WS_O, S_TOK * D * 2)

    AX, AW, AM = 0, RX * 8, RX * 8 + 64

    def wdma(st):
        slot = st % S
        g0 = [f"s_add_u32 m0, s46, {slot*8192}"]
        if st:
            g0.append(f"s_add_u32 s45, s45, {64*2048}")
            g0.append(f"s_and_b32 s45, s45, {D*D*2-1:#x}")
        g0.append(f"buffer_load_dwordx4 v{V_W0}, s[40:43], s45 offen lds")
        return [g0, [f"buffer_load_dwordx4 v{V_W1}, s[40:43], s45 offen offset:1024 lds"]]

    def xload(t):
        a = AX + (t % RX) * 8
        o = (t & 1) * 2048
        g = [[f"buffer_load_dwordx4 a[{a}:{a+3}], v6, s[36:39], s44 offen offset:{o}"],
             [f"buffer_load_dwordx4 a[{a+4}:{a+7}], v6, s[36:39], s44 offen offset:{o+1024}"]]
        if t & 1:
            g[-1] += ["s_add_u32 s44, s44, 4096", "s_and_b32 s44, s44, 0xffff"]
        return g

    vs = []
    for st in range(KB // 2):
        rd, mf = [], []
        for sub in range(2):
            t = 2 * st + sub
            base = (st % S) * 8192 + sub * 4096
            aw = AW + (st & 1) * 32 + sub * 16
            am = AM + (st & 1) * 8 + sub * 4
            ax = AX + (t % RX) * 8
            for u in range(4):
                for hh in range(2):
                    rd.append([f"ds_read_b64_tr_b16 a[{aw+4*u+2*hh}:{aw+4*u+2*hh+1}], v{V_RA+u} offset:{base+hh*2048}"])
            rd.append([f"ds_read_b128 a[{am}:{am+3}], v{V_TAB} offset:{64*t}"])
            for u in range(4):
                for tb in range(2):
                    c = ACC + (tb * 4 + u) * 4
                    cin = "0" if t == 0 else f"v[{c}:{c+3}]"
                    mf.append(f"{MFMA} v[{c}:{c+3}], a[{aw+4*u}:{aw+4*u+3}], a[{ax+4*tb}:{ax+4*tb+3}], {cin}")
            for tb in range(2):
                c = ACCM + 4 * tb
                cin = "0" if t == 0 else f"v[{c}:{c+3}]"
                mf.append(f"{MFMA} v[{c}:{c+3}], a[{am}:{am+3}], a[{ax+4*tb}:{ax+4*tb+3}], {cin}")
        vs.append(VStep(mf, rd, [2 * st, 2 * st + 1], [st]))

    L = Loop(name, vs, KB // 2, SUB, S, RX, 8, wdma, xload, cnt_sreg=47, lead=1, tail_free=6, P0=K3_P0, RATE=K3_RATE)
    pstamp(p, 0)
    L.prologue_issue(p, upto=1)
    srd(p, 60, P_WS, WS_RM, 4096)
    srd(p, 48, P_X, 0, S_TOK * D * 2)
    srd(p, 56, P_WS, WS_MX, S_TOK * 4)
    p.I(f"""
    s_lshl_b32 s9, s7, 10
    s_add_u32 m0, s9, {TAB}
    s_lshl_b32 s10, s14, 9
    s_add_u32 s10, s10, s9
    v_add_u32 v21, s10, v{V_X}
    v_and_b32 v21, 0x7ff, v21
    s_and_b32 s9, s9, 0x800
    v_lshlrev_b32 v20, 11, v3
    buffer_load_dwordx4 v21, s[60:63], s9 offen lds
    v_lshl_add_u32 v20, v4, 3, v20
    s_lshl_b32 s9, s8, 15          ; mb0*16*2048
    s_lshl_b32 s10, s6, 7
    s_add_u32 s9, s9, s10          ; + cb*128
    s_add_u32 s10, s9, 32768
    v_lshlrev_b32 v21, 2, v3
    s_lshl_b32 s11, s8, 6
    """)
    L.extra_vm(("w", 0), 1)
    p.I("buffer_load_dword v80, v21, s[56:59], s11 offen")
    p.I("buffer_load_dword v82, v21, s[56:59], s11 offen offset:64")
    L.extra_vm("res", 2)
    IRES = KB // 2 - S + envint('K3_RESLAG', 1)
    for tb in range(2):
        for u in range(4):
            r = RES + (tb * 4 + u) * 2
            vs[IRES].extra.append([f"buffer_load_dwordx2 v[{r}:{r+1}], v20, s[48:51], s{9+tb} offen offset:{32*u}{INPOL}"])
    L.prologue_issue(p, upto=min(3, K3_P0))
    hop(p, name)
    L.prologue_issue(p)
    p.I(f"""
    v_lshrrev_b32 v14, 2, v3       ; r
    v_and_b32 v15, 3, v3           ; c
    v_lshl_add_u32 v16, v4, 2, v14 ; 4g+r
    v_lshrrev_b32 v17, 1, v16
    v_and_b32 v17, 3, v17          ; f
    v_lshlrev_b32 v16, 7, v16
    v_lshl_add_u32 v16, v15, 3, v16
    """)
    for u in range(4):
        p.I(f"""
        v_xor_b32 v18, {u}, v17
        v_lshl_add_u32 v{V_RA+u}, v18, 5, v16
        """)
    p.I(f"""
    v_min_u32 v14, 2, v15
    v_lshlrev_b32 v14, 11, v14
    v_lshl_add_u32 v14, v4, 4, v14
    v_add_u32 v{V_TAB}, {TAB}, v14
    v_mov_b32 v16, 0
    v_mov_b32 v17, 0
    v_lshlrev_b32 v14, 3, v0
    v_add_u32 v14, {ZERO}, v14
    ds_write_b64 v14, v[16:17]
    ds_write_b64 v14, v[16:17] offset:2048
    """)
    srd(p, 52, P_WS, WS_H, S_TOK * D * 2)
    srd(p, 56, P_WS, WS_ST, S_TOK * 64)
    srd(p, 60, P_WS, WS_MEAN, S_TOK * 4)
    p.I("s_waitcnt lgkmcnt(0)")
    L.start(p)
    L.body(p)
    p.I("s_waitcnt vmcnt(0)")
    p.I(f"""
    s_lshr_b32 s9, s8, 2
    s_lshl_b32 s9, s9, 17
    s_lshl_b32 s10, s6, 13
    s_add_u32 s9, s9, s10
    s_and_b32 s10, s8, 3
    s_lshl_b32 s10, s10, 10
    s_add_u32 s9, s9, s10
    s_add_u32 s10, s9, 4096
    v_add_f32 v24, v{ACCM}, v{ACCM+1}
    v_add_f32 v26, v{ACCM+4}, v{ACCM+5}
    v_add_f32 v24, v24, v80
    v_add_f32 v26, v26, v82
    """)
    for q in range(16):
        d = 24 + 2 * (q // 8)
        t = 10 + 2 * (q & 3)
        p.I(f"v_lshlrev_b32 v{t}, 16, v{RES+q}")
        p.I(f"v_and_b32 v{t+1}, 0xffff0000, v{RES+q}")
        p.I(f"v_pk_add_f32 v[{t}:{t+1}], v[{t}:{t+1}], v[{d}:{d+1}] op_sel_hi:[1,0] neg_lo:[0,1] neg_hi:[0,1]")
        p.I(f"v_pk_add_f32 v[{ACC+2*q}:{ACC+2*q+1}], v[{ACC+2*q}:{ACC+2*q+1}], v[{t}:{t+1}]")
    for q in range(16):
        p.I(f"v_cvt_pk_bf16_f32 v{RES+q}, v{ACC+2*q}, v{ACC+2*q+1}")
        if q % 4 == 3:
            tb, j = divmod(q // 4, 2)
            r = RES + (tb * 2 + j) * 4
            p.I(f"buffer_store_dwordx4 v[{r}:{r+3}], v{V_X}, s[52:55], s{9+j} offen offset:{1024*tb}{STPOL}")
    for q in range(16):
        p.I(f"v_lshlrev_b32 v{ACC+2*q}, 16, v{RES+q}")
        p.I(f"v_and_b32 v{ACC+2*q+1}, 0xffff0000, v{RES+q}")
    for tb in range(2):
        b = ACC + tb * 16
        a = 20 + 2 * tb
        p.I(f"v_pk_mul_f32 v[{a}:{a+1}], v[{b}:{b+1}], v[{b}:{b+1}]")
        for i in range(2, 16, 2):
            p.I(f"v_pk_fma_f32 v[{a}:{a+1}], v[{b+i}:{b+i+1}], v[{b+i}:{b+i+1}], v[{a}:{a+1}]")
    p.I("""
    v_add_f32 v20, v20, v21
    v_add_f32 v21, v22, v23
    """)
    xgroup_reduce_multi(p, [20, 21], [22, 23], "v_add_f32")
    p.I(f"""
    v_lshlrev_b32 v22, 6, v3       ; m*64
    s_lshl_b32 s9, s8, 10          ; mb0*16*64
    s_lshl_b32 s10, s6, 2
    s_add_u32 s9, s9, s10
    v_lshlrev_b32 v23, 2, v3
    v_cmp_gt_u32 vcc, 16, v1
    s_and_saveexec_b64 s[12:13], vcc
    buffer_store_dword v20, v22, s[56:59], s9 offen{STPOL}
    buffer_store_dword v21, v22, s[56:59], s9 offen offset:1024{STPOL}
    s_cmp_lg_u32 s6, 0
    s_cbranch_scc1 L_{name}_nomean
    buffer_store_dword v24, v23, s[60:63], s11 offen{STPOL}
    buffer_store_dword v26, v23, s[60:63], s11 offen offset:64{STPOL}
    """)
    p.label(f"L_{name}_nomean")
    stamp_out(p, 3, 4)
    p.I("s_endpgm")
    p.label(f"L_{name}_helper")
    p.I(f"""
    v_lshlrev_b32 v5, 7, v1
    v_mov_b32 v6, 0x7fffffff
    v_cmp_gt_u32 vcc, 56, v1
    s_mul_i32 s8, s2, 7168
    s_add_u32 s8, s8, {512*7168}
    s_add_u32 s9, s8, {256*7168}
    v_cndmask_b32 v5, v6, v5, vcc
    s_waitcnt lgkmcnt(0)
    """)
    srd(p, 36, P_WG, 0, D * F * 2)
    srd(p, 40, P_WU, 0, D * F * 2)
    seq = [(36, 8), (40, 8), (36, 9), (40, 9)][:PF3]
    for i in range(L.nbar):
        p.I("s_barrier")
        if i == PF3T:
            for j, (sr_, so) in enumerate(seq):
                p.I(f"buffer_load_dword v{8+j}, v5, s[{sr_}:{sr_+3}], s{so} offen")
    tail(p, name)
    return name, p, kernel_desc(name, 96 + RX * 8 + 80, 96), (256, 320, ZERO + 4096)


def gen_k5():
    name = "k5_down_kernel"
    KBT = F // 32
    KB = KBT // 2
    SUB, S = 2, K5_S
    RX = S * SUB
    U = S * SUB
    R = K5_R
    STG = 16384
    p = Prog()
    head(p, name, 256)
    p.I("""
    s_and_b32 s3, s2, 7            ; xcd
    s_lshr_b32 s4, s2, 3           ; idx 0..31
    s_and_b32 s5, s3, 3
    s_lshl_b32 s5, s5, 2
    s_and_b32 s6, s4, 3
    s_add_u32 s5, s5, s6
    s_lshr_b32 s6, s4, 2
    s_lshr_b32 s12, s3, 2          ; kh
    """)
    p.I(LANES)
    ACC, RES = 32, 96
    V_X = 5
    V_W = 7
    V_RA = 12
    p.I(f"""
    v_lshlrev_b32 v{V_X}, 4, v1
    s_lshl_b32 s8, s5, 3
    s_lshl_b32 s9, s7, 1
    s_add_u32 s8, s8, s9           ; mb0
    s_mul_i32 s44, s8, {KBT*1024}
    s_mul_i32 s9, s12, {KB*2048}
    s_add_u32 s44, s44, s9
    v_add_u32 v6, s44, v{V_X}
    s_and_b32 s14, s3, {3 if ROT else 0}
    s_mul_i32 s44, s14, {7*4096}
    v_bfe_u32 v28, v1, 1, 3        ; pos>>1
    v_xor_b32 v28, v28, v4         ; ^ (l>>4)      (j even)
    v_xor_b32 v29, 4, v28          ;               (j odd)
    v_and_b32 v30, 1, v1
    v_lshlrev_b32 v30, 4, v30
    v_lshl_add_u32 v31, s7, 4, v4  ; row 16w + (l>>4)
    v_lshl_add_u32 v30, v31, 11, v30
    s_lshl_b32 s45, s6, 8          ; cb*256
    s_mul_i32 s9, s12, {KB*32*2048}
    s_add_u32 s45, s45, s9
    v_add_u32 v30, s45, v30
    v_lshl_add_u32 v{V_W}, v28, 5, v30
    v_lshl_add_u32 v{V_W+1}, v29, 5, v30
    v_add_u32 v{V_W+2}, {8*2048-2048}, v{V_W}
    v_add_u32 v{V_W+3}, {12*2048-3072}, v{V_W+1}
    v_add_u32 v{V_W+1}, {4*2048-1024}, v{V_W+1}
    s_mul_i32 s45, s14, {7*64*2048}
    s_sub_u32 s45, s45, {64*2048}
    s_lshl_b32 s46, s7, 12
    s_waitcnt lgkmcnt(0)
    """)
    srd(p, 40, P_WD, 0, F * D * 2)
    srd(p, 36, P_WS, WS_ACT, S_TOK * F * 2)

    AX, AW = 0, 128

    def wdma(st):
        slot = st % S
        g = [[f"s_add_u32 m0, s46, {slot*STG}", f"s_add_u32 s45, s45, {64*2048}",
              f"s_cmp_lg_u32 s45, {FAKE5*64*2048}", "s_cselect_b32 s45, s45, 0",
              f"buffer_load_dwordx4 v{V_W}, s[40:43], s45 offen lds"]]
        for j in range(1, 4):
            g.append([f"buffer_load_dwordx4 v{V_W+j}, s[40:43], s45 offen offset:{1024*j} lds"])
        return g

    def xload(t):
        a = AX + (t % RX) * 8
        o = (t & 1) * 2048
        g = [[f"buffer_load_dwordx4 a[{a}:{a+3}], v6, s[36:39], s44 offen offset:{o}"],
             [f"buffer_load_dwordx4 a[{a+4}:{a+7}], v6, s[36:39], s44 offen offset:{o+1024}"]]
        if t & 1:
            g[-1] += ["s_add_u32 s44, s44, 4096", f"s_cmp_lg_u32 s44, {FAKE5*4096}", "s_cselect_b32 s44, s44, 0"]
        return g

    def rd(t, u, areg):
        st, sub = divmod(t, SUB)
        slot = st % S
        hi = 8 if slot >= 4 else 0
        base = (slot % 4) * STG + sub * 8192
        return [[f"ds_read_b64_tr_b16 a[{areg+2*hh}:{areg+2*hh+1}], v{V_RA+hi+u} offset:{base+hh*4096}"] for hh in range(2)]

    def mf(t, u, areg):
        ax = AX + (t % RX) * 8
        out = []
        for tb in range(2):
            c = ACC + (tb * 8 + u) * 4
            cin = "0" if (t == 0 and u >= 4) else f"v[{c}:{c+3}]"
            out.append(f"{MFMA} v[{c}:{c+3}], a[{areg}:{areg+3}], a[{ax+4*tb}:{ax+4*tb+3}], {cin}")
        return out

    send = []
    for tb in range(2):
        for u in range(4):
            c = ACC + (tb * 8 + 4 + u) * 4
            send.append([f"buffer_store_dwordx4 v[{c}:{c+3}], v{V_X}, s[56:59], s{9+tb} offen offset:{1024*u} sc0 sc1"])
    vs = []
    items = []
    if K5_MODE == 1:
        for i in range(KB + R):
            it = []
            if i < KB:
                it.append((i, 4))
            if i >= R:
                it.append((i - R, 0))
            items.append(it)
    else:
        items = [[(t, 4), (t, 0)] for t in range(KB - R)]
        items += [[(t, 4)] for t in range(KB - R, KB)] + [[(t, 0)] for t in range(KB - R, KB)]
    merged = []
    for it in items:
        if merged and len(merged[-1]) == 1 and len(it) == 1:
            merged[-1] = merged[-1] + it
        else:
            merged.append(list(it))
    i_own = None
    for it in merged:
        aw = AW + (len(vs) & 1) * 32
        r_, m_ = [], []
        f = 0
        for t, half in it:
            for uu in range(4):
                r_ += rd(t, half + uu, aw + 4 * f)
                m_ += mf(t, half + uu, aw + 4 * f)
                f += 1
        if i_own is None and all(h == 0 for _, h in it):
            i_own = len(vs)
        vs.append(VStep(m_, r_, sorted({t for t, _ in it}), sorted({t // 2 for t, _ in it})))
    if R:
        vs[i_own].extra = send
        fl = min(i_own + K5_FLAGLAG, len(vs) - 1)
        vs[fl].post = ["s_waitcnt vmcnt(0)", "buffer_store_dword v29, v28, s[60:63], s15 offen sc0 sc1"]

    L = Loop(name, vs, KB // 2, SUB, S, RX, U, wdma, xload, cnt_sreg=47, lead=1, tail_free=5, P0=K5_P0, RATE=K5_RATE)
    pstamp(p, 0)
    L.prologue_issue(p, upto=1)
    srd(p, 48, P_WS, WS_H, S_TOK * D * 2)
    srd(p, 56, P_WS, WS_MEAN, S_TOK * 4)
    p.I(f"""
    s_lshr_b32 s9, s8, 2
    s_lshl_b32 s9, s9, 17
    s_lshl_b32 s10, s6, 14
    s_add_u32 s9, s9, s10
    s_lshl_b32 s10, s12, 13
    s_add_u32 s9, s9, s10
    s_and_b32 s10, s8, 3
    s_lshl_b32 s10, s10, 10
    s_add_u32 s9, s9, s10
    s_add_u32 s10, s9, 4096
    v_lshlrev_b32 v28, 2, v3
    s_lshl_b32 s11, s8, 6
    """)
    for tb in range(2):
        for j in range(2):
            r = RES + (tb * 2 + j) * 4
            p.I(f"buffer_load_dwordx4 v[{r}:{r+3}], v{V_X}, s[48:51], s{9+j} offen offset:{1024*tb}")
    p.I("buffer_load_dword v112, v28, s[56:59], s11 offen")
    p.I("buffer_load_dword v114, v28, s[56:59], s11 offen offset:64")
    L.extra_vm("res", 6)
    L.prologue_issue(p, upto=min(3, K5_P0))
    hop(p, name)
    L.prologue_issue(p)
    p.I(f"""
    v_lshrrev_b32 v28, 2, v3       ; r
    v_and_b32 v29, 3, v3           ; c
    v_lshl_add_u32 v30, v4, 2, v28 ; 4g+r
    v_and_b32 v31, 7, v30          ; f
    s_lshl_b32 s9, s12, 2
    v_xor_b32 v31, s9, v31
    v_lshlrev_b32 v30, 8, v30
    v_lshl_add_u32 v30, v29, 3, v30
    v_lshl_add_u32 v30, v31, 5, v30
    """)
    for u in range(8):
        p.I(f"""
        v_xor_b32 v{V_RA+u}, {32*u}, v30
        v_add_u32 v{V_RA+8+u}, {4*STG}, v{V_RA+u}
        """)
    srd(p, 52, P_OUT, 0, S_TOK * D * 2)
    srd(p, 56, P_WS, WS_EX, 256 * 32768)
    srd(p, 60, P_WS, WS_FLAG, 1024 * 128)
    p.I(f"""
    s_lshl_b32 s9, s2, 15
    s_lshl_b32 s10, s7, 13
    s_add_u32 s9, s9, s10
    s_add_u32 s10, s9, 4096
    s_xor_b32 s13, s9, {4<<15}
    s_add_u32 s14, s13, 4096
    s_lshl_b32 s15, s2, 9
    s_lshl_b32 s3, s7, 7
    s_add_u32 s15, s15, s3
    s_xor_b32 s3, s15, {4<<9}
    v_mov_b32 v28, 0
    v_mov_b32 v29, 1
    v_lshlrev_b32 v30, 11, v3      ; m*2048
    v_and_b32 v31, 1, v4
    v_lshl_add_u32 v30, v31, 5, v30
    v_lshrrev_b32 v31, 1, v4
    v_lshl_add_u32 v30, v31, 4, v30   ; (g>>1)*16B
    """)
    p.I(f"s_waitcnt vmcnt({min(63, L.wait_for('res'))})")
    for tb in range(2):
        for q in range(8):
            c = ACC + tb * 32 + 2 * q
            p.I(f"v_lshlrev_b32 v{c}, 16, v{RES+tb*8+q}")
            p.I(f"v_and_b32 v{c+1}, 0xffff0000, v{RES+tb*8+q}")
        for q in range(8):
            c = ACC + tb * 32 + 2 * q
            mx = 112 + 2 * tb
            p.I(f"v_pk_add_f32 v[{c}:{c+1}], v[{c}:{c+1}], v[{mx}:{mx+1}] op_sel_hi:[1,0]")
    L.start(p)
    L.body(p)
    if not R:
        for g in send:
            p.I("\n".join(g))
        p.I("s_waitcnt vmcnt(0)\nbuffer_store_dword v29, v28, s[60:63], s15 offen sc0 sc1")
    p.label(f"L_{name}_poll")
    p.I(f"""
    buffer_load_dword v31, v28, s[60:63], s3 offen sc0 sc1
    s_waitcnt vmcnt(0)
    v_readfirstlane_b32 s4, v31
    s_cmp_eq_u32 s4, 1
    s_cbranch_scc0 L_{name}_poll
    """)
    for tb in range(2):
        for u in range(4):
            c = ACC + (tb * 8 + 4 + u) * 4
            p.I(f"buffer_load_dwordx4 v[{c}:{c+3}], v{V_X}, s[56:59], s{13+tb} offen offset:{1024*u} sc0 sc1")
    p.I(f"""
    s_lshl_b32 s9, s8, 15
    s_lshl_b32 s10, s6, 8
    s_add_u32 s9, s9, s10
    s_lshl_b32 s10, s12, 7
    s_add_u32 s9, s9, s10
    s_add_u32 s10, s9, 32768
    """)
    for tb in range(2):
        for j in range(2):
            p.I(f"s_waitcnt vmcnt({6 - 2*(tb*2+j) + (tb*2+j)})")
            r = RES + (tb * 2 + j) * 4
            for uu in range(2):
                u = 2 * j + uu
                c = ACC + (tb * 8 + u) * 4
                o = ACC + (tb * 8 + 4 + u) * 4
                p.I(f"v_pk_add_f32 v[{c}:{c+1}], v[{c}:{c+1}], v[{o}:{o+1}]")
                p.I(f"v_pk_add_f32 v[{c+2}:{c+3}], v[{c+2}:{c+3}], v[{o+2}:{o+3}]")
                p.I(f"v_cvt_pk_bf16_f32 v{r+2*uu}, v{c}, v{c+1}")
                p.I(f"v_cvt_pk_bf16_f32 v{r+2*uu+1}, v{c+2}, v{c+3}")
            p.I(f"v_permlane16_swap_b32 v{r}, v{r+2}")
            p.I(f"v_permlane16_swap_b32 v{r+1}, v{r+3}")
            p.I(f"buffer_store_dwordx4 v[{r}:{r+3}], v30, s[52:55], s{9+tb} offen offset:{64*j}")
    stamp_out(p, 5, 4)
    tail(p, name)
    return name, p, kernel_desc(name, 256 + 192, 256), (256, 256, S * STG)


def gen_k4():
    name = "k4_ffn_kernel"
    KB = D // 32
    SUB, S, RX, U = 2, 4, 8, 8
    STG = 28672
    p = Prog()
    head(p, name, 256)
    p.I("""
    s_and_b32 s3, s2, 7            ; xcd
    s_lshr_b32 s4, s2, 3           ; idx 0..31
    s_and_b32 s5, s3, 3
    s_lshl_b32 s5, s5, 1
    s_and_b32 s6, s4, 1
    s_add_u32 s5, s5, s6
    s_lshr_b32 s6, s3, 2
    s_lshl_b32 s6, s6, 4
    s_lshr_b32 s7, s4, 1
    s_add_u32 s6, s6, s7
    """)
    p.I(LANES)
    V_X = 224
    V_W = 225
    V_RA = 232
    V_PF = 234
    V_ST = 235
    V_M = 236
    V_T = 240
    p.I(f"""
    v_lshlrev_b32 v{V_X}, 4, v1
    s_lshl_b32 s8, s5, 4
    s_lshl_b32 s9, s7, 2
    s_add_u32 s8, s8, s9
    s_lshl_b32 s9, s8, 15          ; (mb0/4)*128KB
    v_add_u32 v237, s9, v{V_X}
    s_and_b32 s3, s3, {3 if ROT else 0}
    s_lshl_b32 s44, s3, 15
    s_and_b32 s10, s6, 1
    s_and_b32 s11, s7, 1
    s_mul_i32 s13, s6, 224
    s_mul_i32 s12, s11, {32*F*2}
    s_add_u32 s13, s13, s12
    s_movk_i32 s14, {F*2}
    s_mov_b32 s15, 0x4925          ; ceil(2^18/14)
    """)
    def lines(j):
        t = 8 + 4 * j
        return f"""
        v_add_u32 v{t}, {64*j}, v1
        v_mul_u32_u24 v{t+1}, s15, v{t}
        v_lshrrev_b32 v{t+1}, 18, v{t+1}
        v_mul_u32_u24 v{t+2}, 14, v{t+1}
        v_sub_u32 v{t+2}, v{t}, v{t+2}
        v_lshrrev_b32 v{t+3}, 1, v{t+2}
        v_add_u32 v{t+3}, s10, v{t+3}
        v_cmp_eq_u32 s[{48+2*j}:{49+2*j}], 7, v{t+3}
        v_and_b32 v{t+2}, 1, v{t+2}
        v_mul_u32_u24 v{t+1}, s14, v{t+1}
        v_cndmask_b32 v{t+3}, v{t+3}, 0, s[{48+2*j}:{49+2*j}]
        v_lshlrev_b32 v{t+3}, 5, v{t+3}
        v_lshl_add_u32 v{t+3}, v{t+2}, 4, v{t+3}
        v_add3_u32 v{V_W+j}, v{t+1}, v{t+3}, s13
        v_subrev_u32 v{V_W+j}, {1024*(j%4)}, v{V_W+j}
        """.strip().split("\n")
    ls = [lines(j) for j in range(7)]
    for i in range(len(ls[0])):
        for j in range(7):
            if "v_subrev_u32" in ls[j][i] and j % 4 == 0:
                continue
            p.I(ls[j][i])
    p.I(f"""
    s_mul_i32 s45, s3, {256*F*2}
    s_sub_u32 s45, s45, {64*F*2}
    s_lshr_b32 s12, s7, 1
    s_mul_i32 s46, s7, 7168
    s_waitcnt lgkmcnt(0)
    s_cmp_eq_u32 s12, 1
    s_cselect_b32 s40, s{P_WU}, s{P_WG}
    s_cselect_b32 s41, s{P_WU+1}, s{P_WG+1}
    s_mov_b32 s42, {D*F*2}
    s_mov_b32 s43, 0x00020000
    """)
    srd(p, 36, P_WS, WS_H, S_TOK * D * 2)

    AX, AW = 0, 128

    def wdma(st):
        slot = st % S
        g = []
        for j in range(7):
            pre = []
            if j == 0:
                pre = [f"s_add_u32 m0, s46, {slot*STG}", f"s_add_u32 s45, s45, {64*F*2}",
                       f"s_cmp_lg_u32 s45, {D*F*2}", "s_cselect_b32 s45, s45, 0"]
            if j == 4:
                g[-1].append(f"s_add_u32 m0, s46, {slot*STG+4096}")
            g.append(pre + [f"buffer_load_dwordx4 v{V_W+j}, s[40:43], s45 offen offset:{1024*(j%4)} lds"])
        return g

    def xload(t):
        a = AX + (t % RX) * 16
        g = [[f"buffer_load_dwordx4 a[{a+4*j}:{a+4*j+3}], v237, s[36:39], s44 offen offset:{1024*j}"] for j in range(4)]
        g[-1] += ["s_add_u32 s44, s44, 4096", "s_and_b32 s44, s44, 0x1ffff"]
        return g

    vs = []
    for t in range(KB):
        st, sub = divmod(t, 2)
        slot = st % S
        ra = V_RA + (slot >= 2)
        base = (slot % 2) * STG + sub * 7168
        a = AW + (t & 1) * 56
        ax = AX + (t % RX) * 16
        rd = []
        for s in range(14):
            mat, sl = divmod(s, 7)
            for hh in range(2):
                off = base + mat * 14336 + hh * 3584 + sl * 32
                rd.append([f"ds_read_b64_tr_b16 a[{a+4*s+2*hh}:{a+4*s+2*hh+1}], v{ra} offset:{off}"])
        order = [(s, tb) for s in range(14) for tb in range(4)]
        if t == KB - 1:
            order = [(s, tb) for tb in range(4) for s in range(14)]
        mf = []
        for s, tb in order:
            c = tb * 56 + s * 4
            cin = "0" if t == 0 else f"v[{c}:{c+3}]"
            mf.append(f"{MFMA} v[{c}:{c+3}], a[{a+4*s}:{a+4*s+3}], a[{ax+4*tb}:{ax+4*tb+3}], {cin}")
        extra = []
        if PF4 == 2 and t == KB - 7:
            extra.append([f"buffer_load_dword v239, v{V_PF}, s[52:55], s12 offen"])
        if PF4 == 1 and t < 28:
            extra.append([f"buffer_load_dword v239, v{V_PF}, s[52:55], s12 offen",
                          f"s_add_u32 s12, s12, 256"])
        if t == KB - 8:
            for j in range(4):
                extra.append([f"buffer_load_dwordx4 v[{V_T+4*j}:{V_T+4*j+3}], v{V_ST}, s[48:51], s9 offen offset:{16*j}"])
        vs.append(VStep(mf, rd, [t], [st], extra=extra))

    L = Loop(name, vs, KB // 2, SUB, S, RX, U, wdma, xload, cnt_sreg=47, lead=1, tail_free=8, P0=K4_P0, RATE=K4_RATE)
    pstamp(p, 0)
    L.prologue_issue(p, upto=1)
    hop(p, name)
    L.prologue_issue(p)
    p.I(f"""
    v_lshrrev_b32 v8, 2, v3
    v_and_b32 v9, 3, v3
    v_lshl_add_u32 v8, v4, 2, v8
    v_mul_u32_u24 v8, 224, v8
    v_lshl_add_u32 v{V_RA}, v9, 3, v8
    v_add_u32 v{V_RA+1}, {2*STG}, v{V_RA}
    v_lshlrev_b32 v{V_PF}, 7, v1
    v_mov_b32 v8, 0x7fffffff
    v_cmp_gt_u32 vcc, {2 if PF4 == 1 else 56}, v1
    v_lshlrev_b32 v{V_ST}, 6, v1
    v_lshlrev_b32 v{V_M}, 2, v3             ; m*4
    v_cndmask_b32 v{V_PF}, v8, v{V_PF}, vcc
    s_lshl_b32 s9, s8, 10                   ; mb0*16*64
    s_lshl_b32 s12, s2, 2
    s_add_u32 s12, s12, s7
    s_mul_i32 s12, s12, {28*256}
    """)
    srd(p, 48, P_WS, WS_ST, S_TOK * 64)
    srd(p, 52, P_WD, 0, F * D * 2)
    srd(p, 56, P_WS, WS_ACT, S_TOK * F * 2)
    L.start(p)
    L.body(p)
    p.I(f"s_waitcnt vmcnt({L.wait_for(('e', KB - 8))})")
    C1 = -2.0 * 1.4426950408889634 * 0.7978845608028654
    C2 = C1 * 0.044715
    T = V_T
    for j in range(1, 8):
        p.I(f"v_pk_add_f32 v[{T}:{T+1}], v[{T}:{T+1}], v[{T+2*j}:{T+2*j+1}]")
    p.I(f"""
    v_add_f32 v{T}, v{T}, v{T+1}
    v_mov_b32 v{T+1}, {f2u(1e-5):#x}
    v_fmac_f32 v{T+1}, 0x3a800000, v{T}       ; var+eps
    """)
    VR = 226
    for tb in range(4):
        p.I(f"ds_bpermute_b32 v{VR+2*tb}, v{V_M}, v{T+1} offset:{64*tb}")
    p.I(f"""
    s_mul_i32 s9, s6, 7
    s_add_u32 s12, s9, s10
    s_lshr_b32 s12, s12, 1
    s_add_u32 s13, s9, 6
    s_cmp_eq_u32 s10, 1
    s_cselect_b32 s13, s9, s13
    s_lshr_b32 s13, s13, 1
    s_mul_i32 s14, s8, {112*1024}
    s_lshl_b32 s12, s12, 11
    s_lshl_b32 s13, s13, 11
    s_add_u32 s12, s12, s14
    s_add_u32 s13, s13, s14
    s_lshl_b32 s14, s10, 3
    s_add_u32 s13, s13, s14
    s_add_u32 s11, s12, 4096
    s_mov_b32 s14, {f2u(C1):#x}
    s_mov_b32 s15, {f2u(C2):#x}
    s_waitcnt lgkmcnt(0)
    """)
    c1, c2 = T, T + 2
    for tb in range(4):
        vrr = VR + 2 * tb
        p.I(f"""
        v_rsq_f32 v{T+4}, v{vrr}
        v_rcp_f32 v{T+5}, v{vrr}
        v_mul_f32 v{c1}, s14, v{T+4}
        v_mul_f32 v{c2}, s15, v{T+4}
        v_mul_f32 v{c2}, v{c2}, v{T+5}
        """)
        o = 1024 * (tb & 1)
        for sl in range(7):
            g = tb * 56 + sl * 4
            u = tb * 56 + (7 + sl) * 4
            E = T + 8 + 4 * (sl & 1)
            for r in (0, 2):
                p.I(f"v_pk_mul_f32 v[{E+r}:{E+r+1}], v[{g+r}:{g+r+1}], v[{g+r}:{g+r+1}]")
            for r in (0, 2):
                p.I(f"v_pk_fma_f32 v[{E+r}:{E+r+1}], v[{E+r}:{E+r+1}], v[{c2}:{c2+1}], v[{c1}:{c1+1}] op_sel_hi:[1,0,0]")
            for r in (0, 2):
                p.I(f"v_pk_mul_f32 v[{E+r}:{E+r+1}], v[{E+r}:{E+r+1}], v[{g+r}:{g+r+1}]")
            for r in range(4):
                p.I(f"v_exp_f32 v{E+r}, v{E+r}")
            for r in (0, 2):
                p.I(f"v_pk_mul_f32 v[{u+r}:{u+r+1}], v[{u+r}:{u+r+1}], v[{g+r}:{g+r+1}]")
            for r in (0, 2):
                p.I(f"v_pk_fma_f32 v[{E+r}:{E+r+1}], v[{E+r}:{E+r+1}], v[{vrr}:{vrr+1}], v[{vrr}:{vrr+1}] op_sel_hi:[1,0,0]")
            for r in range(4):
                p.I(f"v_rcp_f32 v{E+r}, v{E+r}")
            for r in (0, 2):
                p.I(f"v_pk_mul_f32 v[{u+r}:{u+r+1}], v[{u+r}:{u+r+1}], v[{E+r}:{E+r+1}]")
            dq = tb * 56 + sl * 2
            p.I(f"v_cvt_pk_bf16_f32 v{dq}, v{u}, v{u+1}")
            p.I(f"v_cvt_pk_bf16_f32 v{dq+1}, v{u+2}, v{u+3}")
            if sl in (1, 3, 5):
                d0 = tb * 56 + (sl - 1) * 2
                so, oo = ("s12", o + 2048 * (sl // 2)) if sl < 5 else ("s11", o)
                p.I(f"buffer_store_dwordx4 v[{d0}:{d0+3}], v{V_X}, s[56:59], {so} offen offset:{oo}{STPOL}")
            if sl == 6:
                p.I(f"buffer_store_dwordx2 v[{dq}:{dq+1}], v{V_X}, s[56:59], s13 offen offset:{o}{STPOL}")
        if tb == 1:
            p.I(f"s_add_u32 s12, s12, {112*2048}")
            p.I(f"s_add_u32 s11, s11, {112*2048}")
            p.I(f"s_add_u32 s13, s13, {112*2048}")
    stamp_out(p, 4, 4)
    tail(p, name)
    return name, p, kernel_desc(name, 256 + 240, 256), (256, 256, S * STG)


def gen_k2():
    name = "k2_qkv_kernel"
    KB = D // 32
    SUB, S, RX, U = 2, 4, 8, 8
    STG = 24576
    HALO = S * STG
    p = Prog()
    head(p, name, 256)
    p.I(WGMAP_4x8)
    p.I(LANES)
    V_X = 5
    V_W = 7
    V_RA = 10
    V_HA = 18
    V_PF = 19
    ACC = 32
    ACCH = 128
    p.I(f"""
    v_lshlrev_b32 v{V_X}, 4, v1
    s_lshl_b32 s8, s5, 3
    s_lshl_b32 s9, s7, 1
    s_add_u32 s8, s8, s9
    s_lshl_b32 s9, s8, 15
    v_add_u32 v6, s9, v{V_X}
    s_and_b32 s14, s3, {3 if ROT else 0}
    s_lshl_b32 s44, s14, 14
    v_lshrrev_b32 v20, 3, v1        ; r8
    v_bfe_u32 v21, v1, 4, 1         ; (r8>>1)&1
    s_and_b32 s9, s7, 1
    s_lshl_b32 s9, s9, 1
    v_or_b32 v21, s9, v21           ; f
    v_bfe_u32 v22, v1, 1, 2
    v_xor_b32 v22, v22, v21         ; unit
    v_and_b32 v23, 1, v1
    v_lshlrev_b32 v22, 5, v22
    v_lshl_add_u32 v22, v23, 4, v22
    v_lshl_add_u32 v20, s7, 3, v20  ; row
    s_movk_i32 s9, 6144
    v_mul_u32_u24 v20, s9, v20
    s_lshl_b32 s9, s6, 7            ; hp*128
    v_add3_u32 v{V_W}, v20, v22, s9
    v_add_u32 v{V_W+1}, 1024, v{V_W}
    v_add_u32 v{V_W+2}, 2048, v{V_W}
    s_mul_i32 s45, s14, {256*6144}
    s_sub_u32 s45, s45, {32*6144}
    s_mul_i32 s46, s7, 3072
    s_waitcnt lgkmcnt(0)
    """)
    srd(p, 40, P_WQKV, 0, D * 3 * D * 2)
    srd(p, 36, P_WS, WS_XN, S_TOK * D * 2)

    AX, AW, AH = 0, 64, 160

    def accr(tb, part, u):
        return ACC + ((tb * 3 + part) * 4 + u) * 4

    def wdma(st):
        slot = st % S
        g = []
        for sub in range(2):
            for part in range(3):
                pre = []
                if part == 0:
                    pre = [f"s_add_u32 m0, s46, {slot*STG + sub*12288}", f"s_add_u32 s45, s45, {32*6144}"]
                    if sub == 0:
                        pre += [f"s_cmp_lg_u32 s45, {D*6144}", "s_cselect_b32 s45, s45, 0"]
                g.append(pre + [f"buffer_load_dwordx4 v{V_W+part}, s[40:43], s45 offen offset:{1024*part} lds"])
        return g

    def xload(t):
        a = AX + (t % RX) * 8
        o = (t & 1) * 2048
        g = [[f"buffer_load_dwordx4 a[{a}:{a+3}], v6, s[36:39], s44 offen offset:{o}"],
             [f"buffer_load_dwordx4 a[{a+4}:{a+7}], v6, s[36:39], s44 offen offset:{o+1024}"]]
        if t & 1:
            g[-1] += ["s_add_u32 s44, s44, 4096", "s_and_b32 s44, s44, 0xffff"]
        return g

    vs = []
    for t in range(KB):
        st, sub = divmod(t, 2)
        slot = st % S
        hi = 4 if slot >= 2 else 0
        base = (slot % 2) * STG + sub * 12288
        aw = AW + (t & 1) * 48
        ah = AH + (t & 1) * 4
        ax = AX + (t % RX) * 8
        rd = []
        for part in range(3):
            for u in range(4):
                for hh in range(2):
                    r = aw + (part * 4 + u) * 4 + 2 * hh
                    rd.append([f"ds_read_b64_tr_b16 a[{r}:{r+1}], v{V_RA+hi+u} offset:{base+part*1024+hh*512}"])
        rd.append([f"ds_read_b128 a[{ah}:{ah+3}], v{V_HA} offset:{(t%U)*1024}"] +
                  ([f"v_add_u32 v{V_HA}, {U*1024}, v{V_HA}"] if t % U == U - 1 else []))
        first = t == 0
        mf = []
        for part in range(3):
            for u in range(4):
                w = f"a[{aw+(part*4+u)*4}:{aw+(part*4+u)*4+3}]"
                for tb in range(2):
                    c = accr(tb, part, u)
                    x = f"a[{ax+4*tb}:{ax+4*tb+3}]"
                    cc = f"v[{c}:{c+3}]"
                    a_, b_ = (w, x) if part < 2 else (x, w)
                    mf.append(f"{MFMA} {cc}, {a_}, {b_}, {'0' if first else cc}")
        for part in (1, 2):
            w = f"a[{aw+(part*4)*4}:{aw+(part*4)*4+3}]"
            x = f"a[{ah}:{ah+3}]"
            cc = f"v[{ACCH+4*(part-1)}:{ACCH+4*(part-1)+3}]"
            a_, b_ = (w, x) if part < 2 else (x, w)
            mf.append(f"{MFMA} {cc}, {a_}, {b_}, {'0' if first else cc}")
        extra = []
        if PF2T <= t < PF2T + PF2:
            extra.append([f"buffer_load_dword v{26+t-PF2T}, v{V_PF}, s[48:51], s12 offen",
                          f"s_add_u32 s12, s12, {512*7168}"])
        vs.append(VStep(mf, rd, [t], [st], extra=extra))

    L = Loop(name, vs, KB // 2, SUB, S, RX, U, wdma, xload, cnt_sreg=47, lead=1, tail_free=4, P0=K2_P0, RATE=K2_RATE)
    pstamp(p, 0)
    L.prologue_issue(p, upto=1)
    p.I(f"""
    s_lshl_b32 s9, s5, 3
    s_sub_u32 s9, s9, 2
    s_max_i32 s9, s9, 0
    s_lshl_b32 s9, s9, 15           ; (mb>>1)*64KB
    s_add_u32 s9, s9, 1024          ; (mb&1)*1024
    s_lshl_b32 s10, s7, 11
    s_add_u32 s9, s9, s10           ; + w*2048
    v_add_u32 v25, s9, v{V_X}
    s_lshl_b32 s9, s14, 14
    s_lshl_b32 s10, s7, 10
    s_add_u32 s10, s10, {HALO}
    """)
    def halo_dma(j):
        p.I(f"s_add_u32 m0, s10, {4096*j}")
        if j:
            p.I("s_add_u32 s9, s9, 8192")
            p.I("s_and_b32 s9, s9, 0xffff")
        p.I(f"buffer_load_dwordx4 v25, s[36:39], s9 offen lds")
        L.extra_vm(("w", max(0, 2 * j - 1)), 1)
    halo_dma(0)
    halo_dma(1)
    L.prologue_issue(p, upto=min(2, K2_P0))
    hop(p, name)
    for j in range(2, 8):
        halo_dma(j)
    L.prologue_issue(p)
    p.I(f"""
    v_add_u32 v{V_HA}, {HALO}, v{V_X}
    v_lshrrev_b32 v20, 2, v3        ; r
    v_and_b32 v21, 3, v3            ; c
    v_lshrrev_b32 v23, 1, v20
    v_and_b32 v24, 1, v4
    v_lshl_or_b32 v23, v24, 1, v23  ; f
    v_xor_b32 v23, s7, v23          ; f ^ w
    v_mul_u32_u24 v22, 3072, v4
    v_lshl_add_u32 v22, v20, 7, v22
    v_lshl_add_u32 v22, v21, 3, v22
    v_lshl_add_u32 v22, v23, 5, v22
    """)
    for u in range(4):
        p.I(f"""
        v_xor_b32 v{V_RA+u}, {32*u}, v22
        v_add_u32 v{V_RA+4+u}, {2*STG}, v{V_RA+u}
        """)
    p.I(f"""
    v_lshlrev_b32 v{V_PF}, 7, v1
    v_mov_b32 v20, 0x7fffffff
    v_cmp_gt_u32 vcc, 56, v1
    s_lshl_b32 s12, s2, 1
    s_and_b32 s13, s7, 1
    s_add_u32 s12, s12, s13
    s_mul_i32 s12, s12, 7168
    v_cndmask_b32 v{V_PF}, v20, v{V_PF}, vcc
    s_cmp_ge_u32 s7, 2
    s_cselect_b32 s48, s{P_WU}, s{P_WG}
    s_cselect_b32 s49, s{P_WU+1}, s{P_WG+1}
    s_mov_b32 s50, {D*F*2}
    s_mov_b32 s51, 0x00020000
    """)
    srd(p, 52, P_WS, WS_O, S_TOK * D * 2)
    BIAS = 204
    EXA = 216
    NEG = f2u(-1e30)
    p.I(f"""
    v_lshlrev_b32 v20, 2, v4          ; 4g
    v_sub_u32 v20, v20, v3            ; 4g - m
    v_mov_b32 v21, {NEG:#x}
    s_or_b32 s9, s5, s7
    s_cmp_eq_u32 s9, 0
    s_cselect_b32 s9, 64, 2
    """)
    for r in range(4):
        p.I(f"""
        v_add_u32 v22, {r}, v20           ; d = j - m
        v_and_b32 v23, 1, v22
        v_lshl_add_u32 v24, v23, 8, v22
        v_cmp_ge_i32 vcc, 0, v24
        v_cndmask_b32 v{BIAS+8+r}, v21, 0, vcc
        v_lshlrev_b32 v23, 8, v23
        v_sub_u32 v24, v22, v23
        v_cmp_le_i32 vcc, 2, v24
        v_cndmask_b32 v{BIAS+4+r}, v21, 0, vcc
        v_cmp_le_i32 vcc, s9, v24
        v_cndmask_b32 v{BIAS+r}, v21, 0, vcc
        """)
    p.I(f"""
    s_lshr_b32 s9, s7, 1
    s_lshl_b32 s9, s9, 11
    s_and_b32 s10, s7, 1
    s_lshl_b32 s10, s10, 3
    s_add_u32 s9, s9, s10
    v_add_u32 v{EXA}, s9, v{V_X}
    v_xor_b32 v{EXA+1}, 8, v{EXA}
    v_xor_b32 v{EXA+2}, 0x800, v{EXA}
    v_xor_b32 v{EXA+3}, 0x800, v{EXA+1}
    """)
    L.start(p)
    L.body(p)
    QP = 136
    KP = 152
    VP = 176
    HP = 200

    def qp(hd, tb): return QP + (hd * 2 + tb) * 4
    def kp(hd, i): return KP + (hd * 3 + i) * 4
    def vp(hd, db, i): return VP + ((hd * 2 + db) * 3 + i) * 2

    def pack(hd, tb, parts):
        for db in range(2):
            for part, dst in ((0, qp(hd, tb) + 2 * db), (1, kp(hd, 1 + tb) + 2 * db), (2, vp(hd, db, 1 + tb))):
                if part not in parts:
                    continue
                c = accr(tb, part, 2 * hd + db)
                p.I(f"v_cvt_pk_bf16_f32 v{dst}, v{c}, v{c+1}")
                p.I(f"v_cvt_pk_bf16_f32 v{dst+1}, v{c+2}, v{c+3}")
    p.I(f"""
    s_lshl_b32 s9, s7, 12
    v_add_u32 v20, s9, v{EXA}
    v_add_u32 v21, s9, v{EXA+1}
    v_add_u32 v22, s9, v{EXA+2}
    v_add_u32 v23, s9, v{EXA+3}
    s_barrier
    """)
    for hd in range(2):
        pack(hd, 1, (1, 2))
    for i in range(4):
        p.I(f"v_cvt_pk_bf16_f32 v{HP+i}, v{ACCH+2*i}, v{ACCH+2*i+1}")
    for hd in range(2):
        for db in range(2):
            k = kp(hd, 2) + 2 * db
            v = vp(hd, db, 2)
            p.I(f"ds_write_b64 v{20+2*hd+db}, v[{k}:{k+1}] offset:4096")
            p.I(f"ds_write_b64 v{20+2*hd+db}, v[{v}:{v+1}] offset:{4096+1024}")
    p.I(f"ds_write_b64 v{EXA}, v[{HP}:{HP+1}]")
    p.I(f"ds_write_b64 v{EXA}, v[{HP+2}:{HP+3}] offset:1024")
    for hd in range(2):
        pack(hd, 1, (0,))
        pack(hd, 0, (0, 1, 2))
    p.I("""
    s_waitcnt lgkmcnt(0)
    s_barrier
    """)
    for hd in range(2):
        for db in range(2):
            k = kp(hd, 0) + 2 * db
            v = vp(hd, db, 0)
            p.I(f"ds_read_b64 v[{k}:{k+1}], v{20+2*hd+db}")
            p.I(f"ds_read_b64 v[{v}:{v+1}], v{20+2*hd+db} offset:1024")
    chains = [(0, 1), (1, 1), (0, 0), (1, 0)]
    SR = 32
    MX = 64
    TM = 72
    SM = 76
    PP = 84
    OO = 100
    CSC = f2u(32 ** -0.5 * 1.4426950408889634)
    p.I(f"s_mov_b32 s9, {CSC:#x}")
    p.I(f"s_mov_b32 s10, {CSC:#x}")
    p.I(f"s_mov_b32 s11, {CSC:#x}")
    for ci, (hd, tb) in enumerate(chains):
        s = SR + ci * 8
        q = qp(hd, tb)
        kc = kp(hd, 1 + tb)
        p.I(f"{MFMA} v[{s+4}:{s+7}], v[{kc}:{kc+3}], v[{q}:{q+3}], v[{BIAS+8}:{BIAS+11}]")
    for ci, (hd, tb) in enumerate(chains):
        s = SR + ci * 8
        q = qp(hd, tb)
        kv = kp(hd, tb)
        if ci == 2:
            p.I("s_waitcnt lgkmcnt(0)")
        b = BIAS + 4 * tb
        p.I(f"{MFMA} v[{s}:{s+3}], v[{kv}:{kv+3}], v[{q}:{q+3}], v[{b}:{b+3}]")
    mx = [MX + 2 * i for i in range(4)]
    for ci in range(4):
        s = SR + ci * 8
        p.I(f"v_max3_f32 v{mx[ci]}, v{s+4}, v{s+5}, v{s+6}")
    for ci in range(4):
        s = SR + ci * 8
        p.I(f"v_max3_f32 v{mx[ci]}, v{mx[ci]}, v{s+7}, v{s}")
        p.I(f"v_max3_f32 v{mx[ci]}, v{mx[ci]}, v{s+1}, v{s+2}")
        p.I(f"v_max_f32 v{mx[ci]}, v{mx[ci]}, v{s+3}")
    xgroup_reduce_multi(p, mx, [TM + i for i in range(4)], "v_max_f32")
    for ci in range(4):
        p.I(f"v_mul_f32 v{mx[ci]}, s9, v{mx[ci]}")
    for ci in range(4):
        s = SR + ci * 8
        for r in range(0, 8, 2):
            p.I(f"v_pk_fma_f32 v[{s+r}:{s+r+1}], v[{s+r}:{s+r+1}], s[10:11], v[{mx[ci]}:{mx[ci]+1}] op_sel_hi:[1,1,0] neg_lo:[0,0,1] neg_hi:[0,0,1]")
        for r in range(8):
            p.I(f"v_exp_f32 v{s+r}, v{s+r}")
    for ci, (hd, tb) in enumerate(chains):
        s = SR + ci * 8
        for r in range(4):
            p.I(f"v_cvt_pk_bf16_f32 v{PP+4*ci+r}, v{s+2*r}, v{s+2*r+1}")
    for ci, (hd, tb) in enumerate(chains):
        for db in range(2):
            v = vp(hd, db, tb)
            o = OO + ci * 8 + db * 4
            p.I(f"{MFMA} v[{o}:{o+3}], v[{v}:{v+3}], v[{PP+4*ci}:{PP+4*ci+3}], 0")
    sm = [SM + 2 * i for i in range(4)]
    for ci in range(4):
        s = SR + ci * 8
        p.I(f"v_pk_add_f32 v[{s}:{s+1}], v[{s}:{s+1}], v[{s+2}:{s+3}]")
        p.I(f"v_pk_add_f32 v[{s+4}:{s+5}], v[{s+4}:{s+5}], v[{s+6}:{s+7}]")
        p.I(f"v_pk_add_f32 v[{s}:{s+1}], v[{s}:{s+1}], v[{s+4}:{s+5}]")
        p.I(f"v_add_f32 v{sm[ci]}, v{s}, v{s+1}")
    xgroup_reduce_multi(p, sm, [TM + i for i in range(4)], "v_add_f32")
    for ci in range(4):
        p.I(f"v_rcp_f32 v{sm[ci]}, v{sm[ci]}")
    p.I(f"""
    s_lshl_b32 s9, s8, 15
    s_lshl_b32 s10, s6, 12
    s_add_u32 s9, s9, s10
    """)
    for ci, (hd, tb) in enumerate(chains):
        o = OO + ci * 8
        for r in range(0, 8, 2):
            p.I(f"v_pk_mul_f32 v[{o+r}:{o+r+1}], v[{o+r}:{o+r+1}], v[{sm[ci]}:{sm[ci]+1}] op_sel_hi:[1,0]")
        d = SR + ci * 4
        for r in range(4):
            p.I(f"v_cvt_pk_bf16_f32 v{d+r}, v{o+2*r}, v{o+2*r+1}")
        for db in range(2):
            p.I(f"buffer_store_dwordx2 v[{d+2*db}:{d+2*db+1}], v{EXA+2*hd+db}, s[52:55], s9 offen offset:{1024*tb}{STPOL}")
    stamp_out(p, 2, 4)
    tail(p, name)
    return name, p, kernel_desc(name, 256 + 168, 256), (256, 256, HALO + 32768)


MACROS = r"""
.macro MF d, a, b
    v_mfma_f32_16x16x32_bf16 v[\d:\d+3], a[\a:\a+3], a[\b:\b+3], v[\d:\d+3]
.endm
.macro TR d, r, o
    ds_read_b64_tr_b16 a[\d:\d+1], v[\r] offset:\o
.endm
.macro XL d, r, o
    buffer_load_dwordx4 a[\d:\d+3], v[\r], s[36:39], s44 offen offset:\o XPOL
.endm
.macro WL r, o
    buffer_load_dwordx4 v[\r], s[40:43], s45 offen offset:\o WPOL lds
.endm
""".replace("XPOL", os.environ.get("XPOL", "")).replace("WPOL", os.environ.get("WPOL", ""))


def compress(txt):
    import re
    txt = re.sub(r"v_mfma_f32_16x16x32_bf16 v\[(\d+):\d+\], a\[(\d+):\d+\], a\[(\d+):\d+\], v\[\1:\d+\]",
                 r"MF \1,\2,\3", txt)
    txt = re.sub(r"ds_read_b64_tr_b16 a\[(\d+):\d+\], v(\d+) offset:(\d+)", r"TR \1,\2,\3", txt)
    txt = re.sub(r"buffer_load_dwordx4 a\[(\d+):\d+\], v(\d+), s\[36:39\], s44 offen offset:(\d+)\n", r"XL \1,\2,\3\n", txt)
    txt = re.sub(r"buffer_load_dwordx4 a\[(\d+):\d+\], v(\d+), s\[36:39\], s44 offen\n", r"XL \1,\2,0\n", txt)
    txt = re.sub(r"buffer_load_dwordx4 v(\d+), s\[40:43\], s45 offen offset:(\d+) lds", r"WL \1,\2", txt)
    txt = re.sub(r"buffer_load_dwordx4 v(\d+), s\[40:43\], s45 offen lds", r"WL \1,0", txt)
    txt = re.sub(r"^    ", " ", txt, flags=re.M)
    return txt


def main():
    ks = [gen_k1(), gen_k2(), gen_k3(), gen_k4(), gen_k5()]
    ref = open(f"cdna_kernels/{NAME}.s.ref").read().split("\n")
    hdr = [l for l in ref if l.startswith(";") and "@launch" not in l]
    out = "\n".join(hdr) + "\n"
    for name, p, desc, (g, b, lds) in ks:
        out += f"; @launch kernel={name} grid=({g},1,1) block=({b},1,1) lds={lds}\n"
    out += '.amdgcn_target "amdgcn-amd-amdhsa--gfx950"\n'
    out += MACROS
    for name, p, desc, _ in ks:
        out += compress(p.finalize())
    out += '.section .rodata,"a"\n'
    for name, p, desc, _ in ks:
        out += ".p2align 6\n" + desc
    dst = sys.argv[1] if len(sys.argv) > 1 else f"cdna_kernels/{NAME}.s"
    open(dst, "w").write(out)
    print("wrote", dst, len(out), "bytes")


if __name__ == "__main__":
    main()
```

```python
import re

TRANS = ("v_exp_f32", "v_log_f32", "v_rcp_f32", "v_rsq_f32", "v_sqrt_f32", "v_sin_f32", "v_cos_f32",
         "v_rcp_iflag_f32")

_reg_re = re.compile(r"\b([vas])(\d+)\b|\b([vas])\[(\d+):(\d+)\]|\b(vcc|exec|m0|scc)\b")


def regs_of(op):
    out = []
    for m in _reg_re.finditer(op):
        if m.group(1):
            out.append(m.group(1) + m.group(2))
        elif m.group(3):
            out += [m.group(3) + str(i) for i in range(int(m.group(4)), int(m.group(5)) + 1)]
        else:
            out.append(m.group(6))
    return out


def split_ops(s):
    ops, depth, cur = [], 0, ""
    for ch in s:
        if ch in "[(":
            depth += 1
        if ch in "])":
            depth -= 1
        if ch == "," and depth == 0:
            ops.append(cur.strip())
            cur = ""
        else:
            cur += ch
    if cur.strip():
        ops.append(cur.strip())
    return ops


class Ins:
    __slots__ = ("text", "op", "cls", "dst", "src", "srcC", "srcAB", "passes", "states", "lds_dma",
                 "wide_store", "store_data", "dpp", "perm", "rdlane", "is_label", "branch_to")

    def __init__(self, text):
        self.text = text
        self.is_label = False
        self.branch_to = None
        self.dst, self.src, self.srcC, self.srcAB = [], [], [], []
        self.passes = 0
        self.states = 1
        self.lds_dma = False
        self.wide_store = False
        self.store_data = []
        self.dpp = False
        self.perm = False
        self.rdlane = False
        t = text.split(";")[0].strip()
        if t.endswith(":"):
            self.is_label = True
            self.op = t[:-1]
            self.cls = "label"
            self.states = 0
            return
        if not t or t.startswith("."):
            self.op = ""
            self.cls = "none"
            self.states = 0
            return
        parts = t.split(None, 1)
        op = parts[0]
        self.op = op
        rest = parts[1] if len(parts) > 1 else ""
        ops = split_ops(rest)
        first_tok = [o.split()[0] if o.split() else o for o in ops]
        R = [regs_of(o) for o in first_tok]
        if op.startswith("v_mfma"):
            self.cls = "mfma"
            self.dst = R[0]
            self.srcAB = R[1] + R[2]
            self.srcC = R[3]
            self.src = self.srcAB + self.srcC
            self.passes = 8 if "32x32" in op else 4
        elif op.startswith("v_"):
            base = op.replace("_e32", "").replace("_e64", "").replace("_dpp", "")
            self.cls = "trans" if base in TRANS else "valu"
            self.dpp = "_dpp" in op or "row_" in rest or "quad_perm" in rest
            if base.startswith("v_permlane"):
                self.perm = True
                self.dst = R[0] + R[1]
                self.src = R[0] + R[1]
            elif base.startswith("v_cmp"):
                self.dst = R[0]
                self.src = sum(R[1:], [])
            elif base in ("v_readfirstlane_b32", "v_readlane_b32"):
                self.rdlane = True
                self.dst = R[0]
                self.src = sum(R[1:], [])
            elif base in ("v_add_co_u32", "v_sub_co_u32", "v_addc_co_u32", "v_subb_co_u32", "v_mad_u64_u32"):
                self.dst = R[0] + R[1]
                self.src = sum(R[2:], [])
            elif base in ("v_fmac_f32", "v_pk_fmac_f16", "v_dot2c_f32_bf16"):
                self.dst = R[0]
                self.src = sum(R, [])
            elif base == "v_nop":
                pass
            else:
                self.dst = R[0]
                self.src = sum(R[1:], [])
                if self.dpp:
                    self.src += R[0]
        elif op.startswith("ds_"):
            self.cls = "ds"
            if op.startswith("ds_read") or op.startswith("ds_bpermute") or op.startswith("ds_permute") \
                    or op.startswith("ds_swizzle"):
                self.dst = R[0]
                self.src = sum(R[1:], [])
            else:
                self.src = sum(R, [])
        elif op.startswith("buffer_") or op.startswith("global_"):
            self.cls = "vmem"
            if op in ("buffer_wbl2", "buffer_inv"):
                pass
            elif " lds" in (" " + rest) and rest.strip().endswith("lds") or "load_lds" in op:
                self.lds_dma = True
                self.src = sum(R, []) + ["m0"]
            elif "load" in op:
                self.dst = R[0]
                self.src = sum(R[1:], [])
            elif op.startswith("buffer_store") or op.startswith("buffer_atomic"):
                self.src = sum(R, [])
                self.store_data = R[0]
                self.wide_store = "x3" in op or "x4" in op
                if op.startswith("buffer_atomic") and "sc0" in rest:
                    self.dst = R[0]
            else:
                self.src = sum(R, [])
                self.store_data = R[1]
                self.wide_store = "x3" in op or "x4" in op
        elif op.startswith("s_"):
            self.cls = "salu"
            if op == "s_nop":
                self.states = int(rest.strip(), 0) + 1
            elif op.startswith("s_cbranch") or op == "s_branch":
                self.branch_to = rest.strip()
            elif op.startswith("s_load") or op.startswith("s_buffer_load") or op.startswith("s_memtime") \
                    or op.startswith("s_memrealtime"):
                self.cls = "smem"
                self.dst = R[0]
                self.src = sum(R[1:], [])
            elif op.startswith("s_cmp") or op in ("s_waitcnt", "s_barrier", "s_endpgm", "s_setprio", "s_sleep"):
                self.src = sum(R, [])
            else:
                self.dst = R[0] if R else []
                self.src = sum(R[1:], [])
        else:
            raise ValueError("unknown instruction: " + text)


def need_states(p, c):
    n = 0
    pd = set(p.dst)
    is_valu_p = p.cls in ("valu", "trans")
    is_valu_c = c.cls in ("valu", "trans")
    if is_valu_p:
        vd = {r for r in pd if r[0] in "va"}
        sd = {r for r in pd if r[0] == "s" or r == "vcc"}
        if c.cls == "mfma" and vd & set(c.src):
            n = max(n, 2)
        if c.cls == "vmem" and sd & set(c.src):
            n = max(n, 5)
        if is_valu_c and sd & set(c.src):
            n = max(n, 4 if c.rdlane else 2)
        if is_valu_c and "vcc" in sd and c.op.startswith(("v_cndmask", "v_addc", "v_subb", "v_div_fmas")):
            n = max(n, 4 if c.op.startswith("v_div_fmas") else 2)
        if c.rdlane and vd & set(c.src):
            n = max(n, 1)
        if p.cls == "trans" and c.cls != "trans" and vd & set(c.src + c.dst):
            n = max(n, 1)
        if (c.perm or c.dpp) and vd & set(c.src):
            n = max(n, 2)
        if "exec" in pd:
            n = max(n, 5)
    if p.cls == "mfma":
        big = p.passes == 8
        if c.cls == "mfma":
            if pd & set(c.srcAB):
                n = max(n, 12 if big else 8)
            if pd & set(c.srcC):
                if not (p.dst == c.srcC and p.passes == c.passes):
                    n = max(n, 10 if big else 6)
            if pd & set(c.dst) and not (p.dst == c.dst):
                n = max(n, 12 if big else 8)
        elif c.cls in ("valu", "trans", "vmem", "ds"):
            if pd & set(c.src + c.dst):
                n = max(n, 12 if big else 8)
        if is_valu_c and set(p.srcC) & set(c.dst):
            n = max(n, 7 if big else 3)
    if p.cls == "salu" and "m0" in pd and (c.lds_dma or "addtid" in c.op):
        n = max(n, 1)
    if p.wide_store and set(p.store_data) & set(c.dst):
        n = max(n, 2)
    return n


class Prog:
    def __init__(self):
        self.lines = []

    def I(self, text):
        for t in text.strip().split("\n"):
            t = t.strip()
            if t:
                self.lines.append(t)

    def label(self, name):
        self.lines.append(name + ":")

    def raw(self, text):
        self.lines.append(text)

    def C(self, text):
        self.lines.append("; " + text)

    def extend(self, other):
        self.lines += other.lines

    WINDOW = 24

    def finalize(self):
        ins = [Ins(t) for t in self.lines]
        out = []
        nnop = 0
        for c in ins:
            if c.states == 0:
                out.append(c)
                continue
            need = 0
            dist = 0
            for p in reversed(out):
                if p.states == 0:
                    continue
                if dist >= self.WINDOW:
                    break
                k = need_states(p, c)
                if k > dist:
                    need = max(need, k - dist)
                dist += p.states
            while need > 0:
                k = min(need, 16)
                out.append(Ins("s_nop %d" % (k - 1)))
                nnop += 1
                need -= k
            out.append(c)
        labels = {x.op: i for i, x in enumerate(out) if x.is_label}
        for i, b in enumerate(out):
            if b.branch_to and b.branch_to in labels:
                tgt = labels[b.branch_to]
                tail = [x for x in out[max(0, i - 3 * self.WINDOW): i + 1] if x.states]
                head = [x for x in out[tgt: tgt + 3 * self.WINDOW] if x.states][: self.WINDOW]
                seq = list(tail)
                for c in head:
                    dist = 0
                    for p in reversed(seq):
                        if dist >= self.WINDOW:
                            break
                        k = need_states(p, c)
                        if k > dist and p in tail:
                            raise RuntimeError("hazard across branch %s: '%s' -> '%s' need %d have %d" %
                                               (b.text, p.text, c.text, k, dist))
                        dist += p.states
                    seq.append(c)
        self.nnop = nnop
        if getattr(self, "paged", None):
            out = self._insert_page_stubs(out)
        txt = []
        for x in out:
            if x.is_label or x.text.startswith("."):
                txt.append(x.text)
            else:
                txt.append("    " + x.text)
        return "\n".join(txt) + "\n"


    def _sizes(self, out):
        import subprocess, tempfile, os
        body = ['.amdgcn_target "amdgcn-amd-amdhsa--gfx950"']
        labels = {x.op for x in out if x.is_label}
        for x in out:
            if x.states == 0:
                if x.is_label:
                    body.append(x.text)
                continue
            if x.branch_to and x.branch_to not in labels:
                body.append("s_nop 0")
            else:
                body.append(x.text)
        d = tempfile.mkdtemp()
        open(d + "/t.s", "w").write("\n".join(body) + "\n")
        subprocess.run(["clang", "-x", "assembler", "-target", "amdgcn-amd-amdhsa",
                        "-mcpu=gfx950", "-c", d + "/t.s", "-o", d + "/t.o"], check=True)
        dis = subprocess.run(["llvm-objdump", "-d", "--mcpu=gfx950", d + "/t.o"],
                             capture_output=True, text=True, check=True).stdout
        sizes = []
        for l in dis.split("\n"):
            m = re.search(r"//\s*[0-9A-Fa-f]{12}:((?:\s+[0-9A-Fa-f]{8})+)", l)
            if m:
                sizes.append(4 * len(m.group(1).split()))
        n = sum(1 for x in out if x.states)
        assert len(sizes) == n, (len(sizes), n)
        return sizes

    def _insert_page_stubs(self, out):
        name, nw = self.paged
        sizes = iter(self._sizes(out))
        res = []
        off = 0
        k = 0
        chain = "0"
        members = {}
        stubpos = {}
        for x in out:
            if x.states == 0:
                if x.text.startswith("; @CHAIN"):
                    chain = x.text.split()[2]
                    members.setdefault(chain, [])
                res.append(x)
                continue
            sz = next(sizes)
            page_end = (off // 4096 + 1) * 4096
            if off + sz + 4 > page_end:
                res.append(Ins(f"s_branch L_{name}_pg{k}_skip"))
                res.append(Ins(".p2align 12"))
                res.append(Ins(f"L_{name}_pg{k}:"))
                stubpos[k] = len(res)
                res.append(None)
                res.append(Ins("s_nop 0"))
                res.append(Ins(f"L_{name}_pg{k}_skip:"))
                members.setdefault(chain, []).append(k)
                off = page_end + 8
                k += 1
            res.append(x)
            off += sz
        members.setdefault("0", [])
        for c, ks in members.items():
            for i, kk in enumerate(ks):
                tgt = f"L_{name}_pg{ks[i+nw]}" if i + nw < len(ks) else f"L_{name}_hop{c}_ret"
                res[stubpos[kk]] = Ins(f"s_branch {tgt}")
            for w in range(nw):
                tgt = f"L_{name}_pg{ks[w]}" if w < len(ks) else f"L_{name}_hop{c}_ret"
                res.append(Ins(f".set L_{name}_hop{c}_e{w}, {tgt}"))
        self.code_bytes = off
        return res


def vr(lo, n=1, k="v"):
    return "%s%d" % (k, lo) if n == 1 else "%s[%d:%d]" % (k, lo, lo + n - 1)


def ar(lo, n=1):
    return vr(lo, n, "a")


def sr(lo, n=1):
    return vr(lo, n, "s")


def kernel_desc(name, vgpr, accum, sgpr=102, wg_y=False):
    return f""".amdhsa_kernel {name}
  .amdhsa_next_free_vgpr {vgpr}
  .amdhsa_next_free_sgpr {sgpr}
  .amdhsa_accum_offset {accum}
  .amdhsa_group_segment_fixed_size 0
  .amdhsa_kernarg_size 80
  .amdhsa_user_sgpr_count 2
  .amdhsa_user_sgpr_kernarg_segment_ptr 1
  .amdhsa_system_sgpr_workgroup_id_x 1
  .amdhsa_float_denorm_mode_32 3
  .amdhsa_float_denorm_mode_16_64 3
.end_amdhsa_kernel
"""


def interleave(mfmas, others, lead=1, tail_free=2):
    out = []
    nm = len(mfmas)
    gaps = max(1, nm - lead - tail_free + 1)
    no = len(others)
    k = 0
    for i, m in enumerate(mfmas):
        out.append(m)
        gi = i - (lead - 1)
        if gi >= 0 and gi < gaps:
            tgt = ((gi + 1) * no + gaps - 1) // gaps
            while k < tgt and k < no:
                out += others[k]
                k += 1
    while k < no:
        out += others[k]
        k += 1
    return out
```

```python
import sys
from asmlib import *

NAME = "sequential_preLN__sliding_local_dilated__geglu_ffn__prompt"
MB = 1 << 20
WS_XN, WS_O, WS_H, WS_ST, WS_ACT = 0, 4 * MB, 8 * MB, 12 * MB, 16 * MB
WS_MX, WS_MEAN, WS_RM, WS_FLAG, WS_EX = 13 * MB, 13 * MB + 65536, 13 * MB + 131072, 14 * MB, 32 * MB
import os
if os.environ.get("REUSE") == "1":
    WS_H, WS_EX = WS_XN, WS_O
if os.environ.get("REUSE") == "2":
    WS_H = WS_XN
    WS_O = WS_ACT
S_TOK, D, F = 2048, 1024, 3584
P_X, P_WQKV, P_WO, P_BX, P_WG, P_WU, P_WD, P_OUT, P_DBG, P_WS = 16, 18, 20, 22, 24, 26, 28, 30, 32, 34


import os
def envint(k, d):
    return int(os.environ.get(k, d))
K2_P0, K2_RATE = envint("K2_P0", 2), float(os.environ.get("K2_RATE", 1.5))
K3_P0, K3_RATE = envint("K3_P0", 4), float(os.environ.get("K3_RATE", 2))
K4_P0, K4_RATE = envint("K4_P0", 2), float(os.environ.get("K4_RATE", 1.5))
K5_P0, K5_RATE = envint("K5_P0", 4), float(os.environ.get("K5_RATE", 1.5))
K5_R, K5_FLAGLAG, K5_MODE = envint("K5_R", 16), envint("K5_FLAGLAG", 5), envint("K5_MODE", 0)
STPOL = os.environ.get("STPOL", " sc0 sc1")
PF1, PF2, PF3, PF4 = envint("PF1", 1), envint("PF2", 1), envint("PF3", 0), envint("PF4", 2)
PF2T, PF3T = envint("PF2T", 25), envint("PF3T", 12)
K3_S, K5_S = envint("K3_S", 4), envint("K5_S", 8)
INPOL = os.environ.get("INPOL", "")
ROT = envint("ROT", 0)
FAKE5 = envint("FAKE5", 28)


def f2u(x):
    import struct
    return struct.unpack("<I", struct.pack("<f", x))[0]


def head(p, name, nwg):
    p.raw(".text")
    p.raw(f".globl {name}")
    p.raw(".p2align 12")
    p.raw(f".type {name},@function")
    p.label(name)
    p.I(f"""
    s_cmp_ge_u32 s2, {nwg}
    s_cbranch_scc1 L_{name}_end
    s_load_dwordx16 s[16:31], s[0:1], 0
    s_load_dwordx4 s[32:35], s[0:1], 64
    """)
    stamp(p, 0)


import os
STAMP = int(os.environ.get("STAMP", "0"))
STEPV = {"k2": 31, "k3": 31, "k4": 238, "k5": 127}
WS_STAMP = 200 * MB


def stamp(p, i):
    if STAMP:
        p.I(f"""
        s_memtime s[{64+4*i}:{65+4*i}]
        s_memrealtime s[{66+4*i}:{67+4*i}]
        """)


def pstamp(p, i):
    if STAMP == 3:
        p.I(f"s_memtime s[{84+2*i}:{85+2*i}]")


def stamp_out(p, kid, n):
    if not STAMP:
        return
    p.I("s_waitcnt vmcnt(0) lgkmcnt(0)")
    stamp(p, n - 1)
    p.I("s_mov_b64 exec, -1")
    srd(p, 96, P_WS, WS_STAMP + kid * (1 << 20), 1 << 20)
    p.I(f"""
    s_waitcnt lgkmcnt(0)
    s_lshl_b32 s100, s2, 10
    s_lshl_b32 s101, s7, 7
    s_add_u32 s100, s100, s101
    v_mov_b32 v0, 0
    s_mov_b64 exec, 1
    """)
    for i in range(n):
        for j in range(4):
            p.I(f"v_mov_b32 v{4+j}, s{64+4*i+j}")
        p.I(f"buffer_store_dwordx4 v[4:7], v0, s[96:99], s100 offen offset:{16*i}")
        p.I("s_nop 1")
    if STAMP == 3:
        for i in range(5):
            p.I(f"v_mov_b32 v4, s{84+2*i}")
            p.I(f"buffer_store_dword v4, v0, s[96:99], s100 offen offset:{64+4*i}")
    if STAMP == 2:
        sv = STEPV["k%d" % kid]
        p.I(f"""
        s_mov_b64 exec, -1
        v_mbcnt_lo_u32_b32 v0, -1, 0
        v_mbcnt_hi_u32_b32 v0, -1, v0
        v_lshlrev_b32 v0, 2, v0
        s_lshl_b32 s100, s2, 10
        s_lshl_b32 s101, s7, 8
        s_add_u32 s100, s100, s101
        s_add_u32 s100, s100, {512*1024}
        buffer_store_dword v{sv}, v0, s[96:99], s100 offen
        """)


HOP = envint("HOP", 1)


def hop(p, name, nw=4, chain="0"):
    pstamp(p, 1)
    if not HOP:
        pstamp(p, 2)
        return
    p.paged = (name, nw)
    for w in range(nw - 1):
        p.I(f"s_cmp_eq_u32 s7, {w}")
        p.I(f"s_cbranch_scc1 L_{name}_hop{chain}_e{w}")
    p.I(f"s_branch L_{name}_hop{chain}_e{nw-1}")
    p.label(f"L_{name}_hop{chain}_ret")
    pstamp(p, 2)


def tail(p, name):
    p.label(f"L_{name}_end")
    p.I("s_endpgm")


def srd(p, d, base, off, nbytes):
    if off:
        p.I(f"""
        s_add_u32 s{d}, s{base}, {off}
        s_addc_u32 s{d+1}, s{base+1}, 0
        """)
    else:
        p.I(f"""
        s_mov_b32 s{d}, s{base}
        s_mov_b32 s{d+1}, s{base+1}
        """)
    p.I(f"""
    s_mov_b32 s{d+2}, {nbytes}
    s_mov_b32 s{d+3}, 0x00020000
    """)


def xgroup_reduce(p, v, tmp, op):
    p.I(f"""
    v_mov_b32 v{tmp}, v{v}
    v_permlane16_swap_b32 v{v}, v{tmp}
    {op} v{v}, v{v}, v{tmp}
    v_mov_b32 v{tmp}, v{v}
    v_permlane32_swap_b32 v{v}, v{tmp}
    {op} v{v}, v{v}, v{tmp}
    """)


def xgroup_reduce_multi(p, vs, tmps, op):
    for sw in ("v_permlane16_swap_b32", "v_permlane32_swap_b32"):
        for v, t in zip(vs, tmps):
            p.I(f"v_mov_b32 v{t}, v{v}")
        for v, t in zip(vs, tmps):
            p.I(f"{sw} v{v}, v{t}")
        for v, t in zip(vs, tmps):
            p.I(f"{op} v{v}, v{v}, v{t}")


def gen_k1():
    name = "k1_ln_kernel"
    p = Prog()
    head(p, name, 256)
    p.I("""
    v_and_b32 v1, 63, v0          ; lane
    v_lshrrev_b32 v2, 6, v0       ; wave
    s_cmp_ge_u32 s2, 128
    s_cbranch_scc1 L_k1_aux
    s_and_b32 s4, s2, 3
    s_lshl_b32 s4, s4, 5
    s_bfe_u32 s5, s2, 0x10002
    s_lshl_b32 s5, s5, 4
    s_add_u32 s4, s4, s5
    s_lshr_b32 s5, s2, 3
    s_add_u32 s4, s4, s5
    v_and_b32 v3, 15, v1          ; m
    v_lshrrev_b32 v4, 4, v1       ; g
    s_lshl_b32 s3, s4, 15
    v_lshlrev_b32 v5, 11, v3      ; m*2048
    v_lshl_add_u32 v5, v2, 8, v5  ; + w*256
    v_lshl_add_u32 v5, v4, 4, v5  ; + g*16
    v_lshlrev_b32 v6, 4, v1       ; lane*16
    v_lshl_add_u32 v6, v2, 13, v6 ; + w*4 kb*2048
    s_lshr_b32 s5, s4, 1
    s_lshl_b32 s5, s5, 16
    s_and_b32 s6, s4, 1
    s_lshl_b32 s6, s6, 10
    s_add_u32 s5, s5, s6
    s_add_u32 s6, s5, 4096
    v_lshlrev_b32 v7, 5, v3
    v_lshl_add_u32 v8, v2, 2, v7
    s_waitcnt lgkmcnt(0)
    """)
    srd(p, 36, P_X, 0, S_TOK * D * 2)
    for j in range(4):
        p.I(f"buffer_load_dwordx4 v[{16+4*j}:{19+4*j}], v5, s[36:39], s3 offen offset:{64*j}{INPOL}")
    srd(p, 40, P_WS, WS_XN, S_TOK * D * 2)
    srd(p, 44, P_WS, WS_MX, S_TOK * 4)
    for j in range(4):
        p.I(f"s_waitcnt vmcnt({3-j})")
        for r in range(4):
            x = 16 + 4 * j + r
            p.I(f"v_lshlrev_b32 v{32+2*(4*j+r)}, 16, v{x}")
            p.I(f"v_and_b32 v{33+2*(4*j+r)}, 0xffff0000, v{x}")
    p.I("v_pk_add_f32 v[10:11], v[32:33], v[34:35]")
    p.I("v_pk_add_f32 v[12:13], v[36:37], v[38:39]")
    for i in range(2, 8):
        p.I(f"v_pk_add_f32 v[10:11], v[10:11], v[{32+4*i}:{33+4*i}]")
        p.I(f"v_pk_add_f32 v[12:13], v[12:13], v[{34+4*i}:{35+4*i}]")
    p.I("""
    v_pk_add_f32 v[10:11], v[10:11], v[12:13]
    v_add_f32 v10, v10, v11
    """)
    xgroup_reduce(p, 10, 11, "v_add_f32")
    p.I("""
    ds_write_b32 v8, v10
    s_waitcnt lgkmcnt(0)
    s_barrier
    ds_read_b128 v[16:19], v7
    ds_read_b128 v[20:23], v7 offset:16
    s_waitcnt lgkmcnt(0)
    v_pk_add_f32 v[16:17], v[16:17], v[18:19]
    v_pk_add_f32 v[20:21], v[20:21], v[22:23]
    v_pk_add_f32 v[16:17], v[16:17], v[20:21]
    v_add_f32 v16, v16, v17
    v_mul_f32 v14, 0x3a800000, v16
    """)
    for i in range(16):
        p.I(f"v_pk_add_f32 v[{32+2*i}:{33+2*i}], v[{32+2*i}:{33+2*i}], v[14:15] op_sel_hi:[1,0] neg_lo:[0,1] neg_hi:[0,1]")
    p.I("v_pk_mul_f32 v[10:11], v[32:33], v[32:33]")
    p.I("v_pk_mul_f32 v[12:13], v[34:35], v[34:35]")
    for i in range(1, 8):
        p.I(f"v_pk_fma_f32 v[10:11], v[{32+4*i}:{33+4*i}], v[{32+4*i}:{33+4*i}], v[10:11]")
        p.I(f"v_pk_fma_f32 v[12:13], v[{34+4*i}:{35+4*i}], v[{34+4*i}:{35+4*i}], v[12:13]")
    p.I("""
    v_pk_add_f32 v[10:11], v[10:11], v[12:13]
    v_add_f32 v10, v10, v11
    """)
    xgroup_reduce(p, 10, 11, "v_add_f32")
    p.I(f"""
    ds_write_b32 v8, v10 offset:512
    s_waitcnt lgkmcnt(0)
    s_barrier
    ds_read_b128 v[16:19], v7 offset:512
    ds_read_b128 v[20:23], v7 offset:528
    s_waitcnt lgkmcnt(0)
    v_pk_add_f32 v[16:17], v[16:17], v[18:19]
    v_pk_add_f32 v[20:21], v[20:21], v[22:23]
    v_pk_add_f32 v[16:17], v[16:17], v[20:21]
    v_add_f32 v16, v16, v17
    v_mov_b32 v17, {f2u(1e-5):#x}
    v_fmac_f32 v17, 0x3a800000, v16
    v_rsq_f32 v12, v17
    """)
    for j in range(4):
        for r in range(4):
            q = 4 * j + r
            p.I(f"v_pk_mul_f32 v[{32+2*q}:{33+2*q}], v[{32+2*q}:{33+2*q}], v[12:13] op_sel_hi:[1,0]")
        for r in range(4):
            q = 4 * j + r
            p.I(f"v_cvt_pk_bf16_f32 v{16+q}, v{32+2*q}, v{33+2*q}")
        p.I(f"buffer_store_dwordx4 v[{16+4*j}:{19+4*j}], v6, s[40:43], s{5+j//2} offen offset:{2048*(j&1)}{STPOL}")
    p.I("""
    v_cmp_gt_u32 vcc, 16, v0
    s_and_saveexec_b64 s[10:11], vcc
    s_cbranch_execz L_k1_ln_kernel_end
    v_lshlrev_b32 v3, 2, v0
    s_lshl_b32 s4, s4, 6
    buffer_store_dword v14, v3, s[44:47], s4 offen
    s_endpgm
    """)
    p.label("L_k1_aux")
    p.I(f"""
    s_cmp_ge_u32 s2, 192
    s_cbranch_scc1 L_k1_pf
    s_sub_u32 s3, s2, 128
    s_lshl_b32 s3, s3, 15           ; *16 rows*2048
    v_lshlrev_b32 v3, 4, v1
    v_lshl_add_u32 v3, v2, 12, v3   ; + w*2 rows
    s_waitcnt lgkmcnt(0)
    """)
    srd(p, 36, P_WO, 0, D * D * 2)
    for j in range(4):
        p.I(f"buffer_load_dwordx4 v[{16+4*j}:{19+4*j}], v3, s[36:39], s3 offen offset:{1024*j}")
    srd(p, 40, P_WS, WS_RM, 4096)
    for j in range(4):
        p.I(f"s_waitcnt vmcnt({3-j})")
        for r in range(4):
            x = 16 + 4 * j + r
            p.I(f"v_lshlrev_b32 v{32+2*(4*j+r)}, 16, v{x}")
            p.I(f"v_and_b32 v{33+2*(4*j+r)}, 0xffff0000, v{x}")
    for row in range(2):
        b = 32 + 16 * row
        a = 10 + 2 * row
        p.I(f"v_pk_add_f32 v[{a}:{a+1}], v[{b}:{b+1}], v[{b+2}:{b+3}]")
        for i in range(2, 8):
            p.I(f"v_pk_add_f32 v[{a}:{a+1}], v[{a}:{a+1}], v[{b+2*i}:{b+2*i+1}]")
    p.I("""
    v_add_f32 v10, v10, v11
    v_add_f32 v11, v12, v13
    """)
    for sh in (1, 2, 4, 8):
        p.I(f"v_add_f32_dpp v12, v10, v10 row_ror:{sh} row_mask:0xf bank_mask:0xf")
        p.I(f"v_add_f32_dpp v13, v11, v11 row_ror:{sh} row_mask:0xf bank_mask:0xf")
        p.I("v_mov_b32 v10, v12")
        p.I("v_mov_b32 v11, v13")
    xgroup_reduce_multi(p, [10, 11], [12, 13], "v_add_f32")
    p.I(f"""
    v_mul_f32 v10, 0x3a800000, v10
    v_mul_f32 v11, 0x3a800000, v11
    v_cvt_pk_bf16_f32 v12, v10, v11
    v_lshlrev_b32 v14, 16, v12
    v_and_b32 v15, 0xffff0000, v12
    v_sub_f32 v10, v10, v14
    v_sub_f32 v11, v11, v15
    v_cvt_pk_bf16_f32 v13, v10, v11
    s_sub_u32 s3, s2, 128
    s_lshr_b32 s4, s3, 1
    s_lshl_b32 s4, s4, 6                  ; kb*64
    s_and_b32 s5, s3, 1
    s_lshl_b32 s5, s5, 3                  ; (j>>4)*4*2
    s_add_u32 s4, s4, s5
    v_lshrrev_b32 v3, 1, v2               ; g = (2w)>>2
    v_lshlrev_b32 v3, 4, v3
    v_and_b32 v4, 1, v2
    v_lshl_add_u32 v3, v4, 2, v3          ; + (2w&3)*2
    v_cmp_eq_u32 vcc, 0, v1
    s_and_saveexec_b64 s[10:11], vcc
    buffer_store_dword v12, v3, s[40:43], s4 offen
    buffer_store_dword v13, v3, s[40:43], s4 offen offset:2048
    s_endpgm
    """)
    p.label("L_k1_pf")
    p.I(f"""
    s_sub_u32 s3, s2, 192
    s_lshl_b32 s4, s3, 16           ; *512 lines*128
    v_lshlrev_b32 v3, 7, v0
    s_lshl_b32 s5, s3, 11
    v_mov_b32 v6, 0
    s_waitcnt lgkmcnt(0)
    """)
    srd(p, 36, P_WQKV, 0, D * 3 * D * 2)
    srd(p, 40, P_WS, WS_FLAG, 1024 * 128)
    if PF1:
        p.I(f"""
        buffer_load_dword v4, v3, s[36:39], s4 offen
        s_add_u32 s4, s4, {64*65536}
        buffer_load_dword v5, v3, s[36:39], s4 offen
        """)
    p.I(f"""
    v_cmp_gt_u32 vcc, 16, v0
    s_and_saveexec_b64 s[10:11], vcc
    s_cbranch_execz L_k1_ln_kernel_end
    buffer_store_dword v6, v3, s[40:43], s5 offen
    """)
    tail(p, name)
    return name, p, kernel_desc(name, 64, 64), (256, 512, 2048)


class VStep:
    def __init__(self, mfmas, reads, xneed, wneed, extra=None, post=None):
        self.mfmas, self.reads, self.xneed, self.wneed = mfmas, reads, list(xneed), list(wneed)
        self.extra = extra or []
        self.post = post or []


def merge_step(mfmas, reads, vm, lead=1, tail_free=3, rpg=2):
    nm = len(mfmas)
    gaps = [[] for _ in range(nm)]
    usable = max(1, nm - tail_free - (lead - 1))
    nr = len(reads)
    span = max(1, min(usable, nr if nr <= usable else usable))
    for i, r in enumerate(reads):
        gi = lead - 1 + (i * span) // max(nr, 1)
        gaps[gi].append(("r", r))
    nv = len(vm)
    vspan = max(1, nm - 1 - (lead - 1))
    for i, v in enumerate(vm):
        gi = lead - 1 + ((2 * i + 1) * vspan) // (2 * nv)
        gaps[gi].append(("v", v))
    out = []
    order = []
    for i, m in enumerate(mfmas):
        out.append(m)
        for kind, g in gaps[i]:
            if kind == "v":
                order.append(g)
                out += g[2]
            else:
                out += g
    return out, order


class Loop:
    def __init__(self, tag, vsteps, NST, SUB, S, RX, U, wdma, xload, cnt_sreg, lead=1, tail_free=3,
                 P0=2, RATE=2.0):
        self.__dict__.update(locals())
        self.issued = []
        self.queue = []
        for st in range(NST):
            self.queue += [("w", st, g) for g in wdma(st)]
            for sub in range(SUB):
                t = st * SUB + sub
                self.queue += [("x", t, g) for g in xload(t)]
        self.qi = 0
        self.full_len = len(self.queue)
        self.w_last = {}
        self.x_last = {}
        for i, v in enumerate(vsteps):
            for w in v.wneed:
                self.w_last[w] = i
            for x in v.xneed:
                self.x_last[x] = i
        self.w_free = set()
        self.tot_mfma = sum(len(v.mfmas) for v in vsteps)

    def _count(self, g, tag):
        for t in g:
            if t.startswith("buffer_") or t.startswith("global_"):
                self.issued.append(tag)

    def _need(self, tags):
        last = -1
        for i, t in enumerate(self.issued):
            if t in tags:
                last = i
        return len(self.issued) - 1 - last

    def _allowed(self, item, i):
        kind, idx, g = item
        if kind == "w":
            return idx < self.S or (idx - self.S) in self.w_free
        return idx < self.RX or self.x_last[idx - self.RX] < i

    def prologue_issue(self, p, upto=None):
        lim = self.P0 if upto is None else upto
        while self.qi < len(self.queue):
            kind, idx, g = self.queue[self.qi]
            st = idx if kind == "w" else idx // self.SUB
            if st >= lim or not self._allowed(self.queue[self.qi], 0):
                break
            self._count(g, (kind, idx))
            p.I("\n".join(g))
            self.qi += 1

    def take_prefill(self, nst):
        pre = [g for k, i, g in self.queue if k == "w" and i < nst]
        self.queue = [q for q in self.queue if not (q[0] == "w" and q[1] < nst)]
        self.pre_landed = set(range(nst))
        return pre

    def extra_vm(self, tag, n=1):
        for _ in range(n):
            self.issued.append(tag)

    def wait_for(self, tag):
        return self._need({tag})

    def start(self, p):
        self.landed = set(self.vsteps[0].wneed) | getattr(self, "pre_landed", set())
        n = self._need({("w", w) for w in self.landed})
        pstamp(p, 3)
        p.I(f"s_waitcnt vmcnt({min(n,63)})")
        pstamp(p, 4)
        p.I("s_barrier")
        self.nbar = 1
        stamp(p, 1)
        if STAMP == 2:
            p.I("s_memtime s[80:81]")
        for g in self.vsteps[0].reads:
            p.I("\n".join(g))

    def body(self, p):
        import math
        U = self.U
        vs = self.vsteps
        N = len(vs)
        steps = []
        xl = set()
        per_mfma = self.full_len / self.tot_mfma
        for i, v in enumerate(vs):
            txt = []
            tags = {("x", x) for x in v.xneed if x not in xl}
            xl |= set(v.xneed)
            nxt = vs[i + 1] if i + 1 < N else None
            neww = [w for w in (nxt.wneed if nxt else []) if w not in self.landed]
            tags |= {("w", w) for w in neww}
            for j in range(self.qi, len(self.queue)):
                assert (self.queue[j][0], self.queue[j][1]) not in tags, "load not issued in time"
            if tags:
                n = min(self._need(tags), 63)
                txt.append(f"s_waitcnt vmcnt({n}) lgkmcnt(0)")
            else:
                txt.append("s_waitcnt lgkmcnt(0)")
            freeable = [w for w, l in self.w_last.items()
                        if l <= i and w not in self.w_free and w + self.S < self.NST]
            if neww or freeable:
                txt.append("s_barrier")
                self.nbar += 1
                self.landed |= set(neww)
                self.w_free |= {w for w, l in self.w_last.items() if l <= i}
            if STAMP == 2:
                sv = STEPV[self.tag[:2]]
                txt += [f"v_writelane_b32 v{sv}, s80, {i}", "s_memtime s[80:81]"]
            vm = []
            budget = int(math.ceil(per_mfma * len(v.mfmas) * self.RATE))
            while self.qi < len(self.queue) and budget > 0 and self._allowed(self.queue[self.qi], i):
                vm.append(self.queue[self.qi])
                self.qi += 1
                budget -= 1
            vm += [("e", i, g) for g in v.extra]
            body, order = merge_step(v.mfmas, nxt.reads if nxt else [], vm, self.lead, self.tail_free)
            for kind, idx, g in order:
                self._count(g, (kind, idx))
            txt += body
            if v.post:
                txt += v.post(self) if callable(v.post) else v.post
            steps.append(txt)
        best = (0, 0)
        for t0 in range(0, max(0, N - U)):
            n = 0
            while t0 + (n + 1) * U <= N and all(steps[t0 + n * U + j] == steps[t0 + j] for j in range(U)):
                n += 1
            if n > best[1]:
                best = (t0, n)
        t0, n = best
        if n < 2:
            t0, n = 0, 0
        for t in range(t0):
            p.I("\n".join(steps[t]))
        if n:
            p.I(f"s_mov_b32 s{self.cnt_sreg}, {n}")
            p.label(f"L_{self.tag}_loop")
            for j in range(U):
                s = list(steps[t0 + j])
                if j == U - 1:
                    assert s[-1].startswith("v_mfma")
                    s = s[:-1] + [f"s_sub_u32 s{self.cnt_sreg}, s{self.cnt_sreg}, 1",
                                  f"s_cmp_lg_u32 s{self.cnt_sreg}, 0"] + s[-1:]
                p.I("\n".join(s))
            p.I(f"s_cbranch_scc1 L_{self.tag}_loop")
        for t in range(t0 + n * U, N):
            p.I("\n".join(steps[t]))
        print(self.tag, "loop: t0", t0, "iters", n, "of", U, "vsteps", N, file=sys.stderr)
        stamp(p, 2)


MFMA = "v_mfma_f32_16x16x32_bf16"


WGMAP_4x8 = """
    s_and_b32 s3, s2, 7            ; xcd
    s_lshr_b32 s4, s2, 3           ; idx 0..31
    s_and_b32 s5, s3, 3
    s_lshl_b32 s5, s5, 2
    s_and_b32 s6, s4, 3
    s_add_u32 s5, s5, s6
    s_lshr_b32 s6, s3, 2
    s_lshl_b32 s6, s6, 3
    s_lshr_b32 s7, s4, 2
    s_add_u32 s6, s6, s7
"""
LANES = """
    v_lshrrev_b32 v2, 6, v0
    v_and_b32 v1, 63, v0           ; lane
    v_readfirstlane_b32 s7, v2     ; wave
    v_and_b32 v3, 15, v1           ; m / i
    v_lshrrev_b32 v4, 4, v1        ; g
"""


def gen_k3():
    name = "k3_wo_kernel"
    KB = D // 32
    SUB, S = 2, K3_S
    RX = S * SUB
    TAB = S * 8192
    ZERO = TAB + 4096
    p = Prog()
    head(p, name, 256)
    p.I(WGMAP_4x8)
    p.I(LANES)
    p.I(f"""
    s_cmp_eq_u32 s7, 4
    s_cbranch_scc1 L_{name}_helper
    """)
    ACC, ACCM, RES = 32, 84, 64
    V_X, V_W0, V_W1, V_TAB = 5, 7, 8, 9
    V_RA = 10
    p.I(f"""
    v_lshlrev_b32 v{V_X}, 4, v1
    s_lshl_b32 s8, s5, 3
    s_lshl_b32 s9, s7, 1
    s_add_u32 s8, s8, s9           ; mb0
    s_lshl_b32 s9, s8, 15          ; (mb0/2)*64KB
    v_add_u32 v6, s9, v{V_X}
    s_and_b32 s14, s3, {3 if ROT else 0}
    s_lshl_b32 s44, s14, 14
    v_lshrrev_b32 v14, 3, v1
    v_lshrrev_b32 v15, 1, v14
    v_and_b32 v15, 3, v15          ; f
    v_bfe_u32 v16, v1, 1, 2        ; pos>>1
    v_xor_b32 v16, v16, v15        ; unit
    v_and_b32 v17, 1, v1
    v_lshlrev_b32 v16, 5, v16
    v_lshl_add_u32 v16, v17, 4, v16
    v_lshl_add_u32 v14, s7, 4, v14
    v_lshl_add_u32 v{V_W0}, v14, 11, v16
    s_lshl_b32 s9, s6, 7
    v_add_u32 v{V_W0}, s9, v{V_W0} ; + cb*128
    v_add_u32 v{V_W1}, {8*2048-1024}, v{V_W0}
    s_lshl_b32 s45, s14, 19
    s_lshl_b32 s46, s7, 11
    s_waitcnt lgkmcnt(0)
    """)
    srd(p, 40, P_WO, 0, D * D * 2)
    srd(p, 36, P_WS, WS_O, S_TOK * D * 2)

    AX, AW, AM = 0, RX * 8, RX * 8 + 64

    def wdma(st):
        slot = st % S
        g0 = [f"s_add_u32 m0, s46, {slot*8192}"]
        if st:
            g0.append(f"s_add_u32 s45, s45, {64*2048}")
            g0.append(f"s_and_b32 s45, s45, {D*D*2-1:#x}")
        g0.append(f"buffer_load_dwordx4 v{V_W0}, s[40:43], s45 offen lds")
        return [g0, [f"buffer_load_dwordx4 v{V_W1}, s[40:43], s45 offen offset:1024 lds"]]

    def xload(t):
        a = AX + (t % RX) * 8
        o = (t & 1) * 2048
        g = [[f"buffer_load_dwordx4 a[{a}:{a+3}], v6, s[36:39], s44 offen offset:{o}"],
             [f"buffer_load_dwordx4 a[{a+4}:{a+7}], v6, s[36:39], s44 offen offset:{o+1024}"]]
        if t & 1:
            g[-1] += ["s_add_u32 s44, s44, 4096", "s_and_b32 s44, s44, 0xffff"]
        return g

    vs = []
    for st in range(KB // 2):
        rd, mf = [], []
        for sub in range(2):
            t = 2 * st + sub
            base = (st % S) * 8192 + sub * 4096
            aw = AW + (st & 1) * 32 + sub * 16
            am = AM + (st & 1) * 8 + sub * 4
            ax = AX + (t % RX) * 8
            for u in range(4):
                for hh in range(2):
                    rd.append([f"ds_read_b64_tr_b16 a[{aw+4*u+2*hh}:{aw+4*u+2*hh+1}], v{V_RA+u} offset:{base+hh*2048}"])
            rd.append([f"ds_read_b128 a[{am}:{am+3}], v{V_TAB} offset:{64*t}"])
            for u in range(4):
                for tb in range(2):
                    c = ACC + (tb * 4 + u) * 4
                    cin = "0" if t == 0 else f"v[{c}:{c+3}]"
                    mf.append(f"{MFMA} v[{c}:{c+3}], a[{aw+4*u}:{aw+4*u+3}], a[{ax+4*tb}:{ax+4*tb+3}], {cin}")
            for tb in range(2):
                c = ACCM + 4 * tb
                cin = "0" if t == 0 else f"v[{c}:{c+3}]"
                mf.append(f"{MFMA} v[{c}:{c+3}], a[{am}:{am+3}], a[{ax+4*tb}:{ax+4*tb+3}], {cin}")
        vs.append(VStep(mf, rd, [2 * st, 2 * st + 1], [st]))

    L = Loop(name, vs, KB // 2, SUB, S, RX, 8, wdma, xload, cnt_sreg=47, lead=1, tail_free=6, P0=K3_P0, RATE=K3_RATE)
    pstamp(p, 0)
    L.prologue_issue(p, upto=1)
    srd(p, 60, P_WS, WS_RM, 4096)
    srd(p, 48, P_X, 0, S_TOK * D * 2)
    srd(p, 56, P_WS, WS_MX, S_TOK * 4)
    p.I(f"""
    s_lshl_b32 s9, s7, 10
    s_add_u32 m0, s9, {TAB}
    s_lshl_b32 s10, s14, 9
    s_add_u32 s10, s10, s9
    v_add_u32 v21, s10, v{V_X}
    v_and_b32 v21, 0x7ff, v21
    s_and_b32 s9, s9, 0x800
    v_lshlrev_b32 v20, 11, v3
    buffer_load_dwordx4 v21, s[60:63], s9 offen lds
    v_lshl_add_u32 v20, v4, 3, v20
    s_lshl_b32 s9, s8, 15          ; mb0*16*2048
    s_lshl_b32 s10, s6, 7
    s_add_u32 s9, s9, s10          ; + cb*128
    s_add_u32 s10, s9, 32768
    v_lshlrev_b32 v21, 2, v3
    s_lshl_b32 s11, s8, 6
    """)
    L.extra_vm(("w", 0), 1)
    p.I("buffer_load_dword v80, v21, s[56:59], s11 offen")
    p.I("buffer_load_dword v82, v21, s[56:59], s11 offen offset:64")
    L.extra_vm("res", 2)
    IRES = KB // 2 - S + envint('K3_RESLAG', 1)
    for tb in range(2):
        for u in range(4):
            r = RES + (tb * 4 + u) * 2
            vs[IRES].extra.append([f"buffer_load_dwordx2 v[{r}:{r+1}], v20, s[48:51], s{9+tb} offen offset:{32*u}{INPOL}"])
    L.prologue_issue(p, upto=min(3, K3_P0))
    hop(p, name)
    L.prologue_issue(p)
    p.I(f"""
    v_lshrrev_b32 v14, 2, v3       ; r
    v_and_b32 v15, 3, v3           ; c
    v_lshl_add_u32 v16, v4, 2, v14 ; 4g+r
    v_lshrrev_b32 v17, 1, v16
    v_and_b32 v17, 3, v17          ; f
    v_lshlrev_b32 v16, 7, v16
    v_lshl_add_u32 v16, v15, 3, v16
    """)
    for u in range(4):
        p.I(f"""
        v_xor_b32 v18, {u}, v17
        v_lshl_add_u32 v{V_RA+u}, v18, 5, v16
        """)
    p.I(f"""
    v_min_u32 v14, 2, v15
    v_lshlrev_b32 v14, 11, v14
    v_lshl_add_u32 v14, v4, 4, v14
    v_add_u32 v{V_TAB}, {TAB}, v14
    v_mov_b32 v16, 0
    v_mov_b32 v17, 0
    v_lshlrev_b32 v14, 3, v0
    v_add_u32 v14, {ZERO}, v14
    ds_write_b64 v14, v[16:17]
    ds_write_b64 v14, v[16:17] offset:2048
    """)
    srd(p, 52, P_WS, WS_H, S_TOK * D * 2)
    srd(p, 56, P_WS, WS_ST, S_TOK * 64)
    srd(p, 60, P_WS, WS_MEAN, S_TOK * 4)
    p.I("s_waitcnt lgkmcnt(0)")
    L.start(p)
    L.body(p)
    p.I("s_waitcnt vmcnt(0)")
    p.I(f"""
    s_lshr_b32 s9, s8, 2
    s_lshl_b32 s9, s9, 17
    s_lshl_b32 s10, s6, 13
    s_add_u32 s9, s9, s10
    s_and_b32 s10, s8, 3
    s_lshl_b32 s10, s10, 10
    s_add_u32 s9, s9, s10
    s_add_u32 s10, s9, 4096
    v_add_f32 v24, v{ACCM}, v{ACCM+1}
    v_add_f32 v26, v{ACCM+4}, v{ACCM+5}
    v_add_f32 v24, v24, v80
    v_add_f32 v26, v26, v82
    """)
    for q in range(16):
        d = 24 + 2 * (q // 8)
        t = 10 + 2 * (q & 3)
        p.I(f"v_lshlrev_b32 v{t}, 16, v{RES+q}")
        p.I(f"v_and_b32 v{t+1}, 0xffff0000, v{RES+q}")
        p.I(f"v_pk_add_f32 v[{t}:{t+1}], v[{t}:{t+1}], v[{d}:{d+1}] op_sel_hi:[1,0] neg_lo:[0,1] neg_hi:[0,1]")
        p.I(f"v_pk_add_f32 v[{ACC+2*q}:{ACC+2*q+1}], v[{ACC+2*q}:{ACC+2*q+1}], v[{t}:{t+1}]")
    for q in range(16):
        p.I(f"v_cvt_pk_bf16_f32 v{RES+q}, v{ACC+2*q}, v{ACC+2*q+1}")
        if q % 4 == 3:
            tb, j = divmod(q // 4, 2)
            r = RES + (tb * 2 + j) * 4
            p.I(f"buffer_store_dwordx4 v[{r}:{r+3}], v{V_X}, s[52:55], s{9+j} offen offset:{1024*tb}{STPOL}")
    for q in range(16):
        p.I(f"v_lshlrev_b32 v{ACC+2*q}, 16, v{RES+q}")
        p.I(f"v_and_b32 v{ACC+2*q+1}, 0xffff0000, v{RES+q}")
    for tb in range(2):
        b = ACC + tb * 16
        a = 20 + 2 * tb
        p.I(f"v_pk_mul_f32 v[{a}:{a+1}], v[{b}:{b+1}], v[{b}:{b+1}]")
        for i in range(2, 16, 2):
            p.I(f"v_pk_fma_f32 v[{a}:{a+1}], v[{b+i}:{b+i+1}], v[{b+i}:{b+i+1}], v[{a}:{a+1}]")
    p.I("""
    v_add_f32 v20, v20, v21
    v_add_f32 v21, v22, v23
    """)
    xgroup_reduce_multi(p, [20, 21], [22, 23], "v_add_f32")
    p.I(f"""
    v_lshlrev_b32 v22, 6, v3       ; m*64
    s_lshl_b32 s9, s8, 10          ; mb0*16*64
    s_lshl_b32 s10, s6, 2
    s_add_u32 s9, s9, s10
    v_lshlrev_b32 v23, 2, v3
    v_cmp_gt_u32 vcc, 16, v1
    s_and_saveexec_b64 s[12:13], vcc
    buffer_store_dword v20, v22, s[56:59], s9 offen{STPOL}
    buffer_store_dword v21, v22, s[56:59], s9 offen offset:1024{STPOL}
    s_cmp_lg_u32 s6, 0
    s_cbranch_scc1 L_{name}_nomean
    buffer_store_dword v24, v23, s[60:63], s11 offen{STPOL}
    buffer_store_dword v26, v23, s[60:63], s11 offen offset:64{STPOL}
    """)
    p.label(f"L_{name}_nomean")
    stamp_out(p, 3, 4)
    p.I("s_endpgm")
    p.label(f"L_{name}_helper")
    p.I(f"""
    v_lshlrev_b32 v5, 7, v1
    v_mov_b32 v6, 0x7fffffff
    v_cmp_gt_u32 vcc, 56, v1
    s_mul_i32 s8, s2, 7168
    s_add_u32 s8, s8, {512*7168}
    s_add_u32 s9, s8, {256*7168}
    v_cndmask_b32 v5, v6, v5, vcc
    s_waitcnt lgkmcnt(0)
    """)
    srd(p, 36, P_WG, 0, D * F * 2)
    srd(p, 40, P_WU, 0, D * F * 2)
    seq = [(36, 8), (40, 8), (36, 9), (40, 9)][:PF3]
    for i in range(L.nbar):
        p.I("s_barrier")
        if i == PF3T:
            for j, (sr_, so) in enumerate(seq):
                p.I(f"buffer_load_dword v{8+j}, v5, s[{sr_}:{sr_+3}], s{so} offen")
    tail(p, name)
    return name, p, kernel_desc(name, 96 + RX * 8 + 80, 96), (256, 320, ZERO + 4096)


def gen_k5():
    name = "k5_down_kernel"
    KBT = F // 32
    KB = KBT // 2
    SUB, S = 2, K5_S
    RX = S * SUB
    U = S * SUB
    R = K5_R
    STG = 16384
    p = Prog()
    head(p, name, 256)
    p.I("""
    s_and_b32 s3, s2, 7            ; xcd
    s_lshr_b32 s4, s2, 3           ; idx 0..31
    s_and_b32 s5, s3, 3
    s_lshl_b32 s5, s5, 2
    s_and_b32 s6, s4, 3
    s_add_u32 s5, s5, s6
    s_lshr_b32 s6, s4, 2
    s_lshr_b32 s12, s3, 2          ; kh
    """)
    p.I(LANES)
    ACC, RES = 32, 96
    V_X = 5
    V_W = 7
    V_RA = 12
    p.I(f"""
    v_lshlrev_b32 v{V_X}, 4, v1
    s_lshl_b32 s8, s5, 3
    s_lshl_b32 s9, s7, 1
    s_add_u32 s8, s8, s9           ; mb0
    s_mul_i32 s44, s8, {KBT*1024}
    s_mul_i32 s9, s12, {KB*2048}
    s_add_u32 s44, s44, s9
    v_add_u32 v6, s44, v{V_X}
    s_and_b32 s14, s3, {3 if ROT else 0}
    s_mul_i32 s44, s14, {7*4096}
    v_bfe_u32 v28, v1, 1, 3        ; pos>>1
    v_xor_b32 v28, v28, v4         ; ^ (l>>4)      (j even)
    v_xor_b32 v29, 4, v28          ;               (j odd)
    v_and_b32 v30, 1, v1
    v_lshlrev_b32 v30, 4, v30
    v_lshl_add_u32 v31, s7, 4, v4  ; row 16w + (l>>4)
    v_lshl_add_u32 v30, v31, 11, v30
    s_lshl_b32 s45, s6, 8          ; cb*256
    s_mul_i32 s9, s12, {KB*32*2048}
    s_add_u32 s45, s45, s9
    v_add_u32 v30, s45, v30
    v_lshl_add_u32 v{V_W}, v28, 5, v30
    v_lshl_add_u32 v{V_W+1}, v29, 5, v30
    v_add_u32 v{V_W+2}, {8*2048-2048}, v{V_W}
    v_add_u32 v{V_W+3}, {12*2048-3072}, v{V_W+1}
    v_add_u32 v{V_W+1}, {4*2048-1024}, v{V_W+1}
    s_mul_i32 s45, s14, {7*64*2048}
    s_sub_u32 s45, s45, {64*2048}
    s_lshl_b32 s46, s7, 12
    s_waitcnt lgkmcnt(0)
    """)
    srd(p, 40, P_WD, 0, F * D * 2)
    srd(p, 36, P_WS, WS_ACT, S_TOK * F * 2)

    AX, AW = 0, 128

    def wdma(st):
        slot = st % S
        g = [[f"s_add_u32 m0, s46, {slot*STG}", f"s_add_u32 s45, s45, {64*2048}",
              f"s_cmp_lg_u32 s45, {FAKE5*64*2048}", "s_cselect_b32 s45, s45, 0",
              f"buffer_load_dwordx4 v{V_W}, s[40:43], s45 offen lds"]]
        for j in range(1, 4):
            g.append([f"buffer_load_dwordx4 v{V_W+j}, s[40:43], s45 offen offset:{1024*j} lds"])
        return g

    def xload(t):
        a = AX + (t % RX) * 8
        o = (t & 1) * 2048
        g = [[f"buffer_load_dwordx4 a[{a}:{a+3}], v6, s[36:39], s44 offen offset:{o}"],
             [f"buffer_load_dwordx4 a[{a+4}:{a+7}], v6, s[36:39], s44 offen offset:{o+1024}"]]
        if t & 1:
            g[-1] += ["s_add_u32 s44, s44, 4096", f"s_cmp_lg_u32 s44, {FAKE5*4096}", "s_cselect_b32 s44, s44, 0"]
        return g

    def rd(t, u, areg):
        st, sub = divmod(t, SUB)
        slot = st % S
        hi = 8 if slot >= 4 else 0
        base = (slot % 4) * STG + sub * 8192
        return [[f"ds_read_b64_tr_b16 a[{areg+2*hh}:{areg+2*hh+1}], v{V_RA+hi+u} offset:{base+hh*4096}"] for hh in range(2)]

    def mf(t, u, areg):
        ax = AX + (t % RX) * 8
        out = []
        for tb in range(2):
            c = ACC + (tb * 8 + u) * 4
            cin = "0" if (t == 0 and u >= 4) else f"v[{c}:{c+3}]"
            out.append(f"{MFMA} v[{c}:{c+3}], a[{areg}:{areg+3}], a[{ax+4*tb}:{ax+4*tb+3}], {cin}")
        return out

    send = []
    for tb in range(2):
        for u in range(4):
            c = ACC + (tb * 8 + 4 + u) * 4
            send.append([f"buffer_store_dwordx4 v[{c}:{c+3}], v{V_X}, s[56:59], s{9+tb} offen offset:{1024*u} sc0 sc1"])
    vs = []
    items = []
    if K5_MODE == 1:
        for i in range(KB + R):
            it = []
            if i < KB:
                it.append((i, 4))
            if i >= R:
                it.append((i - R, 0))
            items.append(it)
    else:
        items = [[(t, 4), (t, 0)] for t in range(KB - R)]
        items += [[(t, 4)] for t in range(KB - R, KB)] + [[(t, 0)] for t in range(KB - R, KB)]
    merged = []
    for it in items:
        if merged and len(merged[-1]) == 1 and len(it) == 1:
            merged[-1] = merged[-1] + it
        else:
            merged.append(list(it))
    i_own = None
    for it in merged:
        aw = AW + (len(vs) & 1) * 32
        r_, m_ = [], []
        f = 0
        for t, half in it:
            for uu in range(4):
                r_ += rd(t, half + uu, aw + 4 * f)
                m_ += mf(t, half + uu, aw + 4 * f)
                f += 1
        if i_own is None and all(h == 0 for _, h in it):
            i_own = len(vs)
        vs.append(VStep(m_, r_, sorted({t for t, _ in it}), sorted({t // 2 for t, _ in it})))
    if R:
        vs[i_own].extra = send
        fl = min(i_own + K5_FLAGLAG, len(vs) - 1)
        vs[fl].post = ["s_waitcnt vmcnt(0)", "buffer_store_dword v29, v28, s[60:63], s15 offen sc0 sc1"]

    L = Loop(name, vs, KB // 2, SUB, S, RX, U, wdma, xload, cnt_sreg=47, lead=1, tail_free=5, P0=K5_P0, RATE=K5_RATE)
    pstamp(p, 0)
    L.prologue_issue(p, upto=1)
    srd(p, 48, P_WS, WS_H, S_TOK * D * 2)
    srd(p, 56, P_WS, WS_MEAN, S_TOK * 4)
    p.I(f"""
    s_lshr_b32 s9, s8, 2
    s_lshl_b32 s9, s9, 17
    s_lshl_b32 s10, s6, 14
    s_add_u32 s9, s9, s10
    s_lshl_b32 s10, s12, 13
    s_add_u32 s9, s9, s10
    s_and_b32 s10, s8, 3
    s_lshl_b32 s10, s10, 10
    s_add_u32 s9, s9, s10
    s_add_u32 s10, s9, 4096
    v_lshlrev_b32 v28, 2, v3
    s_lshl_b32 s11, s8, 6
    """)
    for tb in range(2):
        for j in range(2):
            r = RES + (tb * 2 + j) * 4
            p.I(f"buffer_load_dwordx4 v[{r}:{r+3}], v{V_X}, s[48:51], s{9+j} offen offset:{1024*tb}")
    p.I("buffer_load_dword v112, v28, s[56:59], s11 offen")
    p.I("buffer_load_dword v114, v28, s[56:59], s11 offen offset:64")
    L.extra_vm("res", 6)
    L.prologue_issue(p, upto=min(3, K5_P0))
    hop(p, name)
    L.prologue_issue(p)
    p.I(f"""
    v_lshrrev_b32 v28, 2, v3       ; r
    v_and_b32 v29, 3, v3           ; c
    v_lshl_add_u32 v30, v4, 2, v28 ; 4g+r
    v_and_b32 v31, 7, v30          ; f
    s_lshl_b32 s9, s12, 2
    v_xor_b32 v31, s9, v31
    v_lshlrev_b32 v30, 8, v30
    v_lshl_add_u32 v30, v29, 3, v30
    v_lshl_add_u32 v30, v31, 5, v30
    """)
    for u in range(8):
        p.I(f"""
        v_xor_b32 v{V_RA+u}, {32*u}, v30
        v_add_u32 v{V_RA+8+u}, {4*STG}, v{V_RA+u}
        """)
    srd(p, 52, P_OUT, 0, S_TOK * D * 2)
    srd(p, 56, P_WS, WS_EX, 256 * 32768)
    srd(p, 60, P_WS, WS_FLAG, 1024 * 128)
    p.I(f"""
    s_lshl_b32 s9, s2, 15
    s_lshl_b32 s10, s7, 13
    s_add_u32 s9, s9, s10
    s_add_u32 s10, s9, 4096
    s_xor_b32 s13, s9, {4<<15}
    s_add_u32 s14, s13, 4096
    s_lshl_b32 s15, s2, 9
    s_lshl_b32 s3, s7, 7
    s_add_u32 s15, s15, s3
    s_xor_b32 s3, s15, {4<<9}
    v_mov_b32 v28, 0
    v_mov_b32 v29, 1
    v_lshlrev_b32 v30, 11, v3      ; m*2048
    v_and_b32 v31, 1, v4
    v_lshl_add_u32 v30, v31, 5, v30
    v_lshrrev_b32 v31, 1, v4
    v_lshl_add_u32 v30, v31, 4, v30   ; (g>>1)*16B
    """)
    p.I(f"s_waitcnt vmcnt({min(63, L.wait_for('res'))})")
    for tb in range(2):
        for q in range(8):
            c = ACC + tb * 32 + 2 * q
            p.I(f"v_lshlrev_b32 v{c}, 16, v{RES+tb*8+q}")
            p.I(f"v_and_b32 v{c+1}, 0xffff0000, v{RES+tb*8+q}")
        for q in range(8):
            c = ACC + tb * 32 + 2 * q
            mx = 112 + 2 * tb
            p.I(f"v_pk_add_f32 v[{c}:{c+1}], v[{c}:{c+1}], v[{mx}:{mx+1}] op_sel_hi:[1,0]")
    L.start(p)
    L.body(p)
    if not R:
        for g in send:
            p.I("\n".join(g))
        p.I("s_waitcnt vmcnt(0)\nbuffer_store_dword v29, v28, s[60:63], s15 offen sc0 sc1")
    p.label(f"L_{name}_poll")
    p.I(f"""
    buffer_load_dword v31, v28, s[60:63], s3 offen sc0 sc1
    s_waitcnt vmcnt(0)
    v_readfirstlane_b32 s4, v31
    s_cmp_eq_u32 s4, 1
    s_cbranch_scc0 L_{name}_poll
    """)
    for tb in range(2):
        for u in range(4):
            c = ACC + (tb * 8 + 4 + u) * 4
            p.I(f"buffer_load_dwordx4 v[{c}:{c+3}], v{V_X}, s[56:59], s{13+tb} offen offset:{1024*u} sc0 sc1")
    p.I(f"""
    s_lshl_b32 s9, s8, 15
    s_lshl_b32 s10, s6, 8
    s_add_u32 s9, s9, s10
    s_lshl_b32 s10, s12, 7
    s_add_u32 s9, s9, s10
    s_add_u32 s10, s9, 32768
    """)
    for tb in range(2):
        for j in range(2):
            p.I(f"s_waitcnt vmcnt({6 - 2*(tb*2+j) + (tb*2+j)})")
            r = RES + (tb * 2 + j) * 4
            for uu in range(2):
                u = 2 * j + uu
                c = ACC + (tb * 8 + u) * 4
                o = ACC + (tb * 8 + 4 + u) * 4
                p.I(f"v_pk_add_f32 v[{c}:{c+1}], v[{c}:{c+1}], v[{o}:{o+1}]")
                p.I(f"v_pk_add_f32 v[{c+2}:{c+3}], v[{c+2}:{c+3}], v[{o+2}:{o+3}]")
                p.I(f"v_cvt_pk_bf16_f32 v{r+2*uu}, v{c}, v{c+1}")
                p.I(f"v_cvt_pk_bf16_f32 v{r+2*uu+1}, v{c+2}, v{c+3}")
            p.I(f"v_permlane16_swap_b32 v{r}, v{r+2}")
            p.I(f"v_permlane16_swap_b32 v{r+1}, v{r+3}")
            p.I(f"buffer_store_dwordx4 v[{r}:{r+3}], v30, s[52:55], s{9+tb} offen offset:{64*j}")
    stamp_out(p, 5, 4)
    tail(p, name)
    return name, p, kernel_desc(name, 256 + 192, 256), (256, 256, S * STG)


def gen_k4():
    name = "k4_ffn_kernel"
    KB = D // 32
    SUB, S, RX, U = 2, 4, 8, 8
    STG = 28672
    p = Prog()
    head(p, name, 256)
    p.I("""
    s_and_b32 s3, s2, 7            ; xcd
    s_lshr_b32 s4, s2, 3           ; idx 0..31
    s_and_b32 s5, s3, 3
    s_lshl_b32 s5, s5, 1
    s_and_b32 s6, s4, 1
    s_add_u32 s5, s5, s6
    s_lshr_b32 s6, s3, 2
    s_lshl_b32 s6, s6, 4
    s_lshr_b32 s7, s4, 1
    s_add_u32 s6, s6, s7
    """)
    p.I(LANES)
    V_X = 224
    V_W = 225
    V_RA = 232
    V_PF = 234
    V_ST = 235
    V_M = 236
    V_T = 240
    p.I(f"""
    v_lshlrev_b32 v{V_X}, 4, v1
    s_lshl_b32 s8, s5, 4
    s_lshl_b32 s9, s7, 2
    s_add_u32 s8, s8, s9
    s_lshl_b32 s9, s8, 15          ; (mb0/4)*128KB
    v_add_u32 v237, s9, v{V_X}
    s_and_b32 s3, s3, {3 if ROT else 0}
    s_lshl_b32 s44, s3, 15
    s_and_b32 s10, s6, 1
    s_and_b32 s11, s7, 1
    s_mul_i32 s13, s6, 224
    s_mul_i32 s12, s11, {32*F*2}
    s_add_u32 s13, s13, s12
    s_movk_i32 s14, {F*2}
    s_mov_b32 s15, 0x4925          ; ceil(2^18/14)
    """)
    def lines(j):
        t = 8 + 4 * j
        return f"""
        v_add_u32 v{t}, {64*j}, v1
        v_mul_u32_u24 v{t+1}, s15, v{t}
        v_lshrrev_b32 v{t+1}, 18, v{t+1}
        v_mul_u32_u24 v{t+2}, 14, v{t+1}
        v_sub_u32 v{t+2}, v{t}, v{t+2}
        v_lshrrev_b32 v{t+3}, 1, v{t+2}
        v_add_u32 v{t+3}, s10, v{t+3}
        v_cmp_eq_u32 s[{48+2*j}:{49+2*j}], 7, v{t+3}
        v_and_b32 v{t+2}, 1, v{t+2}
        v_mul_u32_u24 v{t+1}, s14, v{t+1}
        v_cndmask_b32 v{t+3}, v{t+3}, 0, s[{48+2*j}:{49+2*j}]
        v_lshlrev_b32 v{t+3}, 5, v{t+3}
        v_lshl_add_u32 v{t+3}, v{t+2}, 4, v{t+3}
        v_add3_u32 v{V_W+j}, v{t+1}, v{t+3}, s13
        v_subrev_u32 v{V_W+j}, {1024*(j%4)}, v{V_W+j}
        """.strip().split("\n")
    ls = [lines(j) for j in range(7)]
    for i in range(len(ls[0])):
        for j in range(7):
            if "v_subrev_u32" in ls[j][i] and j % 4 == 0:
                continue
            p.I(ls[j][i])
    p.I(f"""
    s_mul_i32 s45, s3, {256*F*2}
    s_sub_u32 s45, s45, {64*F*2}
    s_lshr_b32 s12, s7, 1
    s_mul_i32 s46, s7, 7168
    s_waitcnt lgkmcnt(0)
    s_cmp_eq_u32 s12, 1
    s_cselect_b32 s40, s{P_WU}, s{P_WG}
    s_cselect_b32 s41, s{P_WU+1}, s{P_WG+1}
    s_mov_b32 s42, {D*F*2}
    s_mov_b32 s43, 0x00020000
    """)
    srd(p, 36, P_WS, WS_H, S_TOK * D * 2)

    AX, AW = 0, 128

    def wdma(st):
        slot = st % S
        g = []
        for j in range(7):
            pre = []
            if j == 0:
                pre = [f"s_add_u32 m0, s46, {slot*STG}", f"s_add_u32 s45, s45, {64*F*2}",
                       f"s_cmp_lg_u32 s45, {D*F*2}", "s_cselect_b32 s45, s45, 0"]
            if j == 4:
                g[-1].append(f"s_add_u32 m0, s46, {slot*STG+4096}")
            g.append(pre + [f"buffer_load_dwordx4 v{V_W+j}, s[40:43], s45 offen offset:{1024*(j%4)} lds"])
        return g

    def xload(t):
        a = AX + (t % RX) * 16
        g = [[f"buffer_load_dwordx4 a[{a+4*j}:{a+4*j+3}], v237, s[36:39], s44 offen offset:{1024*j}"] for j in range(4)]
        g[-1] += ["s_add_u32 s44, s44, 4096", "s_and_b32 s44, s44, 0x1ffff"]
        return g

    vs = []
    for t in range(KB):
        st, sub = divmod(t, 2)
        slot = st % S
        ra = V_RA + (slot >= 2)
        base = (slot % 2) * STG + sub * 7168
        a = AW + (t & 1) * 56
        ax = AX + (t % RX) * 16
        rd = []
        for s in range(14):
            mat, sl = divmod(s, 7)
            for hh in range(2):
                off = base + mat * 14336 + hh * 3584 + sl * 32
                rd.append([f"ds_read_b64_tr_b16 a[{a+4*s+2*hh}:{a+4*s+2*hh+1}], v{ra} offset:{off}"])
        order = [(s, tb) for s in range(14) for tb in range(4)]
        if t == KB - 1:
            order = [(s, tb) for tb in range(4) for s in range(14)]
        mf = []
        for s, tb in order:
            c = tb * 56 + s * 4
            cin = "0" if t == 0 else f"v[{c}:{c+3}]"
            mf.append(f"{MFMA} v[{c}:{c+3}], a[{a+4*s}:{a+4*s+3}], a[{ax+4*tb}:{ax+4*tb+3}], {cin}")
        extra = []
        if PF4 == 2 and t == KB - 7:
            extra.append([f"buffer_load_dword v239, v{V_PF}, s[52:55], s12 offen"])
        if PF4 == 1 and t < 28:
            extra.append([f"buffer_load_dword v239, v{V_PF}, s[52:55], s12 offen",
                          f"s_add_u32 s12, s12, 256"])
        if t == KB - 8:
            for j in range(4):
                extra.append([f"buffer_load_dwordx4 v[{V_T+4*j}:{V_T+4*j+3}], v{V_ST}, s[48:51], s9 offen offset:{16*j}"])
        vs.append(VStep(mf, rd, [t], [st], extra=extra))

    L = Loop(name, vs, KB // 2, SUB, S, RX, U, wdma, xload, cnt_sreg=47, lead=1, tail_free=8, P0=K4_P0, RATE=K4_RATE)
    pstamp(p, 0)
    L.prologue_issue(p, upto=1)
    hop(p, name)
    L.prologue_issue(p)
    p.I(f"""
    v_lshrrev_b32 v8, 2, v3
    v_and_b32 v9, 3, v3
    v_lshl_add_u32 v8, v4, 2, v8
    v_mul_u32_u24 v8, 224, v8
    v_lshl_add_u32 v{V_RA}, v9, 3, v8
    v_add_u32 v{V_RA+1}, {2*STG}, v{V_RA}
    v_lshlrev_b32 v{V_PF}, 7, v1
    v_mov_b32 v8, 0x7fffffff
    v_cmp_gt_u32 vcc, {2 if PF4 == 1 else 56}, v1
    v_lshlrev_b32 v{V_ST}, 6, v1
    v_lshlrev_b32 v{V_M}, 2, v3             ; m*4
    v_cndmask_b32 v{V_PF}, v8, v{V_PF}, vcc
    s_lshl_b32 s9, s8, 10                   ; mb0*16*64
    s_lshl_b32 s12, s2, 2
    s_add_u32 s12, s12, s7
    s_mul_i32 s12, s12, {28*256}
    """)
    srd(p, 48, P_WS, WS_ST, S_TOK * 64)
    srd(p, 52, P_WD, 0, F * D * 2)
    srd(p, 56, P_WS, WS_ACT, S_TOK * F * 2)
    L.start(p)
    L.body(p)
    p.I(f"s_waitcnt vmcnt({L.wait_for(('e', KB - 8))})")
    C1 = -2.0 * 1.4426950408889634 * 0.7978845608028654
    C2 = C1 * 0.044715
    T = V_T
    for j in range(1, 8):
        p.I(f"v_pk_add_f32 v[{T}:{T+1}], v[{T}:{T+1}], v[{T+2*j}:{T+2*j+1}]")
    p.I(f"""
    v_add_f32 v{T}, v{T}, v{T+1}
    v_mov_b32 v{T+1}, {f2u(1e-5):#x}
    v_fmac_f32 v{T+1}, 0x3a800000, v{T}       ; var+eps
    """)
    VR = 226
    for tb in range(4):
        p.I(f"ds_bpermute_b32 v{VR+2*tb}, v{V_M}, v{T+1} offset:{64*tb}")
    p.I(f"""
    s_mul_i32 s9, s6, 7
    s_add_u32 s12, s9, s10
    s_lshr_b32 s12, s12, 1
    s_add_u32 s13, s9, 6
    s_cmp_eq_u32 s10, 1
    s_cselect_b32 s13, s9, s13
    s_lshr_b32 s13, s13, 1
    s_mul_i32 s14, s8, {112*1024}
    s_lshl_b32 s12, s12, 11
    s_lshl_b32 s13, s13, 11
    s_add_u32 s12, s12, s14
    s_add_u32 s13, s13, s14
    s_lshl_b32 s14, s10, 3
    s_add_u32 s13, s13, s14
    s_add_u32 s11, s12, 4096
    s_mov_b32 s14, {f2u(C1):#x}
    s_mov_b32 s15, {f2u(C2):#x}
    s_waitcnt lgkmcnt(0)
    """)
    c1, c2 = T, T + 2
    for tb in range(4):
        vrr = VR + 2 * tb
        p.I(f"""
        v_rsq_f32 v{T+4}, v{vrr}
        v_rcp_f32 v{T+5}, v{vrr}
        v_mul_f32 v{c1}, s14, v{T+4}
        v_mul_f32 v{c2}, s15, v{T+4}
        v_mul_f32 v{c2}, v{c2}, v{T+5}
        """)
        o = 1024 * (tb & 1)
        for sl in range(7):
            g = tb * 56 + sl * 4
            u = tb * 56 + (7 + sl) * 4
            E = T + 8 + 4 * (sl & 1)
            for r in (0, 2):
                p.I(f"v_pk_mul_f32 v[{E+r}:{E+r+1}], v[{g+r}:{g+r+1}], v[{g+r}:{g+r+1}]")
            for r in (0, 2):
                p.I(f"v_pk_fma_f32 v[{E+r}:{E+r+1}], v[{E+r}:{E+r+1}], v[{c2}:{c2+1}], v[{c1}:{c1+1}] op_sel_hi:[1,0,0]")
            for r in (0, 2):
                p.I(f"v_pk_mul_f32 v[{E+r}:{E+r+1}], v[{E+r}:{E+r+1}], v[{g+r}:{g+r+1}]")
            for r in range(4):
                p.I(f"v_exp_f32 v{E+r}, v{E+r}")
            for r in (0, 2):
                p.I(f"v_pk_mul_f32 v[{u+r}:{u+r+1}], v[{u+r}:{u+r+1}], v[{g+r}:{g+r+1}]")
            for r in (0, 2):
                p.I(f"v_pk_fma_f32 v[{E+r}:{E+r+1}], v[{E+r}:{E+r+1}], v[{vrr}:{vrr+1}], v[{vrr}:{vrr+1}] op_sel_hi:[1,0,0]")
            for r in range(4):
                p.I(f"v_rcp_f32 v{E+r}, v{E+r}")
            for r in (0, 2):
                p.I(f"v_pk_mul_f32 v[{u+r}:{u+r+1}], v[{u+r}:{u+r+1}], v[{E+r}:{E+r+1}]")
            dq = tb * 56 + sl * 2
            p.I(f"v_cvt_pk_bf16_f32 v{dq}, v{u}, v{u+1}")
            p.I(f"v_cvt_pk_bf16_f32 v{dq+1}, v{u+2}, v{u+3}")
            if sl in (1, 3, 5):
                d0 = tb * 56 + (sl - 1) * 2
                so, oo = ("s12", o + 2048 * (sl // 2)) if sl < 5 else ("s11", o)
                p.I(f"buffer_store_dwordx4 v[{d0}:{d0+3}], v{V_X}, s[56:59], {so} offen offset:{oo}{STPOL}")
            if sl == 6:
                p.I(f"buffer_store_dwordx2 v[{dq}:{dq+1}], v{V_X}, s[56:59], s13 offen offset:{o}{STPOL}")
        if tb == 1:
            p.I(f"s_add_u32 s12, s12, {112*2048}")
            p.I(f"s_add_u32 s11, s11, {112*2048}")
            p.I(f"s_add_u32 s13, s13, {112*2048}")
    stamp_out(p, 4, 4)
    tail(p, name)
    return name, p, kernel_desc(name, 256 + 240, 256), (256, 256, S * STG)


def gen_k2():
    name = "k2_qkv_kernel"
    KB = D // 32
    SUB, S, RX, U = 2, 4, 8, 8
    STG = 24576
    HALO = S * STG
    p = Prog()
    head(p, name, 256)
    p.I(WGMAP_4x8)
    p.I(LANES)
    V_X = 5
    V_W = 7
    V_RA = 10
    V_HA = 18
    V_PF = 19
    ACC = 32
    ACCH = 128
    p.I(f"""
    v_lshlrev_b32 v{V_X}, 4, v1
    s_lshl_b32 s8, s5, 3
    s_lshl_b32 s9, s7, 1
    s_add_u32 s8, s8, s9
    s_lshl_b32 s9, s8, 15
    v_add_u32 v6, s9, v{V_X}
    s_and_b32 s14, s3, {3 if ROT else 0}
    s_lshl_b32 s44, s14, 14
    v_lshrrev_b32 v20, 3, v1        ; r8
    v_bfe_u32 v21, v1, 4, 1         ; (r8>>1)&1
    s_and_b32 s9, s7, 1
    s_lshl_b32 s9, s9, 1
    v_or_b32 v21, s9, v21           ; f
    v_bfe_u32 v22, v1, 1, 2
    v_xor_b32 v22, v22, v21         ; unit
    v_and_b32 v23, 1, v1
    v_lshlrev_b32 v22, 5, v22
    v_lshl_add_u32 v22, v23, 4, v22
    v_lshl_add_u32 v20, s7, 3, v20  ; row
    s_movk_i32 s9, 6144
    v_mul_u32_u24 v20, s9, v20
    s_lshl_b32 s9, s6, 7            ; hp*128
    v_add3_u32 v{V_W}, v20, v22, s9
    v_add_u32 v{V_W+1}, 1024, v{V_W}
    v_add_u32 v{V_W+2}, 2048, v{V_W}
    s_mul_i32 s45, s14, {256*6144}
    s_sub_u32 s45, s45, {32*6144}
    s_mul_i32 s46, s7, 3072
    s_waitcnt lgkmcnt(0)
    """)
    srd(p, 40, P_WQKV, 0, D * 3 * D * 2)
    srd(p, 36, P_WS, WS_XN, S_TOK * D * 2)

    AX, AW, AH = 0, 64, 160

    def accr(tb, part, u):
        return ACC + ((tb * 3 + part) * 4 + u) * 4

    def wdma(st):
        slot = st % S
        g = []
        for sub in range(2):
            for part in range(3):
                pre = []
                if part == 0:
                    pre = [f"s_add_u32 m0, s46, {slot*STG + sub*12288}", f"s_add_u32 s45, s45, {32*6144}"]
                    if sub == 0:
                        pre += [f"s_cmp_lg_u32 s45, {D*6144}", "s_cselect_b32 s45, s45, 0"]
                g.append(pre + [f"buffer_load_dwordx4 v{V_W+part}, s[40:43], s45 offen offset:{1024*part} lds"])
        return g

    def xload(t):
        a = AX + (t % RX) * 8
        o = (t & 1) * 2048
        g = [[f"buffer_load_dwordx4 a[{a}:{a+3}], v6, s[36:39], s44 offen offset:{o}"],
             [f"buffer_load_dwordx4 a[{a+4}:{a+7}], v6, s[36:39], s44 offen offset:{o+1024}"]]
        if t & 1:
            g[-1] += ["s_add_u32 s44, s44, 4096", "s_and_b32 s44, s44, 0xffff"]
        return g

    vs = []
    for t in range(KB):
        st, sub = divmod(t, 2)
        slot = st % S
        hi = 4 if slot >= 2 else 0
        base = (slot % 2) * STG + sub * 12288
        aw = AW + (t & 1) * 48
        ah = AH + (t & 1) * 4
        ax = AX + (t % RX) * 8
        rd = []
        for part in range(3):
            for u in range(4):
                for hh in range(2):
                    r = aw + (part * 4 + u) * 4 + 2 * hh
                    rd.append([f"ds_read_b64_tr_b16 a[{r}:{r+1}], v{V_RA+hi+u} offset:{base+part*1024+hh*512}"])
        rd.append([f"ds_read_b128 a[{ah}:{ah+3}], v{V_HA} offset:{(t%U)*1024}"] +
                  ([f"v_add_u32 v{V_HA}, {U*1024}, v{V_HA}"] if t % U == U - 1 else []))
        first = t == 0
        mf = []
        for part in range(3):
            for u in range(4):
                w = f"a[{aw+(part*4+u)*4}:{aw+(part*4+u)*4+3}]"
                for tb in range(2):
                    c = accr(tb, part, u)
                    x = f"a[{ax+4*tb}:{ax+4*tb+3}]"
                    cc = f"v[{c}:{c+3}]"
                    a_, b_ = (w, x) if part < 2 else (x, w)
                    mf.append(f"{MFMA} {cc}, {a_}, {b_}, {'0' if first else cc}")
        for part in (1, 2):
            w = f"a[{aw+(part*4)*4}:{aw+(part*4)*4+3}]"
            x = f"a[{ah}:{ah+3}]"
            cc = f"v[{ACCH+4*(part-1)}:{ACCH+4*(part-1)+3}]"
            a_, b_ = (w, x) if part < 2 else (x, w)
            mf.append(f"{MFMA} {cc}, {a_}, {b_}, {'0' if first else cc}")
        extra = []
        if PF2T <= t < PF2T + PF2:
            extra.append([f"buffer_load_dword v{26+t-PF2T}, v{V_PF}, s[48:51], s12 offen",
                          f"s_add_u32 s12, s12, {512*7168}"])
        vs.append(VStep(mf, rd, [t], [st], extra=extra))

    L = Loop(name, vs, KB // 2, SUB, S, RX, U, wdma, xload, cnt_sreg=47, lead=1, tail_free=4, P0=K2_P0, RATE=K2_RATE)
    pstamp(p, 0)
    L.prologue_issue(p, upto=1)
    p.I(f"""
    s_lshl_b32 s9, s5, 3
    s_sub_u32 s9, s9, 2
    s_max_i32 s9, s9, 0
    s_lshl_b32 s9, s9, 15           ; (mb>>1)*64KB
    s_add_u32 s9, s9, 1024          ; (mb&1)*1024
    s_lshl_b32 s10, s7, 11
    s_add_u32 s9, s9, s10           ; + w*2048
    v_add_u32 v25, s9, v{V_X}
    s_lshl_b32 s9, s14, 14
    s_lshl_b32 s10, s7, 10
    s_add_u32 s10, s10, {HALO}
    """)
    def halo_dma(j):
        p.I(f"s_add_u32 m0, s10, {4096*j}")
        if j:
            p.I("s_add_u32 s9, s9, 8192")
            p.I("s_and_b32 s9, s9, 0xffff")
        p.I(f"buffer_load_dwordx4 v25, s[36:39], s9 offen lds")
        L.extra_vm(("w", max(0, 2 * j - 1)), 1)
    halo_dma(0)
    halo_dma(1)
    L.prologue_issue(p, upto=min(2, K2_P0))
    hop(p, name)
    for j in range(2, 8):
        halo_dma(j)
    L.prologue_issue(p)
    p.I(f"""
    v_add_u32 v{V_HA}, {HALO}, v{V_X}
    v_lshrrev_b32 v20, 2, v3        ; r
    v_and_b32 v21, 3, v3            ; c
    v_lshrrev_b32 v23, 1, v20
    v_and_b32 v24, 1, v4
    v_lshl_or_b32 v23, v24, 1, v23  ; f
    v_xor_b32 v23, s7, v23          ; f ^ w
    v_mul_u32_u24 v22, 3072, v4
    v_lshl_add_u32 v22, v20, 7, v22
    v_lshl_add_u32 v22, v21, 3, v22
    v_lshl_add_u32 v22, v23, 5, v22
    """)
    for u in range(4):
        p.I(f"""
        v_xor_b32 v{V_RA+u}, {32*u}, v22
        v_add_u32 v{V_RA+4+u}, {2*STG}, v{V_RA+u}
        """)
    p.I(f"""
    v_lshlrev_b32 v{V_PF}, 7, v1
    v_mov_b32 v20, 0x7fffffff
    v_cmp_gt_u32 vcc, 56, v1
    s_lshl_b32 s12, s2, 1
    s_and_b32 s13, s7, 1
    s_add_u32 s12, s12, s13
    s_mul_i32 s12, s12, 7168
    v_cndmask_b32 v{V_PF}, v20, v{V_PF}, vcc
    s_cmp_ge_u32 s7, 2
    s_cselect_b32 s48, s{P_WU}, s{P_WG}
    s_cselect_b32 s49, s{P_WU+1}, s{P_WG+1}
    s_mov_b32 s50, {D*F*2}
    s_mov_b32 s51, 0x00020000
    """)
    srd(p, 52, P_WS, WS_O, S_TOK * D * 2)
    BIAS = 204
    EXA = 216
    NEG = f2u(-1e30)
    p.I(f"""
    v_lshlrev_b32 v20, 2, v4          ; 4g
    v_sub_u32 v20, v20, v3            ; 4g - m
    v_mov_b32 v21, {NEG:#x}
    s_or_b32 s9, s5, s7
    s_cmp_eq_u32 s9, 0
    s_cselect_b32 s9, 64, 2
    """)
    for r in range(4):
        p.I(f"""
        v_add_u32 v22, {r}, v20           ; d = j - m
        v_and_b32 v23, 1, v22
        v_lshl_add_u32 v24, v23, 8, v22
        v_cmp_ge_i32 vcc, 0, v24
        v_cndmask_b32 v{BIAS+8+r}, v21, 0, vcc
        v_lshlrev_b32 v23, 8, v23
        v_sub_u32 v24, v22, v23
        v_cmp_le_i32 vcc, 2, v24
        v_cndmask_b32 v{BIAS+4+r}, v21, 0, vcc
        v_cmp_le_i32 vcc, s9, v24
        v_cndmask_b32 v{BIAS+r}, v21, 0, vcc
        """)
    p.I(f"""
    s_lshr_b32 s9, s7, 1
    s_lshl_b32 s9, s9, 11
    s_and_b32 s10, s7, 1
    s_lshl_b32 s10, s10, 3
    s_add_u32 s9, s9, s10
    v_add_u32 v{EXA}, s9, v{V_X}
    v_xor_b32 v{EXA+1}, 8, v{EXA}
    v_xor_b32 v{EXA+2}, 0x800, v{EXA}
    v_xor_b32 v{EXA+3}, 0x800, v{EXA+1}
    """)
    L.start(p)
    L.body(p)
    QP = 136
    KP = 152
    VP = 176
    HP = 200

    def qp(hd, tb): return QP + (hd * 2 + tb) * 4
    def kp(hd, i): return KP + (hd * 3 + i) * 4
    def vp(hd, db, i): return VP + ((hd * 2 + db) * 3 + i) * 2

    def pack(hd, tb, parts):
        for db in range(2):
            for part, dst in ((0, qp(hd, tb) + 2 * db), (1, kp(hd, 1 + tb) + 2 * db), (2, vp(hd, db, 1 + tb))):
                if part not in parts:
                    continue
                c = accr(tb, part, 2 * hd + db)
                p.I(f"v_cvt_pk_bf16_f32 v{dst}, v{c}, v{c+1}")
                p.I(f"v_cvt_pk_bf16_f32 v{dst+1}, v{c+2}, v{c+3}")
    p.I(f"""
    s_lshl_b32 s9, s7, 12
    v_add_u32 v20, s9, v{EXA}
    v_add_u32 v21, s9, v{EXA+1}
    v_add_u32 v22, s9, v{EXA+2}
    v_add_u32 v23, s9, v{EXA+3}
    s_barrier
    """)
    for hd in range(2):
        pack(hd, 1, (1, 2))
    for i in range(4):
        p.I(f"v_cvt_pk_bf16_f32 v{HP+i}, v{ACCH+2*i}, v{ACCH+2*i+1}")
    for hd in range(2):
        for db in range(2):
            k = kp(hd, 2) + 2 * db
            v = vp(hd, db, 2)
            p.I(f"ds_write_b64 v{20+2*hd+db}, v[{k}:{k+1}] offset:4096")
            p.I(f"ds_write_b64 v{20+2*hd+db}, v[{v}:{v+1}] offset:{4096+1024}")
    p.I(f"ds_write_b64 v{EXA}, v[{HP}:{HP+1}]")
    p.I(f"ds_write_b64 v{EXA}, v[{HP+2}:{HP+3}] offset:1024")
    for hd in range(2):
        pack(hd, 1, (0,))
        pack(hd, 0, (0, 1, 2))
    p.I("""
    s_waitcnt lgkmcnt(0)
    s_barrier
    """)
    for hd in range(2):
        for db in range(2):
            k = kp(hd, 0) + 2 * db
            v = vp(hd, db, 0)
            p.I(f"ds_read_b64 v[{k}:{k+1}], v{20+2*hd+db}")
            p.I(f"ds_read_b64 v[{v}:{v+1}], v{20+2*hd+db} offset:1024")
    chains = [(0, 1), (1, 1), (0, 0), (1, 0)]
    SR = 32
    MX = 64
    TM = 72
    SM = 76
    PP = 84
    OO = 100
    CSC = f2u(32 ** -0.5 * 1.4426950408889634)
    p.I(f"s_mov_b32 s9, {CSC:#x}")
    p.I(f"s_mov_b32 s10, {CSC:#x}")
    p.I(f"s_mov_b32 s11, {CSC:#x}")
    for ci, (hd, tb) in enumerate(chains):
        s = SR + ci * 8
        q = qp(hd, tb)
        kc = kp(hd, 1 + tb)
        p.I(f"{MFMA} v[{s+4}:{s+7}], v[{kc}:{kc+3}], v[{q}:{q+3}], v[{BIAS+8}:{BIAS+11}]")
    for ci, (hd, tb) in enumerate(chains):
        s = SR + ci * 8
        q = qp(hd, tb)
        kv = kp(hd, tb)
        if ci == 2:
            p.I("s_waitcnt lgkmcnt(0)")
        b = BIAS + 4 * tb
        p.I(f"{MFMA} v[{s}:{s+3}], v[{kv}:{kv+3}], v[{q}:{q+3}], v[{b}:{b+3}]")
    mx = [MX + 2 * i for i in range(4)]
    for ci in range(4):
        s = SR + ci * 8
        p.I(f"v_max3_f32 v{mx[ci]}, v{s+4}, v{s+5}, v{s+6}")
    for ci in range(4):
        s = SR + ci * 8
        p.I(f"v_max3_f32 v{mx[ci]}, v{mx[ci]}, v{s+7}, v{s}")
        p.I(f"v_max3_f32 v{mx[ci]}, v{mx[ci]}, v{s+1}, v{s+2}")
        p.I(f"v_max_f32 v{mx[ci]}, v{mx[ci]}, v{s+3}")
    xgroup_reduce_multi(p, mx, [TM + i for i in range(4)], "v_max_f32")
    for ci in range(4):
        p.I(f"v_mul_f32 v{mx[ci]}, s9, v{mx[ci]}")
    for ci in range(4):
        s = SR + ci * 8
        for r in range(0, 8, 2):
            p.I(f"v_pk_fma_f32 v[{s+r}:{s+r+1}], v[{s+r}:{s+r+1}], s[10:11], v[{mx[ci]}:{mx[ci]+1}] op_sel_hi:[1,1,0] neg_lo:[0,0,1] neg_hi:[0,0,1]")
        for r in range(8):
            p.I(f"v_exp_f32 v{s+r}, v{s+r}")
    for ci, (hd, tb) in enumerate(chains):
        s = SR + ci * 8
        for r in range(4):
            p.I(f"v_cvt_pk_bf16_f32 v{PP+4*ci+r}, v{s+2*r}, v{s+2*r+1}")
    for ci, (hd, tb) in enumerate(chains):
        for db in range(2):
            v = vp(hd, db, tb)
            o = OO + ci * 8 + db * 4
            p.I(f"{MFMA} v[{o}:{o+3}], v[{v}:{v+3}], v[{PP+4*ci}:{PP+4*ci+3}], 0")
    sm = [SM + 2 * i for i in range(4)]
    for ci in range(4):
        s = SR + ci * 8
        p.I(f"v_pk_add_f32 v[{s}:{s+1}], v[{s}:{s+1}], v[{s+2}:{s+3}]")
        p.I(f"v_pk_add_f32 v[{s+4}:{s+5}], v[{s+4}:{s+5}], v[{s+6}:{s+7}]")
        p.I(f"v_pk_add_f32 v[{s}:{s+1}], v[{s}:{s+1}], v[{s+4}:{s+5}]")
        p.I(f"v_add_f32 v{sm[ci]}, v{s}, v{s+1}")
    xgroup_reduce_multi(p, sm, [TM + i for i in range(4)], "v_add_f32")
    for ci in range(4):
        p.I(f"v_rcp_f32 v{sm[ci]}, v{sm[ci]}")
    p.I(f"""
    s_lshl_b32 s9, s8, 15
    s_lshl_b32 s10, s6, 12
    s_add_u32 s9, s9, s10
    """)
    for ci, (hd, tb) in enumerate(chains):
        o = OO + ci * 8
        for r in range(0, 8, 2):
            p.I(f"v_pk_mul_f32 v[{o+r}:{o+r+1}], v[{o+r}:{o+r+1}], v[{sm[ci]}:{sm[ci]+1}] op_sel_hi:[1,0]")
        d = SR + ci * 4
        for r in range(4):
            p.I(f"v_cvt_pk_bf16_f32 v{d+r}, v{o+2*r}, v{o+2*r+1}")
        for db in range(2):
            p.I(f"buffer_store_dwordx2 v[{d+2*db}:{d+2*db+1}], v{EXA+2*hd+db}, s[52:55], s9 offen offset:{1024*tb}{STPOL}")
    stamp_out(p, 2, 4)
    tail(p, name)
    return name, p, kernel_desc(name, 256 + 168, 256), (256, 256, HALO + 32768)


MACROS = r"""
.macro MF d, a, b
    v_mfma_f32_16x16x32_bf16 v[\d:\d+3], a[\a:\a+3], a[\b:\b+3], v[\d:\d+3]
.endm
.macro TR d, r, o
    ds_read_b64_tr_b16 a[\d:\d+1], v[\r] offset:\o
.endm
.macro XL d, r, o
    buffer_load_dwordx4 a[\d:\d+3], v[\r], s[36:39], s44 offen offset:\o XPOL
.endm
.macro WN r, o
    buffer_load_dwordx4 v[\r], s[40:43], s45 offen offset:\o nt lds
.endm
.macro WL r, o
    buffer_load_dwordx4 v[\r], s[40:43], s45 offen offset:\o WPOL lds
.endm
""".replace("XPOL", os.environ.get("XPOL", "")).replace("WPOL", os.environ.get("WPOL", ""))


def compress(txt):
    import re
    txt = re.sub(r"v_mfma_f32_16x16x32_bf16 v\[(\d+):\d+\], a\[(\d+):\d+\], a\[(\d+):\d+\], v\[\1:\d+\]",
                 r"MF \1,\2,\3", txt)
    txt = re.sub(r"ds_read_b64_tr_b16 a\[(\d+):\d+\], v(\d+) offset:(\d+)", r"TR \1,\2,\3", txt)
    txt = re.sub(r"buffer_load_dwordx4 a\[(\d+):\d+\], v(\d+), s\[36:39\], s44 offen offset:(\d+)\n", r"XL \1,\2,\3\n", txt)
    txt = re.sub(r"buffer_load_dwordx4 a\[(\d+):\d+\], v(\d+), s\[36:39\], s44 offen\n", r"XL \1,\2,0\n", txt)
    txt = re.sub(r"buffer_load_dwordx4 v(\d+), s\[40:43\], s45 offen offset:(\d+) nt lds", r"WN \1,\2", txt)
    txt = re.sub(r"buffer_load_dwordx4 v(\d+), s\[40:43\], s45 offen offset:(\d+) lds", r"WL \1,\2", txt)
    txt = re.sub(r"buffer_load_dwordx4 v(\d+), s\[40:43\], s45 offen lds", r"WL \1,0", txt)
    txt = re.sub(r"^    ", " ", txt, flags=re.M)
    return txt


def main():
    ks = [gen_k1(), gen_k2(), gen_k3(), gen_k4(), gen_k5()]
    ref = open(f"cdna_kernels/{NAME}.s.ref").read().split("\n")
    hdr = [l for l in ref if l.startswith(";") and "@launch" not in l]
    out = "\n".join(hdr) + "\n"
    for name, p, desc, (g, b, lds) in ks:
        out += f"; @launch kernel={name} grid=({g},1,1) block=({b},1,1) lds={lds}\n"
    out += '.amdgcn_target "amdgcn-amd-amdhsa--gfx950"\n'
    out += MACROS
    for name, p, desc, _ in ks:
        out += compress(p.finalize())
    out += '.section .rodata,"a"\n'
    for name, p, desc, _ in ks:
        out += ".p2align 6\n" + desc
    dst = sys.argv[1] if len(sys.argv) > 1 else f"cdna_kernels/{NAME}.s"
    open(dst, "w").write(out)
    print("wrote", dst, len(out), "bytes")


if __name__ == "__main__":
    main()
```

```python
import sys, os
import gen as G
from gen import *

FL2, FL3, FL4, FL5 = 0x0000, 0x2000, 0x4000, 0x20000
FLAG_BYTES = 0x40000
WT = " sc0 sc1"
XRX3 = envint("XRX3", 16)
M4_RATE = float(os.environ.get("M4_RATE", 1.3))
M5_RATE = float(os.environ.get("M5_RATE", 1.5))
M3_RATE = float(os.environ.get("M3_RATE", 2.0))
M3_P0, M4_P0, M5_P0 = envint("M3_P0", 4), envint("M4_P0", 2), envint("M5_P0", 4)
MSTAMP = envint("MSTAMP", 0)
NAMEK = NAME + "_kernel"
PFD0 = envint("PFD0", 12)
FL1, FL1B = 0x6000, 0x6400
SNON = 96
NT2 = " nt" if envint("NT2", 0) else ""
NT4 = " nt" if envint("NT4", 0) else ""
PFS_LEAD = envint("PFS_LEAD", 14)
PFS_FROM = envint("PFS_FROM", 16)
NT5 = " nt" if envint("NT5", 0) else ""
MAP2, MAP3, MAP5 = envint("MAP2", 3), envint("MAP3", 2), envint("MAP5", 2)


def mapcode(lr, nrb_bits, d_rb, d_cb, tmp):
    xb = nrb_bits - lr
    return f"""
    s_and_b32 s{d_rb}, s3, {(1 << xb) - 1}
    s_lshl_b32 s{d_rb}, s{d_rb}, {lr}
    s_and_b32 s{tmp}, s4, {(1 << lr) - 1}
    s_add_u32 s{d_rb}, s{d_rb}, s{tmp}
    s_lshr_b32 s{d_cb}, s3, {xb}
    s_lshl_b32 s{d_cb}, s{d_cb}, {5 - lr}
    s_lshr_b32 s{tmp}, s4, {lr}
    s_add_u32 s{d_cb}, s{d_cb}, s{tmp}
    """

MAP4 = envint("MAP4", 2)
ORD = envint("ORD", 1)


def mstamp(p, i):
    if MSTAMP:
        p.I(f"""
        s_waitcnt lgkmcnt(0)
        s_memrealtime s[98:99]
        s_memtime s[100:101]
        s_waitcnt lgkmcnt(0)
        s_mov_b32 s{64+2*i}, s98
        s_mov_b32 s{65+2*i}, s100
        """)


def mstamp_out(p, n, nout):
    if not MSTAMP:
        return
    p.I("s_waitcnt vmcnt(0)")
    mstamp(p, n - 1)
    p.I("s_mov_b64 exec, -1")
    srd(p, 36, P_WS, WS_STAMP, 1 << 20)
    p.I("""
    s_lshl_b32 s100, s2, 10
    s_lshl_b32 s101, s7, 8
    s_add_u32 s100, s100, s101
    v_mov_b32 v0, 0
    s_mov_b64 exec, 1
    """)
    for i in range(nout):
        p.I(f"v_mov_b32 v4, s{64+2*i}")
        p.I(f"v_mov_b32 v5, s{65+2*i}")
        p.I(f"buffer_store_dwordx2 v[4:5], v0, s[36:39], s100 offen offset:{8*i}")
        p.I("s_nop 1")


def sprinkle(p, q, groups, first=0):
    lines = q.lines
    safe = [i for i in range(first, len(lines) - 1)
            if lines[i].startswith("v_") and lines[i + 1].startswith("v_")
            and not lines[i].startswith("v_cmp") and not lines[i + 1].startswith("v_cndmask")]
    n = len(groups)
    pos = {}
    for j in range(n):
        i = safe[min(len(safe) - 1, (j * len(safe)) // n)]
        pos.setdefault(i, []).append(groups[j])
    for i, l in enumerate(lines):
        p.lines.append(l)
        for g in pos.get(i, []):
            p.lines += g


LANES2 = """
    v_mbcnt_lo_u32_b32 v1, -1, 0
    v_mbcnt_hi_u32_b32 v1, -1, v1  ; lane
    v_and_b32 v3, 15, v1           ; m / i
    v_lshrrev_b32 v4, 4, v1        ; g
"""
MAP4x8 = """
    s_and_b32 s5, s3, 3
    s_lshl_b32 s5, s5, 2
    s_and_b32 s6, s4, 3
    s_add_u32 s5, s5, s6
    s_lshr_b32 s6, s3, 2
    s_lshl_b32 s6, s6, 3
    s_lshr_b32 s9, s4, 2
    s_add_u32 s6, s6, s9
"""


def signal(p, soff, vzero, vone, later=()):
    n = 0
    for g in later:
        p.I("\n".join(g))
        n += sum(1 for t in g if t.startswith("buffer_"))
    p.I(f"""
    v_mov_b32 v{vzero}, 0
    v_mov_b32 v{vone}, s{SNON}
    s_waitcnt vmcnt({n})
    buffer_store_dword v{vone}, v{vzero}, s[60:63], s{soff} offen sc0 sc1
    """)


def poll(p, tag, vaddr, vtmp, soff):
    p.I("s_mov_b32 s47, 0x100000")
    p.label(f"L_poll_{tag}")
    p.I(f"""
    buffer_load_dword v{vtmp}, v{vaddr}, s[60:63], s{soff} offen sc0 sc1
    s_sub_u32 s47, s47, 1
    s_cbranch_scc1 L_poll_{tag}_x
    s_waitcnt vmcnt(0)
    v_cmp_ne_u32 vcc, s{SNON}, v{vtmp}
    s_nop 1
    s_cmp_eq_u64 vcc, 0
    s_cbranch_scc0 L_poll_{tag}
    """)
    p.label(f"L_poll_{tag}_x")
    p.I("s_waitcnt vmcnt(0)")


def xload2(vx, AX, RX, wrap=None):
    def f(t):
        a = AX + (t % RX) * 8
        o = (t & 1) * 2048
        g = [[f"buffer_load_dwordx4 a[{a}:{a+3}], v{vx}, s[36:39], s44 offen offset:{o}"],
             [f"buffer_load_dwordx4 a[{a+4}:{a+7}], v{vx}, s[36:39], s44 offen offset:{o+1024}"]]
        if t & 1:
            g[-1].append("s_add_u32 s44, s44, 4096")
        return g
    return f


def gen_mega():
    name = NAMEK
    p = Prog()
    head(p, name, 256)
    p.I("""
    s_and_b32 s3, s2, 7            ; xcd
    s_lshr_b32 s4, s2, 3           ; idx 0..31
    v_lshrrev_b32 v2, 6, v0
    v_and_b32 v1, 63, v0           ; lane
    v_readfirstlane_b32 s7, v2     ; wave
    v_and_b32 v3, 15, v1           ; m / i
    v_lshrrev_b32 v4, 4, v1        ; g
    """)
    p.I(mapcode(MAP2, 4, 5, 6, 9))
    KB = D // 32

    S2, RX2, U2 = 4, 8, 8
    STG2 = 24576
    HALO = S2 * STG2
    EXB = 139264
    V_X, V_W2, V_RA2, V_HA, V_PF = 5, 7, 10, 18, 19
    ACC2, ACCH = 32, 128
    AX2, AW2, AH2 = 0, 64, 160

    def accr(tb, part, u):
        return ACC2 + ((tb * 3 + part) * 4 + u) * 4

    def wdma2(st):
        slot = st % S2
        g = []
        for sub in range(2):
            for part in range(3):
                pre = []
                if part == 0:
                    pre = [f"s_add_u32 m0, s46, {slot*STG2 + sub*12288}", f"s_add_u32 s45, s45, {32*6144}"]
                g.append(pre + [f"buffer_load_dwordx4 v{V_W2+part}, s[40:43], s45 offen offset:{1024*part}{NT2} lds"])
        return g

    vs2 = []
    for t in range(KB):
        st, sub = divmod(t, 2)
        slot = st % S2
        hi = 4 if slot >= 2 else 0
        base = (slot % 2) * STG2 + sub * 12288
        aw = AW2 + (t & 1) * 48
        ah = AH2 + (t & 1) * 4
        ax = AX2 + (t % RX2) * 8
        rd = []
        for part in range(3):
            for u in range(4):
                for hh in range(2):
                    r = aw + (part * 4 + u) * 4 + 2 * hh
                    rd.append([f"ds_read_b64_tr_b16 a[{r}:{r+1}], v{V_RA2+hi+u} offset:{base+part*1024+hh*512}"])
        rd.append([f"ds_read_b128 a[{ah}:{ah+3}], v{V_HA} offset:{(t%U2)*1024}"] +
                  ([f"v_add_u32 v{V_HA}, {U2*1024}, v{V_HA}"] if t % U2 == U2 - 1 else []))
        first = t == 0
        mf = []
        o2 = [(part, u, tb) for part in range(3) for u in range(4) for tb in range(2)]
        if ORD:
            pu = [(part, u) for part in range(3) for u in range(4)]
            o2 = [(a, b, 0) for a, b in pu] + [(a, b, 1) for a, b in reversed(pu)]
        for part, u, tb in o2:
            w = f"a[{aw+(part*4+u)*4}:{aw+(part*4+u)*4+3}]"
            c = accr(tb, part, u)
            x = f"a[{ax+4*tb}:{ax+4*tb+3}]"
            cc = f"v[{c}:{c+3}]"
            a_, b_ = (w, x) if part < 2 else (x, w)
            mf.append(f"{MFMA} {cc}, {a_}, {b_}, {'0' if first else cc}")
        for part in (1, 2):
            w = f"a[{aw+(part*4)*4}:{aw+(part*4)*4+3}]"
            x = f"a[{ah}:{ah+3}]"
            cc = f"v[{ACCH+4*(part-1)}:{ACCH+4*(part-1)+3}]"
            a_, b_ = (w, x) if part < 2 else (x, w)
            mf.append(f"{MFMA} {cc}, {a_}, {b_}, {'0' if first else cc}")
        extra = []
        if PF2T <= t < PF2T + PF2:
            extra.append([f"buffer_load_dword v{26+t-PF2T}, v{V_PF}, s[48:51], s12 offen",
                          f"s_add_u32 s12, s12, {512*7168}"])
        if t == 3:
            extra.append([f"buffer_store_short v25, v30, s[56:59], s95 offen{WT}"])
            extra.append([f"buffer_store_short v29, v30, s[56:59], s95 offen offset:2048{WT}"])
        if t == 24:
            extra.append([f"buffer_store_dword v31, v30, s[60:63], s97 offen offset:{FL1B-FL1} sc0 sc1"])
        vs2.append(VStep(mf, rd, [t], [st, 100 + t // 4], extra=extra))
    L2 = Loop("m2", vs2, KB // 2, 2, S2, RX2, U2, wdma2, xload2(6, AX2, RX2), cnt_sreg=47, lead=1, tail_free=4,
              P0=K2_P0, RATE=K2_RATE)

    TAB, ZERO = 131072, 135168
    RX3 = XRX3
    ACC3, ACCM, RES3 = 32, 84, 64
    V_W3 = 220
    V_RA3, V_TAB = 10, 9
    AX3, AW3, AM3 = 0, 128, 192

    def wdma3(st):
        g0 = [f"s_add_u32 m0, s46, {st*8192}"]
        if st:
            g0.append(f"s_add_u32 s45, s45, {64*2048}")
        else:
            g0.append("s_nop 0")
        g0.append(f"buffer_load_dwordx4 v{V_W3}, s[40:43], s45 offen lds")
        return [g0, [f"buffer_load_dwordx4 v{V_W3+1}, s[40:43], s45 offen offset:1024 lds"]]

    vs3 = []
    for st in range(KB // 2):
        rd, mf = [], []
        hi = 4 if st >= 8 else 0
        for sub in range(2):
            t = 2 * st + sub
            base = (st % 8) * 8192 + sub * 4096
            aw = AW3 + (st & 1) * 32 + sub * 16
            am = AM3 + (st & 1) * 8 + sub * 4
            ax = AX3 + (t % RX3) * 8
            for u in range(4):
                for hh in range(2):
                    rd.append([f"ds_read_b64_tr_b16 a[{aw+4*u+2*hh}:{aw+4*u+2*hh+1}], v{V_RA3+hi+u} offset:{base+hh*2048}"])
            rd.append([f"ds_read_b128 a[{am}:{am+3}], v{V_TAB} offset:{64*t}"])
            for u in range(4):
                for tb in range(2):
                    c = ACC3 + (tb * 4 + u) * 4
                    mf.append(f"{MFMA} v[{c}:{c+3}], a[{aw+4*u}:{aw+4*u+3}], a[{ax+4*tb}:{ax+4*tb+3}], v[{c}:{c+3}]")
            for tb in range(2):
                c = ACCM + 4 * tb
                cin = "0" if t == 0 else f"v[{c}:{c+3}]"
                mf.append(f"{MFMA} v[{c}:{c+3}], a[{am}:{am+3}], a[{ax+4*tb}:{ax+4*tb+3}], {cin}")
        vs3.append(VStep(mf, rd, [2 * st, 2 * st + 1], [st]))
    L3 = Loop("m3", vs3, KB // 2, 2, 16, RX3, 8, wdma3, xload2(6, AX3, RX3), cnt_sreg=47, lead=1, tail_free=6,
              P0=M3_P0, RATE=M3_RATE)
    fill3 = L3.take_prefill(16)

    S4, RX4, U4 = 4, 8, 8
    STG4 = 28672
    V_X4, V_W4, V_RA4, V_PF4, V_ST, V_M, V_XB4, V_T = 224, 225, 232, 234, 235, 236, 237, 240
    AX4, AW4 = 0, 128

    def wdma4(st):
        slot = st % S4
        g = []
        for j in range(7):
            pre = []
            if j == 0:
                pre = [f"s_add_u32 m0, s46, {slot*STG4}", f"s_add_u32 s45, s45, {64*F*2}"]
            if j == 4:
                g[-1].append(f"s_add_u32 m0, s46, {slot*STG4+4096}")
            g.append(pre + [f"buffer_load_dwordx4 v{V_W4+j}, s[40:43], s45 offen offset:{1024*(j%4)}{NT4} lds"])
        return g

    def xload4(t):
        a = AX4 + (t % RX4) * 16
        g = [[f"buffer_load_dwordx4 a[{a+4*j}:{a+4*j+3}], v{V_XB4}, s[36:39], s44 offen offset:{1024*j}"] for j in range(4)]
        g[-1] += ["s_add_u32 s44, s44, 4096"]
        return g

    vs4 = []
    for t in range(KB):
        st, sub = divmod(t, 2)
        slot = st % S4
        ra = V_RA4 + (slot >= 2)
        base = (slot % 2) * STG4 + sub * 7168
        a = AW4 + (t & 1) * 56
        ax = AX4 + (t % RX4) * 16
        rd = []
        for s in range(14):
            mat, sl = divmod(s, 7)
            for hh in range(2):
                off = base + mat * 14336 + hh * 3584 + sl * 32
                rd.append([f"ds_read_b64_tr_b16 a[{a+4*s+2*hh}:{a+4*s+2*hh+1}], v{ra} offset:{off}"])
        order = [(s, tb) for s in range(14) for tb in range(4)]
        if t == KB - 1 or ORD:
            order = [(s, tb) for tb in range(4) for s in (range(14) if tb % 2 == 0 else range(13, -1, -1))]
        mf = []
        for s, tb in order:
            c = tb * 56 + s * 4
            cin = "0" if t == 0 else f"v[{c}:{c+3}]"
            mf.append(f"{MFMA} v[{c}:{c+3}], a[{a+4*s}:{a+4*s+3}], a[{ax+4*tb}:{ax+4*tb+3}], {cin}")
        extra = []
        if PFS_LEAD and PFS_FROM <= t + PFS_LEAD < KB:
            extra.append([f"buffer_load_dword v239, v238, s[40:43], s11 offen", f"s_add_u32 s11, s11, {32*F*2}"])
        if PF4 == 1 and PFD0 <= t < PFD0 + 14:
            extra.append([f"buffer_load_dword v239, v238, s[52:55], s12 offen", "s_add_u32 s12, s12, 512"])
        if PF4 == 2 and t == KB - envint("PFDT", 7):
            extra.append([f"buffer_load_dword v239, v{V_PF4}, s[52:55], s12 offen"])
        if t == KB - 8:
            for j in range(4):
                extra.append([f"buffer_load_dwordx4 v[{V_T+4*j}:{V_T+4*j+3}], v{V_ST}, s[48:51], s9 offen offset:{16*j}"])
        vs4.append(VStep(mf, rd, [t], [st], extra=extra))
    L4 = Loop("m4", vs4, KB // 2, 2, S4, RX4, U4, wdma4, xload4, cnt_sreg=47, lead=1, tail_free=8,
              P0=M4_P0, RATE=M4_RATE)
    fill4 = L4.take_prefill(S4)

    KBT = F // 32
    KB5 = KBT // 2
    S5 = 8
    RX5 = 16
    R = K5_R
    STG5 = 16384
    ACC5, RES5 = 32, 96
    V_W5 = (225, 227, 229, 231)
    V_RA5 = 12
    AX5, AW5 = 0, 128

    def wdma5(st):
        slot = st % S5
        g = [[f"s_add_u32 m0, s46, {slot*STG5}", f"s_add_u32 s45, s45, {64*2048}",
              f"buffer_load_dwordx4 v{V_W5[0]}, s[40:43], s45 offen offset:0{NT5} lds"]]
        for j in range(1, 4):
            g.append([f"buffer_load_dwordx4 v{V_W5[j]}, s[40:43], s45 offen offset:{1024*j}{NT5} lds"])
        return g

    def rd5(t, u, areg):
        st, sub = divmod(t, 2)
        slot = st % S5
        hi = 8 if slot >= 4 else 0
        base = (slot % 4) * STG5 + sub * 8192
        return [[f"ds_read_b64_tr_b16 a[{areg+2*hh}:{areg+2*hh+1}], v{V_RA5+hi+u} offset:{base+hh*4096}"] for hh in range(2)]

    def mf5(t, u, areg):
        ax = AX5 + (t % RX5) * 8
        out = []
        for tb in range(2):
            c = ACC5 + (tb * 8 + u) * 4
            cin = "0" if t == 0 else f"v[{c}:{c+3}]"
            out.append(f"{MFMA} v[{c}:{c+3}], a[{areg}:{areg+3}], a[{ax+4*tb}:{ax+4*tb+3}], {cin}")
        return out

    send = []
    for tb in range(2):
        for u in range(4):
            c = ACC5 + (tb * 8 + 4 + u) * 4
            send.append([f"buffer_store_dwordx4 v[{c}:{c+3}], v5, s[56:59], s{9+tb} offen offset:{1024*u} sc0 sc1"])
    items = [[(t, 4), (t, 0)] for t in range(KB5 - R)]
    items += [[(t, 4)] for t in range(KB5 - R, KB5)] + [[(t, 0)] for t in range(KB5 - R, KB5)]
    merged = []
    for it in items:
        if merged and len(merged[-1]) == 1 and len(it) == 1:
            merged[-1] = merged[-1] + it
        else:
            merged.append(list(it))
    vs5 = []
    i_own = None
    for it in merged:
        aw = AW5 + (len(vs5) & 1) * 32
        r_, m_ = [], []
        f = 0
        for t, half in it:
            for uu in range(4):
                r_ += rd5(t, half + uu, aw + 4 * f)
                m_ += mf5(t, half + uu, aw + 4 * f)
                f += 1
        if ORD:
            mm = []
            if it[0][0] == it[-1][0]:
                mm = m_[0::2] + m_[1::2][::-1]
            else:
                for h in range(len(it)):
                    blk = m_[8 * h: 8 * h + 8]
                    mm += blk[0::2] + blk[1::2][::-1]
            m_ = mm
        if i_own is None and all(h == 0 for _, h in it):
            i_own = len(vs5)
        vs5.append(VStep(m_, r_, sorted({t for t, _ in it}), sorted({t // 2 for t, _ in it})))
    vs5[i_own].extra = send
    fl = min(i_own + K5_FLAGLAG, len(vs5) - 1)
    vs5[fl].post = ["s_waitcnt vmcnt(0)", "buffer_store_dword v29, v28, s[60:63], s15 offen sc0 sc1"]
    resl = []
    for tb in range(2):
        for j in range(2):
            r = RES5 + (tb * 2 + j) * 4
            resl.append([f"buffer_load_dwordx4 v[{r}:{r+3}], v5, s[48:51], s{52+j} offen offset:{1024*tb}"])
    resl.append(["buffer_load_dword v112, v7, s[48:51], s54 offen"])
    resl.append(["buffer_load_dword v114, v7, s[48:51], s54 offen offset:64"])
    vs5[KB5 - R + 1].extra = resl
    L5 = Loop("m5", vs5, KB5 // 2, 2, S5, RX5, 16, wdma5, xload2(6, AX5, RX5), cnt_sreg=47, lead=1, tail_free=5,
              P0=M5_P0, RATE=M5_RATE)
    fill5 = L5.take_prefill(S5)

    p.I(f"""
    v_lshlrev_b32 v{V_X}, 4, v1
    s_lshl_b32 s8, s5, 3
    s_lshl_b32 s9, s7, 1
    s_add_u32 s8, s8, s9
    s_lshl_b32 s9, s8, 15
    v_add_u32 v6, s9, v{V_X}
    s_mov_b32 s44, 0
    v_lshrrev_b32 v20, 3, v1        ; r8
    v_bfe_u32 v21, v1, 4, 1         ; (r8>>1)&1
    s_and_b32 s9, s7, 1
    s_lshl_b32 s9, s9, 1
    v_or_b32 v21, s9, v21           ; f
    v_bfe_u32 v22, v1, 1, 2
    v_xor_b32 v22, v22, v21         ; unit
    v_and_b32 v23, 1, v1
    v_lshlrev_b32 v22, 5, v22
    v_lshl_add_u32 v22, v23, 4, v22
    v_lshl_add_u32 v20, s7, 3, v20  ; row
    s_movk_i32 s9, 6144
    v_mul_u32_u24 v20, s9, v20
    s_lshl_b32 s9, s6, 7            ; hp*128
    v_add3_u32 v{V_W2}, v20, v22, s9
    v_add_u32 v{V_W2+1}, 1024, v{V_W2}
    v_add_u32 v{V_W2+2}, 2048, v{V_W2}
    s_mov_b32 s45, {(-32*6144) & 0xffffffff:#x}
    s_mul_i32 s46, s7, 3072
    s_waitcnt lgkmcnt(0)
    """)
    mstamp(p, 0)
    fill2 = L2.take_prefill(envint("PRE2", 2))
    srd(p, 48, P_X, 0, S_TOK * D * 2)
    p.I(f"""
    v_and_b32 v20, 7, v1            ; t
    v_lshrrev_b32 v21, 3, v1        ; c
    v_lshlrev_b32 v22, 11, v20
    v_lshl_add_u32 v22, v21, 4, v22
    s_lshl_b32 s9, s2, 14
    s_lshl_b32 s10, s7, 9
    s_add_u32 s9, s9, s10
    """)
    for j in range(4):
        p.I(f"buffer_load_dwordx4 v[{32+4*j}:{35+4*j}], v22, s[48:51], s9 offen offset:{128*j}{INPOL}")
    srd(p, 52, P_WO, 0, D * D * 2)
    srd(p, 56, P_DBG, 0, 256)
    p.I(f"""
    s_lshl_b32 s11, s2, 2
    s_add_u32 s11, s11, s7
    v_mov_b32 v30, 0
    s_cmp_lg_u32 s11, 0
    s_cbranch_scc1 L_nononce
    s_memrealtime s[98:99]
    s_waitcnt lgkmcnt(0)
    s_or_b32 s98, s98, 1
    v_mov_b32 v31, s98
    buffer_store_dword v31, v30, s[56:59], 0 offen sc0 sc1
    s_waitcnt vmcnt(0)
    """)
    p.label("L_nononce")
    srd(p, 40, P_WQKV, 0, D * 3 * D * 2)
    npf = 0
    if PF1:
        p.I(f"""
        v_lshlrev_b32 v23, 7, v1
        v_mov_b32 v24, 0x7fffffff
        v_cmp_gt_u32 vcc, 48, v1
        s_mul_i32 s9, s11, 6144
        v_cndmask_b32 v23, v24, v23, vcc
        buffer_load_dword v60, v23, s[40:43], s9 offen
        """)
        npf = 1
    nfa = min(len(fill2), envint("FILL2_A", 6))
    for gg in fill2[:nfa]:
        p.I("\n".join(gg))
    npf += nfa
    hop(p, name, chain="0")
    srd(p, 36, P_WS, WS_XN, S_TOK * D * 2)
    srd(p, 60, P_WS, WS_FLAG, FLAG_BYTES)
    p.I(f"""
    v_lshlrev_b32 v23, 4, v20
    v_add_u32 v23, {EXB}, v23
    s_lshl_b32 s9, s7, 2
    v_add_u32 v24, s9, v23
    v_lshrrev_b32 v25, 2, v21
    v_lshlrev_b32 v25, 11, v25
    v_and_b32 v26, 3, v21
    v_lshl_add_u32 v25, v26, 8, v25
    v_lshl_add_u32 v25, v20, 4, v25
    s_lshr_b32 s9, s2, 2
    s_lshl_b32 s9, s9, 16
    s_bfe_u32 s10, s2, 0x10001
    s_lshl_b32 s10, s10, 10
    s_add_u32 s9, s9, s10
    s_and_b32 s10, s2, 1
    s_lshl_b32 s10, s10, 7
    s_add_u32 s9, s9, s10
    s_lshl_b32 s10, s7, 14
    s_add_u32 s9, s9, s10
    """)
    for j in range(4):
        p.I(f"s_waitcnt vmcnt({3-j+npf})")
        for r in range(4):
            x = 32 + 4 * j + r
            p.I(f"v_lshlrev_b32 v{64+2*(4*j+r)}, 16, v{x}")
            p.I(f"v_and_b32 v{65+2*(4*j+r)}, 0xffff0000, v{x}")
    p.I("v_pk_add_f32 v[26:27], v[64:65], v[66:67]")
    p.I("v_pk_add_f32 v[28:29], v[68:69], v[70:71]")
    for i in range(2, 8):
        p.I(f"v_pk_add_f32 v[26:27], v[26:27], v[{64+4*i}:{65+4*i}]")
        p.I(f"v_pk_add_f32 v[28:29], v[28:29], v[{66+4*i}:{67+4*i}]")

    def red8(off):
        p.I("""
        v_pk_add_f32 v[26:27], v[26:27], v[28:29]
        v_add_f32 v26, v26, v27
        v_add_f32_dpp v27, v26, v26 row_ror:8 row_mask:0xf bank_mask:0xf
        """)
        xgroup_reduce(p, 27, 26, "v_add_f32")
        p.I(f"""
        ds_write_b32 v24, v27 offset:{off}
        s_waitcnt lgkmcnt(0)
        s_barrier
        ds_read_b128 v[26:29], v23 offset:{off}
        s_waitcnt lgkmcnt(0)
        v_pk_add_f32 v[26:27], v[26:27], v[28:29]
        v_add_f32 v26, v26, v27
        """)
    red8(0)
    p.I("v_mul_f32 v56, 0x3a800000, v26     ; mean")
    for i in range(16):
        p.I(f"v_pk_add_f32 v[{64+2*i}:{65+2*i}], v[{64+2*i}:{65+2*i}], v[56:57] op_sel_hi:[1,0] neg_lo:[0,1] neg_hi:[0,1]")
    p.I("v_pk_mul_f32 v[26:27], v[64:65], v[64:65]")
    p.I("v_pk_mul_f32 v[28:29], v[66:67], v[66:67]")
    for i in range(1, 8):
        p.I(f"v_pk_fma_f32 v[26:27], v[{64+4*i}:{65+4*i}], v[{64+4*i}:{65+4*i}], v[26:27]")
        p.I(f"v_pk_fma_f32 v[28:29], v[{66+4*i}:{67+4*i}], v[{66+4*i}:{67+4*i}], v[28:29]")
    red8(256)
    p.I(f"""
    v_mov_b32 v27, {f2u(1e-5):#x}
    v_fmac_f32 v27, 0x3a800000, v26
    v_rsq_f32 v58, v27
    """)
    for j in range(4):
        for r in range(4):
            qq = 4 * j + r
            p.I(f"v_pk_mul_f32 v[{64+2*qq}:{65+2*qq}], v[{64+2*qq}:{65+2*qq}], v[58:59] op_sel_hi:[1,0]")
        for r in range(4):
            qq = 4 * j + r
            p.I(f"v_cvt_pk_bf16_f32 v{32+qq}, v{64+2*qq}, v{65+2*qq}")
        p.I(f"buffer_store_dwordx4 v[{32+4*j}:{35+4*j}], v25, s[36:39], s9 offen{WT}")
        if j < 3:
            p.I("s_add_u32 s9, s9, 4096")
    srd(p, 48, P_WS, WS_MX, WS_RM - WS_MX + 4096)
    p.I(f"""
    s_lshl_b32 s10, s2, 5           ; 8 tokens * 4
    v_lshlrev_b32 v29, 2, v20
    s_mov_b64 exec, 0xff
    buffer_store_dword v56, v29, s[48:51], s10 offen{WT}
    s_mov_b64 exec, -1
    buffer_load_dword v31, v30, s[56:59], 0 offen sc0 sc1
    s_lshl_b32 s9, s11, 11
    buffer_load_dwordx4 v[48:51], v{V_X}, s[52:55], s9 offen
    buffer_load_dwordx4 v[52:55], v{V_X}, s[52:55], s9 offen offset:1024
    """)
    for gg in fill2[nfa:]:
        p.I("\n".join(gg))
    nrest = len(fill2) - nfa
    p.I(f"s_waitcnt vmcnt({2 + nrest})")
    p.I("s_mov_b32 s47, 0x100000")
    p.label("L_nonce")
    p.I(f"""
    v_readfirstlane_b32 s{SNON}, v31
    s_cmp_lg_u32 s{SNON}, 0
    s_cbranch_scc1 L_nonce_ok
    s_sub_u32 s47, s47, 1
    s_cbranch_scc1 L_nonce_ok
    buffer_load_dword v31, v30, s[56:59], 0 offen sc0 sc1
    s_waitcnt vmcnt(0)
    s_branch L_nonce
    """)
    p.label("L_nonce_ok")
    p.I(f"""
    v_mov_b32 v31, s{SNON}
    s_lshl_b32 s97, s2, 2
    s_add_u32 s97, s97, {FL1}
    s_cmp_eq_u32 s7, 0
    s_cselect_b32 s97, s97, {FLAG_BYTES}
    s_barrier
    buffer_store_dword v31, v30, s[60:63], s97 offen sc0 sc1
    """)
    mstamp(p, 13)
    p.I(f"s_waitcnt vmcnt({1 + nrest})")
    for r in range(8):
        p.I(f"v_lshlrev_b32 v{64+2*r}, 16, v{48+r}")
        p.I(f"v_and_b32 v{65+2*r}, 0xffff0000, v{48+r}")
    p.I("v_pk_add_f32 v[26:27], v[64:65], v[66:67]")
    for i in range(2, 8):
        p.I(f"v_pk_add_f32 v[26:27], v[26:27], v[{64+2*i}:{65+2*i}]")
    p.I("v_add_f32 v26, v26, v27")
    for sh in (1, 2, 4, 8):
        p.I(f"v_add_f32_dpp v27, v26, v26 row_ror:{sh} row_mask:0xf bank_mask:0xf")
        p.I("v_mov_b32 v26, v27")
    xgroup_reduce(p, 26, 27, "v_add_f32")
    p.I(f"""
    v_mul_f32 v26, 0x3a800000, v26
    v_cvt_pk_bf16_f32 v25, v26, v26
    v_lshlrev_b32 v28, 16, v25
    v_sub_f32 v26, v26, v28
    v_cvt_pk_bf16_f32 v29, v26, v26
    s_lshr_b32 s95, s11, 5
    s_lshl_b32 s95, s95, 6            ; kb*64
    s_bfe_u32 s10, s11, 0x20002     ; g
    s_lshl_b32 s10, s10, 4
    s_add_u32 s95, s95, s10
    s_bfe_u32 s10, s11, 0x10004
    s_lshl_b32 s10, s10, 3
    s_add_u32 s95, s95, s10
    s_and_b32 s10, s11, 3
    s_lshl_b32 s10, s10, 1
    s_add_u32 s95, s95, s10
    """)
    srd(p, 56, P_WS, WS_RM, 4096)
    p.I(f"""
    v_and_b32 v27, 3, v1
    s_lshl_b32 s9, s8, 1
    v_add_u32 v27, s9, v27
    s_lshl_b32 s9, s5, 4
    s_sub_u32 s9, s9, 2
    s_max_i32 s9, s9, 2
    v_and_b32 v28, 1, v1
    v_add_u32 v28, s9, v28
    v_cmp_gt_u32 vcc, 4, v1
    s_movk_i32 s13, {FL1}
    v_cndmask_b32 v27, v28, v27, vcc
    v_lshlrev_b32 v27, 2, v27
    """)

    def phase2_go():
        poll(p, "1", 27, 28, 13)
        mstamp(p, 1)

        p.I(f"""
        s_lshl_b32 s9, s5, 3
        s_sub_u32 s9, s9, 2
        s_max_i32 s9, s9, 0
        s_lshl_b32 s9, s9, 15           ; (mb>>1)*64KB
        s_add_u32 s9, s9, 1024          ; (mb&1)*1024
        s_lshl_b32 s10, s7, 11
        s_add_u32 s9, s9, s10           ; + w*2048
        s_lshl_b32 s10, s7, 10
        s_add_u32 s10, s10, {HALO}
        """)

        def halo_dma(j):
            p.I(f"s_add_u32 m0, s10, {4096*j}")
            if j:
                p.I("s_add_u32 s9, s9, 8192")
            p.I(f"buffer_load_dwordx4 v{V_X}, s[36:39], s9 offen lds")
            L2.extra_vm(("w", 100 + j), 1)
        halo_dma(0)
        L2.prologue_issue(p, upto=1)
        halo_dma(1)
        L2.prologue_issue(p, upto=2)
        for j in range(2, 8):
            halo_dma(j)
        L2.prologue_issue(p)
    p.I(f"""
    v_add_u32 v{V_HA}, {HALO}, v{V_X}
    v_lshrrev_b32 v20, 2, v3        ; r
    v_and_b32 v21, 3, v3            ; c
    v_lshrrev_b32 v23, 1, v20
    v_and_b32 v24, 1, v4
    v_lshl_or_b32 v23, v24, 1, v23  ; f
    v_xor_b32 v23, s7, v23          ; f ^ w
    v_mul_u32_u24 v22, 3072, v4
    v_lshl_add_u32 v22, v20, 7, v22
    v_lshl_add_u32 v22, v21, 3, v22
    v_lshl_add_u32 v22, v23, 5, v22
    """)
    for u in range(4):
        p.I(f"""
        v_xor_b32 v{V_RA2+u}, {32*u}, v22
        v_add_u32 v{V_RA2+4+u}, {2*STG2}, v{V_RA2+u}
        """)
    p.I(f"""
    v_lshlrev_b32 v{V_PF}, 7, v1
    v_mov_b32 v20, 0x7fffffff
    v_cmp_gt_u32 vcc, 56, v1
    s_lshl_b32 s12, s2, 1
    s_and_b32 s13, s7, 1
    s_add_u32 s12, s12, s13
    s_mul_i32 s12, s12, 7168
    v_cndmask_b32 v{V_PF}, v20, v{V_PF}, vcc
    s_cmp_ge_u32 s7, 2
    s_cselect_b32 s48, s{P_WU}, s{P_WG}
    s_cselect_b32 s49, s{P_WU+1}, s{P_WG+1}
    s_mov_b32 s50, {D*F*2}
    s_mov_b32 s51, 0x00020000
    """)
    srd(p, 52, P_WS, WS_O, S_TOK * D * 2)
    BIAS, EXA = 204, 216
    NEG = f2u(-1e30)
    p.I(f"""
    v_lshlrev_b32 v20, 2, v4          ; 4g
    v_sub_u32 v20, v20, v3            ; 4g - m
    v_mov_b32 v21, {NEG:#x}
    s_or_b32 s9, s5, s7
    s_cmp_eq_u32 s9, 0
    s_cselect_b32 s9, 64, 2
    """)
    for r in range(4):
        p.I(f"""
        v_add_u32 v22, {r}, v20           ; d = j - m
        v_and_b32 v23, 1, v22
        v_lshl_add_u32 v24, v23, 8, v22
        v_cmp_ge_i32 vcc, 0, v24
        v_cndmask_b32 v{BIAS+8+r}, v21, 0, vcc
        v_lshlrev_b32 v23, 8, v23
        v_sub_u32 v24, v22, v23
        v_cmp_le_i32 vcc, 2, v24
        v_cndmask_b32 v{BIAS+4+r}, v21, 0, vcc
        v_cmp_le_i32 vcc, s9, v24
        v_cndmask_b32 v{BIAS+r}, v21, 0, vcc
        """)
    p.I(f"""
    s_lshr_b32 s9, s7, 1
    s_lshl_b32 s9, s9, 11
    s_and_b32 s10, s7, 1
    s_lshl_b32 s10, s10, 3
    s_add_u32 s9, s9, s10
    v_add_u32 v{EXA}, s9, v{V_X}
    v_xor_b32 v{EXA+1}, 8, v{EXA}
    v_xor_b32 v{EXA+2}, 0x800, v{EXA}
    v_xor_b32 v{EXA+3}, 0x800, v{EXA+1}
    {mapcode(MAP3, 4, 14, 15, 9)}
    v_lshrrev_b32 v20, 3, v1
    v_lshrrev_b32 v21, 1, v20
    v_and_b32 v21, 3, v21          ; f
    v_bfe_u32 v22, v1, 1, 2        ; pos>>1
    v_xor_b32 v22, v22, v21        ; unit
    v_and_b32 v23, 1, v1
    v_lshlrev_b32 v22, 5, v22
    v_lshl_add_u32 v22, v23, 4, v22
    v_lshl_add_u32 v20, s7, 4, v20
    v_lshl_add_u32 v{V_W3}, v20, 11, v22
    s_lshl_b32 s9, s15, 7
    v_add_u32 v{V_W3}, s9, v{V_W3}
    v_add_u32 v{V_W3+1}, {8*2048-1024}, v{V_W3}
    v_mov_b32 v20, 0
    v_mov_b32 v21, 0
    v_lshlrev_b32 v22, 3, v0
    v_add_u32 v22, {ZERO}, v22
    ds_write_b64 v22, v[20:21]
    ds_write_b64 v22, v[20:21] offset:2048
    """)
    p.I(f"s_movk_i32 s13, {FL1}")
    phase2_go()
    L2.start(p)
    L2.body(p)
    mstamp(p, 2)
    QP, KP, VP, HP = 136, 152, 176, 200

    def qp(hd, tb): return QP + (hd * 2 + tb) * 4
    def kp(hd, i): return KP + (hd * 3 + i) * 4
    def vp(hd, db, i): return VP + ((hd * 2 + db) * 3 + i) * 2

    q = Prog()

    def pack(hd, tb, parts):
        for db in range(2):
            for part, dst in ((0, qp(hd, tb) + 2 * db), (1, kp(hd, 1 + tb) + 2 * db), (2, vp(hd, db, 1 + tb))):
                if part not in parts:
                    continue
                c = accr(tb, part, 2 * hd + db)
                q.I(f"v_cvt_pk_bf16_f32 v{dst}, v{c}, v{c+1}")
                q.I(f"v_cvt_pk_bf16_f32 v{dst+1}, v{c+2}, v{c+3}")
    p.I(f"""
    s_lshl_b32 s9, s7, 12
    s_add_u32 s9, s9, {EXB}
    v_add_u32 v20, s9, v{EXA}
    v_add_u32 v21, s9, v{EXA+1}
    v_add_u32 v22, s9, v{EXA+2}
    v_add_u32 v23, s9, v{EXA+3}
    v_add_u32 v24, {EXB}, v{EXA}
    """)
    srd(p, 40, P_WO, 0, D * D * 2)
    p.I(f"""
    s_mov_b32 s45, 0
    s_lshl_b32 s46, s7, 11
    s_barrier
    """)
    for hd in range(2):
        pack(hd, 1, (1, 2))
    for i in range(4):
        q.I(f"v_cvt_pk_bf16_f32 v{HP+i}, v{ACCH+2*i}, v{ACCH+2*i+1}")
    for hd in range(2):
        for db in range(2):
            k = kp(hd, 2) + 2 * db
            v = vp(hd, db, 2)
            q.I(f"ds_write_b64 v{20+2*hd+db}, v[{k}:{k+1}] offset:4096")
            q.I(f"ds_write_b64 v{20+2*hd+db}, v[{v}:{v+1}] offset:{4096+1024}")
    q.I(f"ds_write_b64 v24, v[{HP}:{HP+1}]")
    q.I(f"ds_write_b64 v24, v[{HP+2}:{HP+3}] offset:1024")
    for hd in range(2):
        pack(hd, 1, (0,))
        pack(hd, 0, (0, 1, 2))
    q.I("""
    s_waitcnt lgkmcnt(0)
    s_barrier
    """)
    for hd in range(2):
        for db in range(2):
            k = kp(hd, 0) + 2 * db
            v = vp(hd, db, 0)
            q.I(f"ds_read_b64 v[{k}:{k+1}], v{20+2*hd+db}")
            q.I(f"ds_read_b64 v[{v}:{v+1}], v{20+2*hd+db} offset:1024")
    chains = [(0, 1), (1, 1), (0, 0), (1, 0)]
    SR, MX, TM, SM, PP, OO = 32, 64, 72, 76, 84, 100
    CSC = f2u(32 ** -0.5 * 1.4426950408889634)
    q.I(f"s_mov_b32 s9, {CSC:#x}")
    q.I(f"s_mov_b32 s10, {CSC:#x}")
    q.I(f"s_mov_b32 s11, {CSC:#x}")
    for ci, (hd, tb) in enumerate(chains):
        s = SR + ci * 8
        qq = qp(hd, tb)
        kc = kp(hd, 1 + tb)
        q.I(f"{MFMA} v[{s+4}:{s+7}], v[{kc}:{kc+3}], v[{qq}:{qq+3}], v[{BIAS+8}:{BIAS+11}]")
    for ci, (hd, tb) in enumerate(chains):
        s = SR + ci * 8
        qq = qp(hd, tb)
        kv = kp(hd, tb)
        if ci == 2:
            q.I("s_waitcnt lgkmcnt(0)")
        b = BIAS + 4 * tb
        q.I(f"{MFMA} v[{s}:{s+3}], v[{kv}:{kv+3}], v[{qq}:{qq+3}], v[{b}:{b+3}]")
    mx = [MX + 2 * i for i in range(4)]
    for ci in range(4):
        s = SR + ci * 8
        q.I(f"v_max3_f32 v{mx[ci]}, v{s+4}, v{s+5}, v{s+6}")
    for ci in range(4):
        s = SR + ci * 8
        q.I(f"v_max3_f32 v{mx[ci]}, v{mx[ci]}, v{s+7}, v{s}")
        q.I(f"v_max3_f32 v{mx[ci]}, v{mx[ci]}, v{s+1}, v{s+2}")
        q.I(f"v_max_f32 v{mx[ci]}, v{mx[ci]}, v{s+3}")
    xgroup_reduce_multi(q, mx, [TM + i for i in range(4)], "v_max_f32")
    for ci in range(4):
        q.I(f"v_mul_f32 v{mx[ci]}, s9, v{mx[ci]}")
    for ci in range(4):
        s = SR + ci * 8
        for r in range(0, 8, 2):
            q.I(f"v_pk_fma_f32 v[{s+r}:{s+r+1}], v[{s+r}:{s+r+1}], s[10:11], v[{mx[ci]}:{mx[ci]+1}] op_sel_hi:[1,1,0] neg_lo:[0,0,1] neg_hi:[0,0,1]")
        for r in range(8):
            q.I(f"v_exp_f32 v{s+r}, v{s+r}")
    for ci, (hd, tb) in enumerate(chains):
        s = SR + ci * 8
        for r in range(4):
            q.I(f"v_cvt_pk_bf16_f32 v{PP+4*ci+r}, v{s+2*r}, v{s+2*r+1}")
    for ci, (hd, tb) in enumerate(chains):
        for db in range(2):
            v = vp(hd, db, tb)
            o = OO + ci * 8 + db * 4
            q.I(f"{MFMA} v[{o}:{o+3}], v[{v}:{v+3}], v[{PP+4*ci}:{PP+4*ci+3}], 0")
    sm = [SM + 2 * i for i in range(4)]
    for ci in range(4):
        s = SR + ci * 8
        q.I(f"v_pk_add_f32 v[{s}:{s+1}], v[{s}:{s+1}], v[{s+2}:{s+3}]")
        q.I(f"v_pk_add_f32 v[{s+4}:{s+5}], v[{s+4}:{s+5}], v[{s+6}:{s+7}]")
        q.I(f"v_pk_add_f32 v[{s}:{s+1}], v[{s}:{s+1}], v[{s+4}:{s+5}]")
        q.I(f"v_add_f32 v{sm[ci]}, v{s}, v{s+1}")
    xgroup_reduce_multi(q, sm, [TM + i for i in range(4)], "v_add_f32")
    for ci in range(4):
        q.I(f"v_rcp_f32 v{sm[ci]}, v{sm[ci]}")
    nf = envint("FILL3_EPI", 10)
    nf2 = nf + envint("FILL3_MID", 12)
    sprinkle(p, q, fill3[:nf])
    p.I(f"""
    s_lshl_b32 s9, s8, 15
    s_lshl_b32 s10, s6, 12
    s_add_u32 s9, s9, s10
    """)
    for ci, (hd, tb) in enumerate(chains):
        o = OO + ci * 8
        for r in range(0, 8, 2):
            p.I(f"v_pk_mul_f32 v[{o+r}:{o+r+1}], v[{o+r}:{o+r+1}], v[{sm[ci]}:{sm[ci]+1}] op_sel_hi:[1,0]")
        d = SR + ci * 4
        for r in range(4):
            p.I(f"v_cvt_pk_bf16_f32 v{d+r}, v{o+2*r}, v{o+2*r+1}")
        for db in range(2):
            p.I(f"buffer_store_dwordx2 v[{d+2*db}:{d+2*db+1}], v{EXA+2*hd+db}, s[52:55], s9 offen offset:{1024*tb}{WT}")
    p.I(f"""
    s_lshl_b32 s13, s8, 6           ; tg*128
    s_lshl_b32 s10, s6, 2
    s_add_u32 s10, s10, s13
    """)
    signal(p, 10, 24, 25, fill3[nf:nf2])
    mstamp(p, 3)

    p.C("@CHAIN 3")
    for g in fill3[nf2:]:
        p.I("\n".join(g))
    p.I(f"s_movk_i32 s13, {FL1B}")
    p.I("s_mov_b32 s47, 0x100000")
    p.label("L_pollall")
    p.I(f"""
    buffer_load_dwordx4 v[24:27], v{V_X}, s[60:63], s13 offen sc0 sc1
    s_sub_u32 s47, s47, 1
    s_cbranch_scc1 L_pollall_x
    s_waitcnt vmcnt(0)
    v_xor_b32 v24, s{SNON}, v24
    v_xor_b32 v25, s{SNON}, v25
    v_xor_b32 v26, s{SNON}, v26
    v_xor_b32 v27, s{SNON}, v27
    v_or3_b32 v24, v24, v25, v26
    v_or_b32 v24, v24, v27
    v_cmp_ne_u32 vcc, 0, v24
    s_nop 1
    s_cmp_eq_u64 vcc, 0
    s_cbranch_scc0 L_pollall
    """)
    p.label("L_pollall_x")
    srd(p, 56, P_WS, WS_RM, 4096)
    p.I(f"""
    s_lshl_b32 s9, s7, 10
    s_add_u32 m0, s9, {TAB}
    s_nop 0
    buffer_load_dwordx4 v{V_X}, s[56:59], s9 offen lds
    """)
    srd(p, 48, P_X, 0, S_TOK * D * 2)
    srd(p, 56, P_WS, WS_MX, S_TOK * 4)
    p.I(f"""
    s_mov_b32 s5, s14
    s_mov_b32 s6, s15
    s_lshl_b32 s8, s5, 3
    s_lshl_b32 s9, s7, 1
    s_add_u32 s8, s8, s9
    s_lshl_b32 s9, s8, 15
    v_add_u32 v6, s9, v{V_X}
    s_lshl_b32 s13, s8, 6          ; tg*128
    v_lshlrev_b32 v20, 11, v3
    v_lshl_add_u32 v20, v4, 3, v20
    s_lshl_b32 s9, s8, 15          ; mb0*16*2048
    s_lshl_b32 s10, s6, 7
    s_add_u32 s9, s9, s10          ; + cb*128
    s_add_u32 s10, s9, 32768
    v_lshlrev_b32 v21, 2, v3
    s_lshl_b32 s11, s8, 6
    """)
    for tb in range(2):
        for u in range(4):
            r = RES3 + (tb * 4 + u) * 2
            p.I(f"buffer_load_dwordx2 v[{r}:{r+1}], v20, s[48:51], s{9+tb} offen offset:{32*u}")
    p.I("buffer_load_dword v80, v21, s[56:59], s11 offen")
    p.I("buffer_load_dword v82, v21, s[56:59], s11 offen offset:64")
    hop(p, name, chain="3")
    p.I(f"""
    v_lshrrev_b32 v22, 2, v3       ; r
    v_and_b32 v23, 3, v3           ; c
    v_lshl_add_u32 v24, v4, 2, v22 ; 4g+r
    v_lshrrev_b32 v25, 1, v24
    v_and_b32 v25, 3, v25          ; f
    v_lshlrev_b32 v24, 7, v24
    v_lshl_add_u32 v24, v23, 3, v24
    """)
    for u in range(4):
        p.I(f"""
        v_xor_b32 v26, {u}, v25
        v_lshl_add_u32 v{V_RA3+u}, v26, 5, v24
        v_add_u32 v{V_RA3+4+u}, 65536, v{V_RA3+u}
        """)
    p.I(f"""
    v_min_u32 v22, 2, v23
    v_lshlrev_b32 v22, 11, v22
    v_lshl_add_u32 v22, v4, 4, v22
    v_add_u32 v{V_TAB}, {TAB}, v22
    s_mov_b32 s44, 0
    """)
    srd(p, 36, P_WS, WS_O, S_TOK * D * 2)
    srd(p, 52, P_WS, WS_H, S_TOK * D * 2)
    p.I(f"""
    {mapcode(MAP4, 3, 15, 14, 9)}
    s_and_b32 s15, s14, 1          ; parity
    s_and_b32 s9, s7, 1
    s_mul_i32 s10, s14, 224
    s_mul_i32 s9, s9, {32*F*2}
    s_add_u32 s10, s10, s9
    s_movk_i32 s9, {F*2}
    s_mov_b32 s12, 0x4925
    """)

    def lines(j):
        t = 100 + 4 * j
        return f"""
        v_add_u32 v{t}, {64*j}, v1
        v_mul_u32_u24 v{t+1}, s12, v{t}
        v_lshrrev_b32 v{t+1}, 18, v{t+1}
        v_mul_u32_u24 v{t+2}, 14, v{t+1}
        v_sub_u32 v{t+2}, v{t}, v{t+2}
        v_lshrrev_b32 v{t+3}, 1, v{t+2}
        v_add_u32 v{t+3}, s15, v{t+3}
        v_cmp_eq_u32 vcc, 7, v{t+3}
        v_and_b32 v{t+2}, 1, v{t+2}
        v_mul_u32_u24 v{t+1}, s9, v{t+1}
        v_cndmask_b32 v{t+3}, v{t+3}, 0, vcc
        v_lshlrev_b32 v{t+3}, 5, v{t+3}
        v_lshl_add_u32 v{t+3}, v{t+2}, 4, v{t+3}
        v_add3_u32 v{V_W4+j}, v{t+1}, v{t+3}, s10
        v_subrev_u32 v{V_W4+j}, {1024*(j%4)}, v{V_W4+j}
        """
    for j in range(7):
        p.I(lines(j))
    p.I("s_waitcnt vmcnt(0)")
    for qq in range(16):
        p.I(f"v_lshlrev_b32 v{ACC3+2*qq}, 16, v{RES3+qq}")
        p.I(f"v_and_b32 v{ACC3+2*qq+1}, 0xffff0000, v{RES3+qq}")
    for qq in range(16):
        mxr = 80 + 2 * (qq // 8)
        p.I(f"v_pk_add_f32 v[{ACC3+2*qq}:{ACC3+2*qq+1}], v[{ACC3+2*qq}:{ACC3+2*qq+1}], v[{mxr}:{mxr+1}] op_sel_hi:[1,0] neg_lo:[0,1] neg_hi:[0,1]")
    L3.start(p)
    poll(p, "2", 21, 22, 13)
    mstamp(p, 4)
    L3.prologue_issue(p)
    L3.body(p)
    mstamp(p, 5)
    srd(p, 56, P_WS, WS_ST, S_TOK * 64)
    srd(p, 48, P_WS, WS_MEAN, S_TOK * 4)
    p.I(f"""
    s_lshr_b32 s12, s7, 1
    s_mul_i32 s46, s7, 7168
    s_cmp_eq_u32 s12, 1
    s_cselect_b32 s40, s{P_WU}, s{P_WG}
    s_cselect_b32 s41, s{P_WU+1}, s{P_WG+1}
    s_mov_b32 s42, {D*F*2}
    s_mov_b32 s43, 0x00020000
    s_mov_b32 s45, {(-64*F*2) & 0xffffffff:#x}
    s_lshr_b32 s9, s8, 2
    s_lshl_b32 s9, s9, 17
    s_lshl_b32 s10, s6, 13
    s_add_u32 s9, s9, s10
    s_and_b32 s10, s8, 3
    s_lshl_b32 s10, s10, 10
    s_add_u32 s9, s9, s10
    s_add_u32 s10, s9, 4096
    v_add_f32 v24, v{ACCM}, v{ACCM+1}
    v_add_f32 v26, v{ACCM+4}, v{ACCM+5}
    """)
    for qq in range(16):
        d = 24 + 2 * (qq // 8)
        p.I(f"v_pk_add_f32 v[{ACC3+2*qq}:{ACC3+2*qq+1}], v[{ACC3+2*qq}:{ACC3+2*qq+1}], v[{d}:{d+1}] op_sel_hi:[1,0] neg_lo:[0,1] neg_hi:[0,1]")
    for qq in range(16):
        p.I(f"v_cvt_pk_bf16_f32 v{RES3+qq}, v{ACC3+2*qq}, v{ACC3+2*qq+1}")
        if qq % 4 == 3:
            tb, j = divmod(qq // 4, 2)
            r = RES3 + (tb * 2 + j) * 4
            p.I(f"buffer_store_dwordx4 v[{r}:{r+3}], v{V_X}, s[52:55], s{9+j} offen offset:{1024*tb}{WT}")
    for qq in range(16):
        p.I(f"v_lshlrev_b32 v{ACC3+2*qq}, 16, v{RES3+qq}")
        p.I(f"v_and_b32 v{ACC3+2*qq+1}, 0xffff0000, v{RES3+qq}")
    for tb in range(2):
        b = ACC3 + tb * 16
        a = 20 + 2 * tb
        p.I(f"v_pk_mul_f32 v[{a}:{a+1}], v[{b}:{b+1}], v[{b}:{b+1}]")
        for i in range(2, 16, 2):
            p.I(f"v_pk_fma_f32 v[{a}:{a+1}], v[{b+i}:{b+i+1}], v[{b+i}:{b+i+1}], v[{a}:{a+1}]")
    p.I("""
    v_add_f32 v20, v20, v21
    v_add_f32 v21, v22, v23
    v_add_f32 v24, v24, v80
    v_add_f32 v26, v26, v82
    """)
    xgroup_reduce_multi(p, [20, 21], [22, 23], "v_add_f32")
    p.I(f"""
    v_lshlrev_b32 v22, 6, v3       ; m*64
    s_lshl_b32 s9, s8, 10          ; mb0*16*64
    s_lshl_b32 s10, s6, 2
    s_add_u32 s9, s9, s10
    v_lshlrev_b32 v23, 2, v3
    s_cmp_lg_u32 s6, 0
    s_cselect_b32 s50, 0, {S_TOK*4}
    v_cmp_gt_u32 vcc, 16, v1
    s_and_saveexec_b64 s[12:13], vcc
    buffer_store_dword v20, v22, s[56:59], s9 offen{WT}
    buffer_store_dword v21, v22, s[56:59], s9 offen offset:1024{WT}
    buffer_store_dword v24, v23, s[48:51], s11 offen{WT}
    buffer_store_dword v26, v23, s[48:51], s11 offen offset:64{WT}
    s_mov_b64 exec, -1
    s_lshl_b32 s13, s8, 6
    s_add_u32 s10, s10, s13
    s_add_u32 s10, s10, {FL3}
    """)
    p.I("s_barrier")
    nf4 = envint("FILL4_MID", 14)
    signal(p, 10, 24, 25, fill4[:nf4])
    mstamp(p, 6)

    p.C("@CHAIN 4")
    for g in fill4[nf4:]:
        p.I("\n".join(g))
    hop(p, name, chain="4")
    p.I(f"""
    {mapcode(MAP4, 3, 5, 6, 9)}
    s_mov_b32 s10, s15             ; parity
    v_lshlrev_b32 v{V_X4}, 4, v1
    s_lshl_b32 s8, s5, 4
    s_lshl_b32 s9, s7, 2
    s_add_u32 s8, s8, s9
    s_lshl_b32 s9, s8, 15
    v_add_u32 v{V_XB4}, s9, v{V_X4}
    s_mov_b32 s44, 0
    v_lshrrev_b32 v8, 2, v3
    v_and_b32 v9, 3, v3
    v_lshl_add_u32 v8, v4, 2, v8
    v_mul_u32_u24 v8, 224, v8
    v_lshl_add_u32 v{V_RA4}, v9, 3, v8
    v_add_u32 v{V_RA4+1}, {2*STG4}, v{V_RA4}
    v_lshlrev_b32 v{V_PF4}, 7, v1
    v_mov_b32 v8, 0x7fffffff
    v_cmp_gt_u32 vcc, 56, v1
    v_lshlrev_b32 v{V_ST}, 6, v1
    v_lshlrev_b32 v{V_M}, 2, v3
    v_cndmask_b32 v{V_PF4}, v8, v{V_PF4}, vcc
    s_lshl_b32 s9, s8, 10
    s_lshl_b32 s12, s2, 2
    s_add_u32 s12, s12, s7
    s_mul_i32 s12, s12, 7168
    v_lshlrev_b32 v238, 7, v1
    v_cmp_gt_u32 vcc, 4, v1
    s_lshl_b32 s11, s2, 1
    s_and_b32 s13, s7, 1
    s_add_u32 s11, s11, s13
    s_mul_i32 s11, s11, 448
    v_cndmask_b32 v238, v8, v238, vcc
    s_add_u32 s11, s11, {max(PFS_FROM, PFS_LEAD)*32*F*2}
    v_and_b32 v8, 1, v4
    v_lshl_add_u32 v8, v8, 7, v{V_M}
    s_lshl_b32 s13, s8, 6
    s_add_u32 s13, s13, {FL3}
    """)
    srd(p, 36, P_WS, WS_H, S_TOK * D * 2)
    srd(p, 48, P_WS, WS_ST, S_TOK * 64)
    srd(p, 52, P_WD, 0, F * D * 2)
    srd(p, 56, P_WS, WS_ACT, S_TOK * F * 2)
    poll(p, "3", 8, 9, 13)
    mstamp(p, 7)
    L4.prologue_issue(p)
    L4.start(p)
    L4.body(p)
    mstamp(p, 8)
    p.I(f"s_waitcnt vmcnt({L4.wait_for(('e', KB - 8))})")
    C1 = -2.0 * 1.4426950408889634 * 0.7978845608028654
    C2 = C1 * 0.044715
    T = V_T
    for j in range(1, 8):
        p.I(f"v_pk_add_f32 v[{T}:{T+1}], v[{T}:{T+1}], v[{T+2*j}:{T+2*j+1}]")
    p.I(f"""
    v_add_f32 v{T}, v{T}, v{T+1}
    v_mov_b32 v{T+1}, {f2u(1e-5):#x}
    v_fmac_f32 v{T+1}, 0x3a800000, v{T}
    """)
    VR = 226
    for tb in range(4):
        p.I(f"ds_bpermute_b32 v{VR+2*tb}, v{V_M}, v{T+1} offset:{64*tb}")
    p.I(f"""
    {mapcode(MAP5, 4, 15, 14, 9)}
    s_lshr_b32 s15, s14, 3         ; kh
    s_and_b32 s14, s14, 7          ; cb5
    v_lshrrev_b32 v233, 8, v{V_X4}       ; l>>4
    v_bfe_u32 v235, v{V_X4}, 5, 3        ; pos>>1
    v_xor_b32 v235, v235, v233
    v_xor_b32 v237, 4, v235
    v_and_b32 v238, 16, v{V_X4}          ; (l&1)*16
    v_lshl_add_u32 v233, s7, 4, v233
    v_lshl_add_u32 v238, v233, 11, v238
    s_lshl_b32 s45, s14, 8
    s_mul_i32 s9, s15, {KB5*32*2048}
    s_add_u32 s45, s45, s9
    v_add_u32 v238, s45, v238
    v_lshl_add_u32 v{V_W5[0]}, v235, 5, v238
    v_lshl_add_u32 v{V_W5[1]}, v237, 5, v238
    v_add_u32 v{V_W5[2]}, {8*2048-2048}, v{V_W5[0]}
    v_add_u32 v{V_W5[3]}, {12*2048-3072}, v{V_W5[1]}
    v_add_u32 v{V_W5[1]}, {4*2048-1024}, v{V_W5[1]}
    s_mov_b32 s45, {(-64*2048) & 0xffffffff:#x}
    s_lshl_b32 s46, s7, 12
    """)
    srd(p, 40, P_WD, 0, F * D * 2)
    p.I(f"""
    s_mul_i32 s9, s6, 7
    s_add_u32 s12, s9, s10
    s_lshr_b32 s12, s12, 1
    s_add_u32 s13, s9, 6
    s_cmp_eq_u32 s10, 1
    s_cselect_b32 s13, s9, s13
    s_lshr_b32 s13, s13, 1
    s_mul_i32 s9, s8, {112*1024}
    s_lshl_b32 s12, s12, 11
    s_lshl_b32 s13, s13, 11
    s_add_u32 s12, s12, s9
    s_add_u32 s13, s13, s9
    s_lshl_b32 s9, s10, 3
    s_add_u32 s13, s13, s9
    s_add_u32 s11, s12, 4096
    s_mov_b32 s48, {f2u(C1):#x}
    s_mov_b32 s49, {f2u(C2):#x}
    s_waitcnt lgkmcnt(0)
    s_barrier
    """)
    q = Prog()
    c1, c2 = T, T + 2
    for tb in range(4):
        vrr = VR + 2 * tb
        q.I(f"""
        v_rsq_f32 v{T+4}, v{vrr}
        v_rcp_f32 v{T+5}, v{vrr}
        v_mul_f32 v{c1}, s48, v{T+4}
        v_mul_f32 v{c2}, s49, v{T+4}
        v_mul_f32 v{c2}, v{c2}, v{T+5}
        """)
        o = 1024 * (tb & 1)
        for sl in range(7):
            g = tb * 56 + sl * 4
            u = tb * 56 + (7 + sl) * 4
            E = T + 8 + 4 * (sl & 1)
            for r in (0, 2):
                q.I(f"v_pk_mul_f32 v[{E+r}:{E+r+1}], v[{g+r}:{g+r+1}], v[{g+r}:{g+r+1}]")
            for r in (0, 2):
                q.I(f"v_pk_fma_f32 v[{E+r}:{E+r+1}], v[{E+r}:{E+r+1}], v[{c2}:{c2+1}], v[{c1}:{c1+1}] op_sel_hi:[1,0,0]")
            for r in (0, 2):
                q.I(f"v_pk_mul_f32 v[{E+r}:{E+r+1}], v[{E+r}:{E+r+1}], v[{g+r}:{g+r+1}]")
            for r in range(4):
                q.I(f"v_exp_f32 v{E+r}, v{E+r}")
            for r in (0, 2):
                q.I(f"v_pk_mul_f32 v[{u+r}:{u+r+1}], v[{u+r}:{u+r+1}], v[{g+r}:{g+r+1}]")
            for r in (0, 2):
                q.I(f"v_pk_fma_f32 v[{E+r}:{E+r+1}], v[{E+r}:{E+r+1}], v[{vrr}:{vrr+1}], v[{vrr}:{vrr+1}] op_sel_hi:[1,0,0]")
            for r in range(4):
                q.I(f"v_rcp_f32 v{E+r}, v{E+r}")
            for r in (0, 2):
                q.I(f"v_pk_mul_f32 v[{u+r}:{u+r+1}], v[{u+r}:{u+r+1}], v[{E+r}:{E+r+1}]")
            dq = tb * 56 + sl * 2
            q.I(f"v_cvt_pk_bf16_f32 v{dq}, v{u}, v{u+1}")
            q.I(f"v_cvt_pk_bf16_f32 v{dq+1}, v{u+2}, v{u+3}")
            if sl in (1, 3, 5):
                d0 = tb * 56 + (sl - 1) * 2
                so, oo = ("s12", o + 2048 * (sl // 2)) if sl < 5 else ("s11", o)
                q.I(f"buffer_store_dwordx4 v[{d0}:{d0+3}], v{V_X4}, s[56:59], {so} offen offset:{oo}{WT}")
            if sl == 6:
                q.I(f"buffer_store_dwordx2 v[{dq}:{dq+1}], v{V_X4}, s[56:59], s13 offen offset:{o}{WT}")
        if tb == 1:
            q.I(f"s_add_u32 s12, s12, {112*2048}")
            q.I(f"s_add_u32 s11, s11, {112*2048}")
            q.I(f"s_add_u32 s13, s13, {112*2048}")
    nf5 = envint("FILL5_EPI", 16)
    nf52 = nf5 + envint("FILL5_MID", 12)
    ql = Prog()
    cut = (len(q.lines) * envint("FILL5_PCT", 80)) // 100
    ql.lines = q.lines[:cut]
    sprinkle(p, ql, fill5[:nf5])
    p.lines += q.lines[cut:]
    p.I(f"""
    s_lshl_b32 s13, s8, 5
    s_lshl_b32 s10, s6, 2
    s_add_u32 s10, s10, s13
    s_add_u32 s10, s10, {FL4}
    """)
    signal(p, 10, 240, 241, fill5[nf5:nf52])
    mstamp(p, 9)

    p.C("@CHAIN 5")
    for g in fill5[nf52:]:
        p.I("\n".join(g))
    hop(p, name, chain="5")
    p.I(LANES2)
    p.I(f"""
    {mapcode(MAP5, 4, 5, 6, 9)}
    s_mov_b32 s6, s14              ; cb5
    s_mov_b32 s12, s15             ; kh
    v_lshlrev_b32 v5, 4, v1
    s_lshl_b32 s8, s5, 3
    s_lshl_b32 s9, s7, 1
    s_add_u32 s8, s8, s9           ; mb0
    s_mul_i32 s44, s8, {KBT*1024}
    s_mul_i32 s9, s12, {KB5*2048}
    s_add_u32 s44, s44, s9
    v_add_u32 v6, s44, v5
    s_mov_b32 s44, 0
    v_lshrrev_b32 v28, 2, v3       ; r
    v_and_b32 v29, 3, v3           ; c
    v_lshl_add_u32 v30, v4, 2, v28 ; 4g+r
    v_and_b32 v31, 7, v30          ; f
    s_lshl_b32 s9, s12, 2
    v_xor_b32 v31, s9, v31
    v_lshlrev_b32 v30, 8, v30
    v_lshl_add_u32 v30, v29, 3, v30
    v_lshl_add_u32 v30, v31, 5, v30
    """)
    for u in range(8):
        p.I(f"""
        v_xor_b32 v{V_RA5+u}, {32*u}, v30
        v_add_u32 v{V_RA5+8+u}, {4*STG5}, v{V_RA5+u}
        """)
    srd(p, 36, P_WS, WS_ACT, S_TOK * F * 2)
    srd(p, 48, P_WS, WS_H, WS_MEAN - WS_H + S_TOK * 4)
    srd(p, 56, P_WS, WS_EX, 256 * 32768)
    p.I(f"""
    s_lshr_b32 s52, s8, 2
    s_lshl_b32 s52, s52, 17
    s_lshl_b32 s10, s6, 14
    s_add_u32 s52, s52, s10
    s_lshl_b32 s10, s12, 13
    s_add_u32 s52, s52, s10
    s_and_b32 s10, s8, 3
    s_lshl_b32 s10, s10, 10
    s_add_u32 s52, s52, s10
    s_add_u32 s53, s52, 4096
    s_lshl_b32 s54, s8, 6
    s_add_u32 s54, s54, {WS_MEAN - WS_H}
    v_lshlrev_b32 v7, 2, v3        ; m*4
    s_lshr_b32 s13, s8, 2
    s_lshl_b32 s13, s13, 7
    s_lshl_b32 s10, s12, 6
    s_add_u32 s13, s13, s10
    s_add_u32 s13, s13, {FL4}
    """)
    poll(p, "4", 7, 28, 13)
    mstamp(p, 10)
    L5.prologue_issue(p)
    p.I(f"""
    s_lshl_b32 s9, s2, 15
    s_lshl_b32 s10, s7, 13
    s_add_u32 s9, s9, s10
    s_add_u32 s10, s9, 4096
    s_xor_b32 s13, s9, {4<<15}
    s_add_u32 s14, s13, 4096
    s_lshl_b32 s15, s2, 9
    s_lshl_b32 s3, s7, 7
    s_add_u32 s15, s15, s3
    s_add_u32 s15, s15, {FL5}
    s_xor_b32 s3, s15, {4<<9}
    v_mov_b32 v28, 0
    v_mov_b32 v29, s{SNON}
    v_lshlrev_b32 v30, 11, v3      ; m*2048
    v_and_b32 v31, 1, v4
    v_lshl_add_u32 v30, v31, 5, v30
    v_lshrrev_b32 v31, 1, v4
    v_lshl_add_u32 v30, v31, 4, v30
    """)
    L5.start(p)
    L5.body(p)
    mstamp(p, 11)
    for tb in range(2):
        for qq in range(8):
            c = ACC5 + tb * 32 + 2 * qq
            t = 12 + 2 * (qq & 3)
            mxr = 112 + 2 * tb
            p.I(f"v_lshlrev_b32 v{t}, 16, v{RES5+tb*8+qq}")
            p.I(f"v_and_b32 v{t+1}, 0xffff0000, v{RES5+tb*8+qq}")
            p.I(f"v_pk_add_f32 v[{t}:{t+1}], v[{t}:{t+1}], v[{mxr}:{mxr+1}] op_sel_hi:[1,0]")
            p.I(f"v_pk_add_f32 v[{c}:{c+1}], v[{c}:{c+1}], v[{t}:{t+1}]")
    srd(p, 52, P_OUT, 0, S_TOK * D * 2)
    poll(p, "5", 28, 31, 3)
    for tb in range(2):
        for u in range(4):
            c = ACC5 + (tb * 8 + 4 + u) * 4
            p.I(f"buffer_load_dwordx4 v[{c}:{c+3}], v5, s[56:59], s{13+tb} offen offset:{1024*u} sc0 sc1")
    p.I(f"""
    s_lshl_b32 s9, s8, 15
    s_lshl_b32 s10, s6, 8
    s_add_u32 s9, s9, s10
    s_lshl_b32 s10, s12, 7
    s_add_u32 s9, s9, s10
    s_add_u32 s10, s9, 32768
    """)
    for tb in range(2):
        for j in range(2):
            p.I(f"s_waitcnt vmcnt({6 - 2*(tb*2+j) + (tb*2+j)})")
            r = RES5 + (tb * 2 + j) * 4
            for uu in range(2):
                u = 2 * j + uu
                c = ACC5 + (tb * 8 + u) * 4
                o = ACC5 + (tb * 8 + 4 + u) * 4
                p.I(f"v_pk_add_f32 v[{c}:{c+1}], v[{c}:{c+1}], v[{o}:{o+1}]")
                p.I(f"v_pk_add_f32 v[{c+2}:{c+3}], v[{c+2}:{c+3}], v[{o+2}:{o+3}]")
                p.I(f"v_cvt_pk_bf16_f32 v{r+2*uu}, v{c}, v{c+1}")
                p.I(f"v_cvt_pk_bf16_f32 v{r+2*uu+1}, v{c+2}, v{c+3}")
            p.I(f"v_permlane16_swap_b32 v{r}, v{r+2}")
            p.I(f"v_permlane16_swap_b32 v{r+1}, v{r+3}")
            p.I(f"buffer_store_dwordx4 v[{r}:{r+3}], v30, s[52:55], s{9+tb} offen offset:{64*j}")
    mstamp_out(p, 13, 14)
    tail(p, name)
    return name, p, kernel_desc(name, 256 + 240, 256), (256, 256, EXB + 20480)


def gen_k1_mega():
    name, p, desc, launch = gen_k1()
    out = []
    for l in p.lines:
        if l.startswith("s_mov_b32 s42, 131072"):
            l = f"s_mov_b32 s42, {FLAG_BYTES}"
        out.append(l)
    p.lines = out
    i = max(k for k, l in enumerate(p.lines) if l.startswith("v_cmp_gt_u32 vcc, 16, v0"))
    new = f"""
    s_add_u32 s5, s5, {FL5}
    s_mul_i32 s6, s3, 384
    v_lshlrev_b32 v7, 2, v0
    v_cmp_gt_u32 vcc, 96, v0
    s_and_saveexec_b64 s[10:11], vcc
    s_cbranch_execz L_k1_ln_kernel_end
    buffer_store_dword v6, v7, s[40:43], s6 offen sc0 sc1
    """.strip().split("\n")
    p.lines[i:i] = [x.strip() for x in new]
    return name, p, desc, launch


def main():
    ks = [gen_mega()]
    ref = open(f"cdna_kernels/{NAME}.s.ref").read().split("\n")
    hdr = [l for l in ref if l.startswith(";") and "@launch" not in l]
    out = "\n".join(hdr) + "\n"
    for name, p, desc, (g, b, lds) in ks:
        if envint("LIST", 1):
            out += f"; @launch kernel={name} grid=({g},1,1) block=({b},1,1) lds={lds}\n"
        else:
            out += f"; @launch grid=({g},1,1) block=({b},1,1) lds={lds}\n"
    out += '.amdgcn_target "amdgcn-amd-amdhsa--gfx950"\n'
    out += MACROS
    for name, p, desc, _ in ks:
        out += compress(p.finalize())
        print(name, "code bytes", getattr(p, "code_bytes", None), file=sys.stderr)
    out += '.section .rodata,"a"\n'
    for name, p, desc, _ in ks:
        out += ".p2align 6\n" + desc
    dst = sys.argv[1] if len(sys.argv) > 1 else f"cdna_kernels/{NAME}.s"
    open(dst, "w").write(out)
    print("wrote", dst, len(out), "bytes")


if __name__ == "__main__":
    main()
```

```python
import sys
from asmlib import *

NAME = "sequential_preLN__sliding_local_dilated__geglu_ffn__prompt"
MB = 1 << 20
WS_XN, WS_O, WS_H, WS_ST, WS_ACT = 0, 4 * MB, 8 * MB, 12 * MB, 16 * MB
WS_MX, WS_MEAN, WS_RM, WS_FLAG, WS_EX = 13 * MB, 13 * MB + 65536, 13 * MB + 131072, 14 * MB, 32 * MB
import os
if os.environ.get("REUSE") == "1":
    WS_H, WS_EX = WS_XN, WS_O
if os.environ.get("REUSE") == "2":
    WS_H = WS_XN
    WS_O = WS_ACT
S_TOK, D, F = 2048, 1024, 3584
P_X, P_WQKV, P_WO, P_BX, P_WG, P_WU, P_WD, P_OUT, P_DBG, P_WS = 16, 18, 20, 22, 24, 26, 28, 30, 32, 34


import os
def envint(k, d):
    return int(os.environ.get(k, d))
K2_P0, K2_RATE = envint("K2_P0", 2), float(os.environ.get("K2_RATE", 1.5))
K3_P0, K3_RATE = envint("K3_P0", 4), float(os.environ.get("K3_RATE", 2))
K4_P0, K4_RATE = envint("K4_P0", 2), float(os.environ.get("K4_RATE", 1.5))
K5_P0, K5_RATE = envint("K5_P0", 4), float(os.environ.get("K5_RATE", 1.5))
K5_R, K5_FLAGLAG, K5_MODE = envint("K5_R", 16), envint("K5_FLAGLAG", 5), envint("K5_MODE", 0)
STPOL = os.environ.get("STPOL", " sc0 sc1")
PF1, PF2, PF3, PF4 = envint("PF1", 1), envint("PF2", 1), envint("PF3", 0), envint("PF4", 2)
PF2T, PF3T = envint("PF2T", 25), envint("PF3T", 12)
K3_S, K5_S = envint("K3_S", 4), envint("K5_S", 8)
INPOL = os.environ.get("INPOL", " nt")
ROT = envint("ROT", 0)
FAKE5 = envint("FAKE5", 28)


def f2u(x):
    import struct
    return struct.unpack("<I", struct.pack("<f", x))[0]


def head(p, name, nwg):
    p.raw(".text")
    p.raw(f".globl {name}")
    p.raw(".p2align 12")
    p.raw(f".type {name},@function")
    p.label(name)
    p.I(f"""
    s_cmp_ge_u32 s2, {nwg}
    s_cbranch_scc1 L_{name}_end
    s_load_dwordx16 s[16:31], s[0:1], 0
    s_load_dwordx4 s[32:35], s[0:1], 64
    """)
    stamp(p, 0)


import os
STAMP = int(os.environ.get("STAMP", "0"))
STEPV = {"k2": 31, "k3": 31, "k4": 238, "k5": 127, "m2": 231, "m3": 31, "m4": 234, "m5": 127}
WS_STAMP = 200 * MB


def stamp(p, i):
    if STAMP and not os.environ.get("MEGA"):
        p.I(f"""
        s_memtime s[{64+4*i}:{65+4*i}]
        s_memrealtime s[{66+4*i}:{67+4*i}]
        """)


def pstamp(p, i):
    if STAMP == 3:
        p.I(f"s_memtime s[{84+2*i}:{85+2*i}]")


def stamp_out(p, kid, n):
    if not STAMP:
        return
    p.I("s_waitcnt vmcnt(0) lgkmcnt(0)")
    stamp(p, n - 1)
    p.I("s_mov_b64 exec, -1")
    srd(p, 96, P_WS, WS_STAMP + kid * (1 << 20), 1 << 20)
    p.I(f"""
    s_waitcnt lgkmcnt(0)
    s_lshl_b32 s100, s2, 10
    s_lshl_b32 s101, s7, 7
    s_add_u32 s100, s100, s101
    v_mov_b32 v0, 0
    s_mov_b64 exec, 1
    """)
    for i in range(n):
        for j in range(4):
            p.I(f"v_mov_b32 v{4+j}, s{64+4*i+j}")
        p.I(f"buffer_store_dwordx4 v[4:7], v0, s[96:99], s100 offen offset:{16*i}")
        p.I("s_nop 1")
    if STAMP == 3:
        for i in range(5):
            p.I(f"v_mov_b32 v4, s{84+2*i}")
            p.I(f"buffer_store_dword v4, v0, s[96:99], s100 offen offset:{64+4*i}")
    if STAMP == 2:
        sv = STEPV["k%d" % kid]
        p.I(f"""
        s_mov_b64 exec, -1
        v_mbcnt_lo_u32_b32 v0, -1, 0
        v_mbcnt_hi_u32_b32 v0, -1, v0
        v_lshlrev_b32 v0, 2, v0
        s_lshl_b32 s100, s2, 10
        s_lshl_b32 s101, s7, 8
        s_add_u32 s100, s100, s101
        s_add_u32 s100, s100, {512*1024}
        buffer_store_dword v{sv}, v0, s[96:99], s100 offen
        """)


HOP = envint("HOP", 1)


def hop(p, name, nw=4, chain="0"):
    pstamp(p, 1)
    if not HOP:
        pstamp(p, 2)
        return
    p.paged = (name, nw)
    for w in range(nw - 1):
        p.I(f"s_cmp_eq_u32 s7, {w}")
        p.I(f"s_cbranch_scc1 L_{name}_hop{chain}_e{w}")
    p.I(f"s_branch L_{name}_hop{chain}_e{nw-1}")
    p.label(f"L_{name}_hop{chain}_ret")
    pstamp(p, 2)


def tail(p, name):
    p.label(f"L_{name}_end")
    p.I("s_endpgm")


def srd(p, d, base, off, nbytes):
    if off:
        p.I(f"""
        s_add_u32 s{d}, s{base}, {off}
        s_addc_u32 s{d+1}, s{base+1}, 0
        """)
    else:
        p.I(f"""
        s_mov_b32 s{d}, s{base}
        s_mov_b32 s{d+1}, s{base+1}
        """)
    p.I(f"""
    s_mov_b32 s{d+2}, {nbytes}
    s_mov_b32 s{d+3}, 0x00020000
    """)


def xgroup_reduce(p, v, tmp, op):
    p.I(f"""
    v_mov_b32 v{tmp}, v{v}
    v_permlane16_swap_b32 v{v}, v{tmp}
    {op} v{v}, v{v}, v{tmp}
    v_mov_b32 v{tmp}, v{v}
    v_permlane32_swap_b32 v{v}, v{tmp}
    {op} v{v}, v{v}, v{tmp}
    """)


def xgroup_reduce_multi(p, vs, tmps, op):
    for sw in ("v_permlane16_swap_b32", "v_permlane32_swap_b32"):
        for v, t in zip(vs, tmps):
            p.I(f"v_mov_b32 v{t}, v{v}")
        for v, t in zip(vs, tmps):
            p.I(f"{sw} v{v}, v{t}")
        for v, t in zip(vs, tmps):
            p.I(f"{op} v{v}, v{v}, v{t}")


def gen_k1():
    name = "k1_ln_kernel"
    p = Prog()
    head(p, name, 256)
    p.I("""
    v_and_b32 v1, 63, v0          ; lane
    v_lshrrev_b32 v2, 6, v0       ; wave
    s_cmp_ge_u32 s2, 128
    s_cbranch_scc1 L_k1_aux
    s_and_b32 s4, s2, 3
    s_lshl_b32 s4, s4, 5
    s_bfe_u32 s5, s2, 0x10002
    s_lshl_b32 s5, s5, 4
    s_add_u32 s4, s4, s5
    s_lshr_b32 s5, s2, 3
    s_add_u32 s4, s4, s5
    v_and_b32 v3, 15, v1          ; m
    v_lshrrev_b32 v4, 4, v1       ; g
    s_lshl_b32 s3, s4, 15
    v_lshlrev_b32 v5, 11, v3      ; m*2048
    v_lshl_add_u32 v5, v2, 8, v5  ; + w*256
    v_lshl_add_u32 v5, v4, 4, v5  ; + g*16
    v_lshlrev_b32 v6, 4, v1       ; lane*16
    v_lshl_add_u32 v6, v2, 13, v6 ; + w*4 kb*2048
    s_lshr_b32 s5, s4, 1
    s_lshl_b32 s5, s5, 16
    s_and_b32 s6, s4, 1
    s_lshl_b32 s6, s6, 10
    s_add_u32 s5, s5, s6
    s_add_u32 s6, s5, 4096
    v_lshlrev_b32 v7, 5, v3
    v_lshl_add_u32 v8, v2, 2, v7
    s_waitcnt lgkmcnt(0)
    """)
    srd(p, 36, P_X, 0, S_TOK * D * 2)
    for j in range(4):
        p.I(f"buffer_load_dwordx4 v[{16+4*j}:{19+4*j}], v5, s[36:39], s3 offen offset:{64*j}{INPOL}")
    srd(p, 40, P_WS, WS_XN, S_TOK * D * 2)
    srd(p, 44, P_WS, WS_MX, S_TOK * 4)
    for j in range(4):
        p.I(f"s_waitcnt vmcnt({3-j})")
        for r in range(4):
            x = 16 + 4 * j + r
            p.I(f"v_lshlrev_b32 v{32+2*(4*j+r)}, 16, v{x}")
            p.I(f"v_and_b32 v{33+2*(4*j+r)}, 0xffff0000, v{x}")
    p.I("v_pk_add_f32 v[10:11], v[32:33], v[34:35]")
    p.I("v_pk_add_f32 v[12:13], v[36:37], v[38:39]")
    for i in range(2, 8):
        p.I(f"v_pk_add_f32 v[10:11], v[10:11], v[{32+4*i}:{33+4*i}]")
        p.I(f"v_pk_add_f32 v[12:13], v[12:13], v[{34+4*i}:{35+4*i}]")
    p.I("""
    v_pk_add_f32 v[10:11], v[10:11], v[12:13]
    v_add_f32 v10, v10, v11
    """)
    xgroup_reduce(p, 10, 11, "v_add_f32")
    p.I("""
    ds_write_b32 v8, v10
    s_waitcnt lgkmcnt(0)
    s_barrier
    ds_read_b128 v[16:19], v7
    ds_read_b128 v[20:23], v7 offset:16
    s_waitcnt lgkmcnt(0)
    v_pk_add_f32 v[16:17], v[16:17], v[18:19]
    v_pk_add_f32 v[20:21], v[20:21], v[22:23]
    v_pk_add_f32 v[16:17], v[16:17], v[20:21]
    v_add_f32 v16, v16, v17
    v_mul_f32 v14, 0x3a800000, v16
    """)
    for i in range(16):
        p.I(f"v_pk_add_f32 v[{32+2*i}:{33+2*i}], v[{32+2*i}:{33+2*i}], v[14:15] op_sel_hi:[1,0] neg_lo:[0,1] neg_hi:[0,1]")
    p.I("v_pk_mul_f32 v[10:11], v[32:33], v[32:33]")
    p.I("v_pk_mul_f32 v[12:13], v[34:35], v[34:35]")
    for i in range(1, 8):
        p.I(f"v_pk_fma_f32 v[10:11], v[{32+4*i}:{33+4*i}], v[{32+4*i}:{33+4*i}], v[10:11]")
        p.I(f"v_pk_fma_f32 v[12:13], v[{34+4*i}:{35+4*i}], v[{34+4*i}:{35+4*i}], v[12:13]")
    p.I("""
    v_pk_add_f32 v[10:11], v[10:11], v[12:13]
    v_add_f32 v10, v10, v11
    """)
    xgroup_reduce(p, 10, 11, "v_add_f32")
    p.I(f"""
    ds_write_b32 v8, v10 offset:512
    s_waitcnt lgkmcnt(0)
    s_barrier
    ds_read_b128 v[16:19], v7 offset:512
    ds_read_b128 v[20:23], v7 offset:528
    s_waitcnt lgkmcnt(0)
    v_pk_add_f32 v[16:17], v[16:17], v[18:19]
    v_pk_add_f32 v[20:21], v[20:21], v[22:23]
    v_pk_add_f32 v[16:17], v[16:17], v[20:21]
    v_add_f32 v16, v16, v17
    v_mov_b32 v17, {f2u(1e-5):#x}
    v_fmac_f32 v17, 0x3a800000, v16
    v_rsq_f32 v12, v17
    """)
    for j in range(4):
        for r in range(4):
            q = 4 * j + r
            p.I(f"v_pk_mul_f32 v[{32+2*q}:{33+2*q}], v[{32+2*q}:{33+2*q}], v[12:13] op_sel_hi:[1,0]")
        for r in range(4):
            q = 4 * j + r
            p.I(f"v_cvt_pk_bf16_f32 v{16+q}, v{32+2*q}, v{33+2*q}")
        p.I(f"buffer_store_dwordx4 v[{16+4*j}:{19+4*j}], v6, s[40:43], s{5+j//2} offen offset:{2048*(j&1)}{STPOL}")
    p.I("""
    v_cmp_gt_u32 vcc, 16, v0
    s_and_saveexec_b64 s[10:11], vcc
    s_cbranch_execz L_k1_ln_kernel_end
    v_lshlrev_b32 v3, 2, v0
    s_lshl_b32 s4, s4, 6
    buffer_store_dword v14, v3, s[44:47], s4 offen
    s_endpgm
    """)
    p.label("L_k1_aux")
    p.I(f"""
    s_cmp_ge_u32 s2, 192
    s_cbranch_scc1 L_k1_pf
    s_sub_u32 s3, s2, 128
    s_lshl_b32 s3, s3, 15           ; *16 rows*2048
    v_lshlrev_b32 v3, 4, v1
    v_lshl_add_u32 v3, v2, 12, v3   ; + w*2 rows
    s_waitcnt lgkmcnt(0)
    """)
    srd(p, 36, P_WO, 0, D * D * 2)
    for j in range(4):
        p.I(f"buffer_load_dwordx4 v[{16+4*j}:{19+4*j}], v3, s[36:39], s3 offen offset:{1024*j}")
    srd(p, 40, P_WS, WS_RM, 4096)
    for j in range(4):
        p.I(f"s_waitcnt vmcnt({3-j})")
        for r in range(4):
            x = 16 + 4 * j + r
            p.I(f"v_lshlrev_b32 v{32+2*(4*j+r)}, 16, v{x}")
            p.I(f"v_and_b32 v{33+2*(4*j+r)}, 0xffff0000, v{x}")
    for row in range(2):
        b = 32 + 16 * row
        a = 10 + 2 * row
        p.I(f"v_pk_add_f32 v[{a}:{a+1}], v[{b}:{b+1}], v[{b+2}:{b+3}]")
        for i in range(2, 8):
            p.I(f"v_pk_add_f32 v[{a}:{a+1}], v[{a}:{a+1}], v[{b+2*i}:{b+2*i+1}]")
    p.I("""
    v_add_f32 v10, v10, v11
    v_add_f32 v11, v12, v13
    """)
    for sh in (1, 2, 4, 8):
        p.I(f"v_add_f32_dpp v12, v10, v10 row_ror:{sh} row_mask:0xf bank_mask:0xf")
        p.I(f"v_add_f32_dpp v13, v11, v11 row_ror:{sh} row_mask:0xf bank_mask:0xf")
        p.I("v_mov_b32 v10, v12")
        p.I("v_mov_b32 v11, v13")
    xgroup_reduce_multi(p, [10, 11], [12, 13], "v_add_f32")
    p.I(f"""
    v_mul_f32 v10, 0x3a800000, v10
    v_mul_f32 v11, 0x3a800000, v11
    v_cvt_pk_bf16_f32 v12, v10, v11
    v_lshlrev_b32 v14, 16, v12
    v_and_b32 v15, 0xffff0000, v12
    v_sub_f32 v10, v10, v14
    v_sub_f32 v11, v11, v15
    v_cvt_pk_bf16_f32 v13, v10, v11
    s_sub_u32 s3, s2, 128
    s_lshr_b32 s4, s3, 1
    s_lshl_b32 s4, s4, 6                  ; kb*64
    s_and_b32 s5, s3, 1
    s_lshl_b32 s5, s5, 3                  ; (j>>4)*4*2
    s_add_u32 s4, s4, s5
    v_lshrrev_b32 v3, 1, v2               ; g = (2w)>>2
    v_lshlrev_b32 v3, 4, v3
    v_and_b32 v4, 1, v2
    v_lshl_add_u32 v3, v4, 2, v3          ; + (2w&3)*2
    v_cmp_eq_u32 vcc, 0, v1
    s_and_saveexec_b64 s[10:11], vcc
    buffer_store_dword v12, v3, s[40:43], s4 offen
    buffer_store_dword v13, v3, s[40:43], s4 offen offset:2048
    s_endpgm
    """)
    p.label("L_k1_pf")
    p.I(f"""
    s_sub_u32 s3, s2, 192
    s_lshl_b32 s4, s3, 16           ; *512 lines*128
    v_lshlrev_b32 v3, 7, v0
    s_lshl_b32 s5, s3, 11
    v_mov_b32 v6, 0
    s_waitcnt lgkmcnt(0)
    """)
    srd(p, 36, P_WQKV, 0, D * 3 * D * 2)
    srd(p, 40, P_WS, WS_FLAG, 1024 * 128)
    if PF1:
        p.I(f"""
        buffer_load_dword v4, v3, s[36:39], s4 offen
        s_add_u32 s4, s4, {64*65536}
        buffer_load_dword v5, v3, s[36:39], s4 offen
        """)
    p.I(f"""
    v_cmp_gt_u32 vcc, 16, v0
    s_and_saveexec_b64 s[10:11], vcc
    s_cbranch_execz L_k1_ln_kernel_end
    buffer_store_dword v6, v3, s[40:43], s5 offen
    """)
    tail(p, name)
    return name, p, kernel_desc(name, 64, 64), (256, 512, 2048)


class VStep:
    def __init__(self, mfmas, reads, xneed, wneed, extra=None, post=None):
        self.mfmas, self.reads, self.xneed, self.wneed = mfmas, reads, list(xneed), list(wneed)
        self.extra = extra or []
        self.post = post or []


def merge_step(mfmas, reads, vm, lead=1, tail_free=3, rpg=2):
    nm = len(mfmas)
    gaps = [[] for _ in range(nm)]
    usable = max(1, nm - tail_free - (lead - 1))
    nr = len(reads)
    span = max(1, min(usable, nr if nr <= usable else usable))
    for i, r in enumerate(reads):
        gi = lead - 1 + (i * span) // max(nr, 1)
        gaps[gi].append(("r", r))
    nv = len(vm)
    vspan = max(1, nm - 1 - (lead - 1))
    for i, v in enumerate(vm):
        gi = lead - 1 + ((2 * i + 1) * vspan) // (2 * nv)
        gaps[gi].append(("v", v))
    out = []
    order = []
    for i, m in enumerate(mfmas):
        out.append(m)
        for kind, g in gaps[i]:
            if kind == "v":
                order.append(g)
                out += g[2]
            else:
                out += g
    return out, order


class Loop:
    def __init__(self, tag, vsteps, NST, SUB, S, RX, U, wdma, xload, cnt_sreg, lead=1, tail_free=3,
                 P0=2, RATE=2.0):
        self.__dict__.update(locals())
        self.issued = []
        self.queue = []
        for st in range(NST):
            self.queue += [("w", st, g) for g in wdma(st)]
            for sub in range(SUB):
                t = st * SUB + sub
                self.queue += [("x", t, g) for g in xload(t)]
        self.qi = 0
        self.full_len = len(self.queue)
        self.w_last = {}
        self.x_last = {}
        for i, v in enumerate(vsteps):
            for w in v.wneed:
                self.w_last[w] = i
            for x in v.xneed:
                self.x_last[x] = i
        self.w_free = set()
        self.tot_mfma = sum(len(v.mfmas) for v in vsteps)

    def _count(self, g, tag):
        for t in g:
            if t.startswith("buffer_") or t.startswith("global_"):
                self.issued.append(tag)

    def _need(self, tags):
        last = -1
        for i, t in enumerate(self.issued):
            if t in tags:
                last = i
        return len(self.issued) - 1 - last

    def _allowed(self, item, i):
        kind, idx, g = item
        if kind == "w":
            return idx < self.S or (idx - self.S) in self.w_free
        return idx < self.RX or self.x_last[idx - self.RX] < i

    def prologue_issue(self, p, upto=None):
        lim = self.P0 if upto is None else upto
        while self.qi < len(self.queue):
            kind, idx, g = self.queue[self.qi]
            st = idx if kind == "w" else idx // self.SUB
            if st >= lim or not self._allowed(self.queue[self.qi], 0):
                break
            self._count(g, (kind, idx))
            p.I("\n".join(g))
            self.qi += 1

    def take_prefill(self, nst):
        pre = [g for k, i, g in self.queue if k == "w" and i < nst]
        self.queue = [q for q in self.queue if not (q[0] == "w" and q[1] < nst)]
        self.pre_landed = set(range(nst))
        return pre

    def extra_vm(self, tag, n=1):
        for _ in range(n):
            self.issued.append(tag)

    def wait_for(self, tag):
        return self._need({tag})

    def start(self, p):
        self.landed = set(self.vsteps[0].wneed) | getattr(self, "pre_landed", set())
        n = self._need({("w", w) for w in self.landed})
        pstamp(p, 3)
        p.I(f"s_waitcnt vmcnt({min(n,63)})")
        pstamp(p, 4)
        p.I("s_barrier")
        self.nbar = 1
        stamp(p, 1)
        if STAMP == 2:
            p.I("s_memtime s[80:81]")
        for g in self.vsteps[0].reads:
            p.I("\n".join(g))

    def body(self, p):
        import math
        U = self.U
        vs = self.vsteps
        N = len(vs)
        steps = []
        xl = set()
        per_mfma = self.full_len / self.tot_mfma
        for i, v in enumerate(vs):
            txt = []
            tags = {("x", x) for x in v.xneed if x not in xl}
            xl |= set(v.xneed)
            nxt = vs[i + 1] if i + 1 < N else None
            neww = [w for w in (nxt.wneed if nxt else []) if w not in self.landed]
            tags |= {("w", w) for w in neww}
            for j in range(self.qi, len(self.queue)):
                assert (self.queue[j][0], self.queue[j][1]) not in tags, "load not issued in time"
            if tags:
                n = min(self._need(tags), 63)
                txt.append(f"s_waitcnt vmcnt({n}) lgkmcnt(0)")
            else:
                txt.append("s_waitcnt lgkmcnt(0)")
            freeable = [w for w, l in self.w_last.items()
                        if l <= i and w not in self.w_free and w + self.S < self.NST]
            if neww or freeable:
                txt.append("s_barrier")
                self.nbar += 1
                self.landed |= set(neww)
                self.w_free |= {w for w, l in self.w_last.items() if l <= i}
            if STAMP == 2:
                sv = STEPV[self.tag[:2]]
                txt += [f"v_writelane_b32 v{sv}, s80, {i}", "s_memtime s[80:81]"]
            vm = []
            budget = int(math.ceil(per_mfma * len(v.mfmas) * self.RATE))
            while self.qi < len(self.queue) and budget > 0 and self._allowed(self.queue[self.qi], i):
                vm.append(self.queue[self.qi])
                self.qi += 1
                budget -= 1
            vm += [("e", i, g) for g in v.extra]
            body, order = merge_step(v.mfmas, nxt.reads if nxt else [], vm, self.lead, self.tail_free)
            for kind, idx, g in order:
                self._count(g, (kind, idx))
            txt += body
            if v.post:
                txt += v.post(self) if callable(v.post) else v.post
            steps.append(txt)
        best = (0, 0)
        for t0 in range(0, max(0, N - U)):
            n = 0
            while t0 + (n + 1) * U <= N and all(steps[t0 + n * U + j] == steps[t0 + j] for j in range(U)):
                n += 1
            if n > best[1]:
                best = (t0, n)
        t0, n = best
        if n < 2:
            t0, n = 0, 0
        for t in range(t0):
            p.I("\n".join(steps[t]))
        if n:
            p.I(f"s_mov_b32 s{self.cnt_sreg}, {n}")
            p.label(f"L_{self.tag}_loop")
            for j in range(U):
                s = list(steps[t0 + j])
                if j == U - 1:
                    assert s[-1].startswith("v_mfma")
                    s = s[:-1] + [f"s_sub_u32 s{self.cnt_sreg}, s{self.cnt_sreg}, 1",
                                  f"s_cmp_lg_u32 s{self.cnt_sreg}, 0"] + s[-1:]
                p.I("\n".join(s))
            p.I(f"s_cbranch_scc1 L_{self.tag}_loop")
        for t in range(t0 + n * U, N):
            p.I("\n".join(steps[t]))
        print(self.tag, "loop: t0", t0, "iters", n, "of", U, "vsteps", N, file=sys.stderr)
        stamp(p, 2)
        if STAMP == 2 and os.environ.get("MEGA"):
            sv = STEPV[self.tag[:2]]
            ph = int(self.tag[1])
            srd(p, 64, P_WS, WS_STAMP + ph * (1 << 20), 1 << 20)
            p.I(f"""
            s_waitcnt lgkmcnt(0)
            v_writelane_b32 v{sv}, s80, {N}
            v_mbcnt_lo_u32_b32 v{sv-1}, -1, 0
            v_mbcnt_hi_u32_b32 v{sv-1}, -1, v{sv-1}
            v_lshlrev_b32 v{sv-1}, 2, v{sv-1}
            s_lshl_b32 s68, s2, 10
            s_lshl_b32 s69, s7, 8
            s_add_u32 s68, s68, s69
            buffer_store_dword v{sv}, v{sv-1}, s[64:67], s68 offen
            """)
            self.extra_vm("dbg")


MFMA = "v_mfma_f32_16x16x32_bf16"


WGMAP_4x8 = """
    s_and_b32 s3, s2, 7            ; xcd
    s_lshr_b32 s4, s2, 3           ; idx 0..31
    s_and_b32 s5, s3, 3
    s_lshl_b32 s5, s5, 2
    s_and_b32 s6, s4, 3
    s_add_u32 s5, s5, s6
    s_lshr_b32 s6, s3, 2
    s_lshl_b32 s6, s6, 3
    s_lshr_b32 s7, s4, 2
    s_add_u32 s6, s6, s7
"""
LANES = """
    v_lshrrev_b32 v2, 6, v0
    v_and_b32 v1, 63, v0           ; lane
    v_readfirstlane_b32 s7, v2     ; wave
    v_and_b32 v3, 15, v1           ; m / i
    v_lshrrev_b32 v4, 4, v1        ; g
"""


def gen_k3():
    name = "k3_wo_kernel"
    KB = D // 32
    SUB, S = 2, K3_S
    RX = S * SUB
    TAB = S * 8192
    ZERO = TAB + 4096
    p = Prog()
    head(p, name, 256)
    p.I(WGMAP_4x8)
    p.I(LANES)
    p.I(f"""
    s_cmp_eq_u32 s7, 4
    s_cbranch_scc1 L_{name}_helper
    """)
    ACC, ACCM, RES = 32, 84, 64
    V_X, V_W0, V_W1, V_TAB = 5, 7, 8, 9
    V_RA = 10
    p.I(f"""
    v_lshlrev_b32 v{V_X}, 4, v1
    s_lshl_b32 s8, s5, 3
    s_lshl_b32 s9, s7, 1
    s_add_u32 s8, s8, s9           ; mb0
    s_lshl_b32 s9, s8, 15          ; (mb0/2)*64KB
    v_add_u32 v6, s9, v{V_X}
    s_and_b32 s14, s3, {3 if ROT else 0}
    s_lshl_b32 s44, s14, 14
    v_lshrrev_b32 v14, 3, v1
    v_lshrrev_b32 v15, 1, v14
    v_and_b32 v15, 3, v15          ; f
    v_bfe_u32 v16, v1, 1, 2        ; pos>>1
    v_xor_b32 v16, v16, v15        ; unit
    v_and_b32 v17, 1, v1
    v_lshlrev_b32 v16, 5, v16
    v_lshl_add_u32 v16, v17, 4, v16
    v_lshl_add_u32 v14, s7, 4, v14
    v_lshl_add_u32 v{V_W0}, v14, 11, v16
    s_lshl_b32 s9, s6, 7
    v_add_u32 v{V_W0}, s9, v{V_W0} ; + cb*128
    v_add_u32 v{V_W1}, {8*2048-1024}, v{V_W0}
    s_lshl_b32 s45, s14, 19
    s_lshl_b32 s46, s7, 11
    s_waitcnt lgkmcnt(0)
    """)
    srd(p, 40, P_WO, 0, D * D * 2)
    srd(p, 36, P_WS, WS_O, S_TOK * D * 2)

    AX, AW, AM = 0, RX * 8, RX * 8 + 64

    def wdma(st):
        slot = st % S
        g0 = [f"s_add_u32 m0, s46, {slot*8192}"]
        if st:
            g0.append(f"s_add_u32 s45, s45, {64*2048}")
            g0.append(f"s_and_b32 s45, s45, {D*D*2-1:#x}")
        g0.append(f"buffer_load_dwordx4 v{V_W0}, s[40:43], s45 offen lds")
        return [g0, [f"buffer_load_dwordx4 v{V_W1}, s[40:43], s45 offen offset:1024 lds"]]

    def xload(t):
        a = AX + (t % RX) * 8
        o = (t & 1) * 2048
        g = [[f"buffer_load_dwordx4 a[{a}:{a+3}], v6, s[36:39], s44 offen offset:{o}"],
             [f"buffer_load_dwordx4 a[{a+4}:{a+7}], v6, s[36:39], s44 offen offset:{o+1024}"]]
        if t & 1:
            g[-1] += ["s_add_u32 s44, s44, 4096", "s_and_b32 s44, s44, 0xffff"]
        return g

    vs = []
    for st in range(KB // 2):
        rd, mf = [], []
        for sub in range(2):
            t = 2 * st + sub
            base = (st % S) * 8192 + sub * 4096
            aw = AW + (st & 1) * 32 + sub * 16
            am = AM + (st & 1) * 8 + sub * 4
            ax = AX + (t % RX) * 8
            for u in range(4):
                for hh in range(2):
                    rd.append([f"ds_read_b64_tr_b16 a[{aw+4*u+2*hh}:{aw+4*u+2*hh+1}], v{V_RA+u} offset:{base+hh*2048}"])
            rd.append([f"ds_read_b128 a[{am}:{am+3}], v{V_TAB} offset:{64*t}"])
            for u in range(4):
                for tb in range(2):
                    c = ACC + (tb * 4 + u) * 4
                    cin = "0" if t == 0 else f"v[{c}:{c+3}]"
                    mf.append(f"{MFMA} v[{c}:{c+3}], a[{aw+4*u}:{aw+4*u+3}], a[{ax+4*tb}:{ax+4*tb+3}], {cin}")
            for tb in range(2):
                c = ACCM + 4 * tb
                cin = "0" if t == 0 else f"v[{c}:{c+3}]"
                mf.append(f"{MFMA} v[{c}:{c+3}], a[{am}:{am+3}], a[{ax+4*tb}:{ax+4*tb+3}], {cin}")
        vs.append(VStep(mf, rd, [2 * st, 2 * st + 1], [st]))

    L = Loop(name, vs, KB // 2, SUB, S, RX, 8, wdma, xload, cnt_sreg=47, lead=1, tail_free=6, P0=K3_P0, RATE=K3_RATE)
    pstamp(p, 0)
    L.prologue_issue(p, upto=1)
    srd(p, 60, P_WS, WS_RM, 4096)
    srd(p, 48, P_X, 0, S_TOK * D * 2)
    srd(p, 56, P_WS, WS_MX, S_TOK * 4)
    p.I(f"""
    s_lshl_b32 s9, s7, 10
    s_add_u32 m0, s9, {TAB}
    s_lshl_b32 s10, s14, 9
    s_add_u32 s10, s10, s9
    v_add_u32 v21, s10, v{V_X}
    v_and_b32 v21, 0x7ff, v21
    s_and_b32 s9, s9, 0x800
    v_lshlrev_b32 v20, 11, v3
    buffer_load_dwordx4 v21, s[60:63], s9 offen lds
    v_lshl_add_u32 v20, v4, 3, v20
    s_lshl_b32 s9, s8, 15          ; mb0*16*2048
    s_lshl_b32 s10, s6, 7
    s_add_u32 s9, s9, s10          ; + cb*128
    s_add_u32 s10, s9, 32768
    v_lshlrev_b32 v21, 2, v3
    s_lshl_b32 s11, s8, 6
    """)
    L.extra_vm(("w", 0), 1)
    p.I("buffer_load_dword v80, v21, s[56:59], s11 offen")
    p.I("buffer_load_dword v82, v21, s[56:59], s11 offen offset:64")
    L.extra_vm("res", 2)
    IRES = KB // 2 - S + envint('K3_RESLAG', 1)
    for tb in range(2):
        for u in range(4):
            r = RES + (tb * 4 + u) * 2
            vs[IRES].extra.append([f"buffer_load_dwordx2 v[{r}:{r+1}], v20, s[48:51], s{9+tb} offen offset:{32*u}{INPOL}"])
    L.prologue_issue(p, upto=min(3, K3_P0))
    hop(p, name)
    L.prologue_issue(p)
    p.I(f"""
    v_lshrrev_b32 v14, 2, v3       ; r
    v_and_b32 v15, 3, v3           ; c
    v_lshl_add_u32 v16, v4, 2, v14 ; 4g+r
    v_lshrrev_b32 v17, 1, v16
    v_and_b32 v17, 3, v17          ; f
    v_lshlrev_b32 v16, 7, v16
    v_lshl_add_u32 v16, v15, 3, v16
    """)
    for u in range(4):
        p.I(f"""
        v_xor_b32 v18, {u}, v17
        v_lshl_add_u32 v{V_RA+u}, v18, 5, v16
        """)
    p.I(f"""
    v_min_u32 v14, 2, v15
    v_lshlrev_b32 v14, 11, v14
    v_lshl_add_u32 v14, v4, 4, v14
    v_add_u32 v{V_TAB}, {TAB}, v14
    v_mov_b32 v16, 0
    v_mov_b32 v17, 0
    v_lshlrev_b32 v14, 3, v0
    v_add_u32 v14, {ZERO}, v14
    ds_write_b64 v14, v[16:17]
    ds_write_b64 v14, v[16:17] offset:2048
    """)
    srd(p, 52, P_WS, WS_H, S_TOK * D * 2)
    srd(p, 56, P_WS, WS_ST, S_TOK * 64)
    srd(p, 60, P_WS, WS_MEAN, S_TOK * 4)
    p.I("s_waitcnt lgkmcnt(0)")
    L.start(p)
    L.body(p)
    p.I("s_waitcnt vmcnt(0)")
    p.I(f"""
    s_lshr_b32 s9, s8, 2
    s_lshl_b32 s9, s9, 17
    s_lshl_b32 s10, s6, 13
    s_add_u32 s9, s9, s10
    s_and_b32 s10, s8, 3
    s_lshl_b32 s10, s10, 10
    s_add_u32 s9, s9, s10
    s_add_u32 s10, s9, 4096
    v_add_f32 v24, v{ACCM}, v{ACCM+1}
    v_add_f32 v26, v{ACCM+4}, v{ACCM+5}
    v_add_f32 v24, v24, v80
    v_add_f32 v26, v26, v82
    """)
    for q in range(16):
        d = 24 + 2 * (q // 8)
        t = 10 + 2 * (q & 3)
        p.I(f"v_lshlrev_b32 v{t}, 16, v{RES+q}")
        p.I(f"v_and_b32 v{t+1}, 0xffff0000, v{RES+q}")
        p.I(f"v_pk_add_f32 v[{t}:{t+1}], v[{t}:{t+1}], v[{d}:{d+1}] op_sel_hi:[1,0] neg_lo:[0,1] neg_hi:[0,1]")
        p.I(f"v_pk_add_f32 v[{ACC+2*q}:{ACC+2*q+1}], v[{ACC+2*q}:{ACC+2*q+1}], v[{t}:{t+1}]")
    for q in range(16):
        p.I(f"v_cvt_pk_bf16_f32 v{RES+q}, v{ACC+2*q}, v{ACC+2*q+1}")
        if q % 4 == 3:
            tb, j = divmod(q // 4, 2)
            r = RES + (tb * 2 + j) * 4
            p.I(f"buffer_store_dwordx4 v[{r}:{r+3}], v{V_X}, s[52:55], s{9+j} offen offset:{1024*tb}{STPOL}")
    for q in range(16):
        p.I(f"v_lshlrev_b32 v{ACC+2*q}, 16, v{RES+q}")
        p.I(f"v_and_b32 v{ACC+2*q+1}, 0xffff0000, v{RES+q}")
    for tb in range(2):
        b = ACC + tb * 16
        a = 20 + 2 * tb
        p.I(f"v_pk_mul_f32 v[{a}:{a+1}], v[{b}:{b+1}], v[{b}:{b+1}]")
        for i in range(2, 16, 2):
            p.I(f"v_pk_fma_f32 v[{a}:{a+1}], v[{b+i}:{b+i+1}], v[{b+i}:{b+i+1}], v[{a}:{a+1}]")
    p.I("""
    v_add_f32 v20, v20, v21
    v_add_f32 v21, v22, v23
    """)
    xgroup_reduce_multi(p, [20, 21], [22, 23], "v_add_f32")
    p.I(f"""
    v_lshlrev_b32 v22, 6, v3       ; m*64
    s_lshl_b32 s9, s8, 10          ; mb0*16*64
    s_lshl_b32 s10, s6, 2
    s_add_u32 s9, s9, s10
    v_lshlrev_b32 v23, 2, v3
    v_cmp_gt_u32 vcc, 16, v1
    s_and_saveexec_b64 s[12:13], vcc
    buffer_store_dword v20, v22, s[56:59], s9 offen{STPOL}
    buffer_store_dword v21, v22, s[56:59], s9 offen offset:1024{STPOL}
    s_cmp_lg_u32 s6, 0
    s_cbranch_scc1 L_{name}_nomean
    buffer_store_dword v24, v23, s[60:63], s11 offen{STPOL}
    buffer_store_dword v26, v23, s[60:63], s11 offen offset:64{STPOL}
    """)
    p.label(f"L_{name}_nomean")
    stamp_out(p, 3, 4)
    p.I("s_endpgm")
    p.label(f"L_{name}_helper")
    p.I(f"""
    v_lshlrev_b32 v5, 7, v1
    v_mov_b32 v6, 0x7fffffff
    v_cmp_gt_u32 vcc, 56, v1
    s_mul_i32 s8, s2, 7168
    s_add_u32 s8, s8, {512*7168}
    s_add_u32 s9, s8, {256*7168}
    v_cndmask_b32 v5, v6, v5, vcc
    s_waitcnt lgkmcnt(0)
    """)
    srd(p, 36, P_WG, 0, D * F * 2)
    srd(p, 40, P_WU, 0, D * F * 2)
    seq = [(36, 8), (40, 8), (36, 9), (40, 9)][:PF3]
    for i in range(L.nbar):
        p.I("s_barrier")
        if i == PF3T:
            for j, (sr_, so) in enumerate(seq):
                p.I(f"buffer_load_dword v{8+j}, v5, s[{sr_}:{sr_+3}], s{so} offen")
    tail(p, name)
    return name, p, kernel_desc(name, 96 + RX * 8 + 80, 96), (256, 320, ZERO + 4096)


def gen_k5():
    name = "k5_down_kernel"
    KBT = F // 32
    KB = KBT // 2
    SUB, S = 2, K5_S
    RX = S * SUB
    U = S * SUB
    R = K5_R
    STG = 16384
    p = Prog()
    head(p, name, 256)
    p.I("""
    s_and_b32 s3, s2, 7            ; xcd
    s_lshr_b32 s4, s2, 3           ; idx 0..31
    s_and_b32 s5, s3, 3
    s_lshl_b32 s5, s5, 2
    s_and_b32 s6, s4, 3
    s_add_u32 s5, s5, s6
    s_lshr_b32 s6, s4, 2
    s_lshr_b32 s12, s3, 2          ; kh
    """)
    p.I(LANES)
    ACC, RES = 32, 96
    V_X = 5
    V_W = 7
    V_RA = 12
    p.I(f"""
    v_lshlrev_b32 v{V_X}, 4, v1
    s_lshl_b32 s8, s5, 3
    s_lshl_b32 s9, s7, 1
    s_add_u32 s8, s8, s9           ; mb0
    s_mul_i32 s44, s8, {KBT*1024}
    s_mul_i32 s9, s12, {KB*2048}
    s_add_u32 s44, s44, s9
    v_add_u32 v6, s44, v{V_X}
    s_and_b32 s14, s3, {3 if ROT else 0}
    s_mul_i32 s44, s14, {7*4096}
    v_bfe_u32 v28, v1, 1, 3        ; pos>>1
    v_xor_b32 v28, v28, v4         ; ^ (l>>4)      (j even)
    v_xor_b32 v29, 4, v28          ;               (j odd)
    v_and_b32 v30, 1, v1
    v_lshlrev_b32 v30, 4, v30
    v_lshl_add_u32 v31, s7, 4, v4  ; row 16w + (l>>4)
    v_lshl_add_u32 v30, v31, 11, v30
    s_lshl_b32 s45, s6, 8          ; cb*256
    s_mul_i32 s9, s12, {KB*32*2048}
    s_add_u32 s45, s45, s9
    v_add_u32 v30, s45, v30
    v_lshl_add_u32 v{V_W}, v28, 5, v30
    v_lshl_add_u32 v{V_W+1}, v29, 5, v30
    v_add_u32 v{V_W+2}, {8*2048-2048}, v{V_W}
    v_add_u32 v{V_W+3}, {12*2048-3072}, v{V_W+1}
    v_add_u32 v{V_W+1}, {4*2048-1024}, v{V_W+1}
    s_mul_i32 s45, s14, {7*64*2048}
    s_sub_u32 s45, s45, {64*2048}
    s_lshl_b32 s46, s7, 12
    s_waitcnt lgkmcnt(0)
    """)
    srd(p, 40, P_WD, 0, F * D * 2)
    srd(p, 36, P_WS, WS_ACT, S_TOK * F * 2)

    AX, AW = 0, 128

    def wdma(st):
        slot = st % S
        g = [[f"s_add_u32 m0, s46, {slot*STG}", f"s_add_u32 s45, s45, {64*2048}",
              f"s_cmp_lg_u32 s45, {FAKE5*64*2048}", "s_cselect_b32 s45, s45, 0",
              f"buffer_load_dwordx4 v{V_W}, s[40:43], s45 offen lds"]]
        for j in range(1, 4):
            g.append([f"buffer_load_dwordx4 v{V_W+j}, s[40:43], s45 offen offset:{1024*j} lds"])
        return g

    def xload(t):
        a = AX + (t % RX) * 8
        o = (t & 1) * 2048
        g = [[f"buffer_load_dwordx4 a[{a}:{a+3}], v6, s[36:39], s44 offen offset:{o}"],
             [f"buffer_load_dwordx4 a[{a+4}:{a+7}], v6, s[36:39], s44 offen offset:{o+1024}"]]
        if t & 1:
            g[-1] += ["s_add_u32 s44, s44, 4096", f"s_cmp_lg_u32 s44, {FAKE5*4096}", "s_cselect_b32 s44, s44, 0"]
        return g

    def rd(t, u, areg):
        st, sub = divmod(t, SUB)
        slot = st % S
        hi = 8 if slot >= 4 else 0
        base = (slot % 4) * STG + sub * 8192
        return [[f"ds_read_b64_tr_b16 a[{areg+2*hh}:{areg+2*hh+1}], v{V_RA+hi+u} offset:{base+hh*4096}"] for hh in range(2)]

    def mf(t, u, areg):
        ax = AX + (t % RX) * 8
        out = []
        for tb in range(2):
            c = ACC + (tb * 8 + u) * 4
            cin = "0" if (t == 0 and u >= 4) else f"v[{c}:{c+3}]"
            out.append(f"{MFMA} v[{c}:{c+3}], a[{areg}:{areg+3}], a[{ax+4*tb}:{ax+4*tb+3}], {cin}")
        return out

    send = []
    for tb in range(2):
        for u in range(4):
            c = ACC + (tb * 8 + 4 + u) * 4
            send.append([f"buffer_store_dwordx4 v[{c}:{c+3}], v{V_X}, s[56:59], s{9+tb} offen offset:{1024*u} sc0 sc1"])
    vs = []
    items = []
    if K5_MODE == 1:
        for i in range(KB + R):
            it = []
            if i < KB:
                it.append((i, 4))
            if i >= R:
                it.append((i - R, 0))
            items.append(it)
    else:
        items = [[(t, 4), (t, 0)] for t in range(KB - R)]
        items += [[(t, 4)] for t in range(KB - R, KB)] + [[(t, 0)] for t in range(KB - R, KB)]
    merged = []
    for it in items:
        if merged and len(merged[-1]) == 1 and len(it) == 1:
            merged[-1] = merged[-1] + it
        else:
            merged.append(list(it))
    i_own = None
    for it in merged:
        aw = AW + (len(vs) & 1) * 32
        r_, m_ = [], []
        f = 0
        for t, half in it:
            for uu in range(4):
                r_ += rd(t, half + uu, aw + 4 * f)
                m_ += mf(t, half + uu, aw + 4 * f)
                f += 1
        if i_own is None and all(h == 0 for _, h in it):
            i_own = len(vs)
        vs.append(VStep(m_, r_, sorted({t for t, _ in it}), sorted({t // 2 for t, _ in it})))
    if R:
        vs[i_own].extra = send
        fl = min(i_own + K5_FLAGLAG, len(vs) - 1)
        vs[fl].post = ["s_waitcnt vmcnt(0)", "buffer_store_dword v29, v28, s[60:63], s15 offen sc0 sc1"]

    L = Loop(name, vs, KB // 2, SUB, S, RX, U, wdma, xload, cnt_sreg=47, lead=1, tail_free=5, P0=K5_P0, RATE=K5_RATE)
    pstamp(p, 0)
    L.prologue_issue(p, upto=1)
    srd(p, 48, P_WS, WS_H, S_TOK * D * 2)
    srd(p, 56, P_WS, WS_MEAN, S_TOK * 4)
    p.I(f"""
    s_lshr_b32 s9, s8, 2
    s_lshl_b32 s9, s9, 17
    s_lshl_b32 s10, s6, 14
    s_add_u32 s9, s9, s10
    s_lshl_b32 s10, s12, 13
    s_add_u32 s9, s9, s10
    s_and_b32 s10, s8, 3
    s_lshl_b32 s10, s10, 10
    s_add_u32 s9, s9, s10
    s_add_u32 s10, s9, 4096
    v_lshlrev_b32 v28, 2, v3
    s_lshl_b32 s11, s8, 6
    """)
    for tb in range(2):
        for j in range(2):
            r = RES + (tb * 2 + j) * 4
            p.I(f"buffer_load_dwordx4 v[{r}:{r+3}], v{V_X}, s[48:51], s{9+j} offen offset:{1024*tb}")
    p.I("buffer_load_dword v112, v28, s[56:59], s11 offen")
    p.I("buffer_load_dword v114, v28, s[56:59], s11 offen offset:64")
    L.extra_vm("res", 6)
    L.prologue_issue(p, upto=min(3, K5_P0))
    hop(p, name)
    L.prologue_issue(p)
    p.I(f"""
    v_lshrrev_b32 v28, 2, v3       ; r
    v_and_b32 v29, 3, v3           ; c
    v_lshl_add_u32 v30, v4, 2, v28 ; 4g+r
    v_and_b32 v31, 7, v30          ; f
    s_lshl_b32 s9, s12, 2
    v_xor_b32 v31, s9, v31
    v_lshlrev_b32 v30, 8, v30
    v_lshl_add_u32 v30, v29, 3, v30
    v_lshl_add_u32 v30, v31, 5, v30
    """)
    for u in range(8):
        p.I(f"""
        v_xor_b32 v{V_RA+u}, {32*u}, v30
        v_add_u32 v{V_RA+8+u}, {4*STG}, v{V_RA+u}
        """)
    srd(p, 52, P_OUT, 0, S_TOK * D * 2)
    srd(p, 56, P_WS, WS_EX, 256 * 32768)
    srd(p, 60, P_WS, WS_FLAG, 1024 * 128)
    p.I(f"""
    s_lshl_b32 s9, s2, 15
    s_lshl_b32 s10, s7, 13
    s_add_u32 s9, s9, s10
    s_add_u32 s10, s9, 4096
    s_xor_b32 s13, s9, {4<<15}
    s_add_u32 s14, s13, 4096
    s_lshl_b32 s15, s2, 9
    s_lshl_b32 s3, s7, 7
    s_add_u32 s15, s15, s3
    s_xor_b32 s3, s15, {4<<9}
    v_mov_b32 v28, 0
    v_mov_b32 v29, 1
    v_lshlrev_b32 v30, 11, v3      ; m*2048
    v_and_b32 v31, 1, v4
    v_lshl_add_u32 v30, v31, 5, v30
    v_lshrrev_b32 v31, 1, v4
    v_lshl_add_u32 v30, v31, 4, v30   ; (g>>1)*16B
    """)
    p.I(f"s_waitcnt vmcnt({min(63, L.wait_for('res'))})")
    for tb in range(2):
        for q in range(8):
            c = ACC + tb * 32 + 2 * q
            p.I(f"v_lshlrev_b32 v{c}, 16, v{RES+tb*8+q}")
            p.I(f"v_and_b32 v{c+1}, 0xffff0000, v{RES+tb*8+q}")
        for q in range(8):
            c = ACC + tb * 32 + 2 * q
            mx = 112 + 2 * tb
            p.I(f"v_pk_add_f32 v[{c}:{c+1}], v[{c}:{c+1}], v[{mx}:{mx+1}] op_sel_hi:[1,0]")
    L.start(p)
    L.body(p)
    if not R:
        for g in send:
            p.I("\n".join(g))
        p.I("s_waitcnt vmcnt(0)\nbuffer_store_dword v29, v28, s[60:63], s15 offen sc0 sc1")
    p.label(f"L_{name}_poll")
    p.I(f"""
    buffer_load_dword v31, v28, s[60:63], s3 offen sc0 sc1
    s_waitcnt vmcnt(0)
    v_readfirstlane_b32 s4, v31
    s_cmp_eq_u32 s4, 1
    s_cbranch_scc0 L_{name}_poll
    """)
    for tb in range(2):
        for u in range(4):
            c = ACC + (tb * 8 + 4 + u) * 4
            p.I(f"buffer_load_dwordx4 v[{c}:{c+3}], v{V_X}, s[56:59], s{13+tb} offen offset:{1024*u} sc0 sc1")
    p.I(f"""
    s_lshl_b32 s9, s8, 15
    s_lshl_b32 s10, s6, 8
    s_add_u32 s9, s9, s10
    s_lshl_b32 s10, s12, 7
    s_add_u32 s9, s9, s10
    s_add_u32 s10, s9, 32768
    """)
    for tb in range(2):
        for j in range(2):
            p.I(f"s_waitcnt vmcnt({6 - 2*(tb*2+j) + (tb*2+j)})")
            r = RES + (tb * 2 + j) * 4
            for uu in range(2):
                u = 2 * j + uu
                c = ACC + (tb * 8 + u) * 4
                o = ACC + (tb * 8 + 4 + u) * 4
                p.I(f"v_pk_add_f32 v[{c}:{c+1}], v[{c}:{c+1}], v[{o}:{o+1}]")
                p.I(f"v_pk_add_f32 v[{c+2}:{c+3}], v[{c+2}:{c+3}], v[{o+2}:{o+3}]")
                p.I(f"v_cvt_pk_bf16_f32 v{r+2*uu}, v{c}, v{c+1}")
                p.I(f"v_cvt_pk_bf16_f32 v{r+2*uu+1}, v{c+2}, v{c+3}")
            p.I(f"v_permlane16_swap_b32 v{r}, v{r+2}")
            p.I(f"v_permlane16_swap_b32 v{r+1}, v{r+3}")
            p.I(f"buffer_store_dwordx4 v[{r}:{r+3}], v30, s[52:55], s{9+tb} offen offset:{64*j}")
    stamp_out(p, 5, 4)
    tail(p, name)
    return name, p, kernel_desc(name, 256 + 192, 256), (256, 256, S * STG)


def gen_k4():
    name = "k4_ffn_kernel"
    KB = D // 32
    SUB, S, RX, U = 2, 4, 8, 8
    STG = 28672
    p = Prog()
    head(p, name, 256)
    p.I("""
    s_and_b32 s3, s2, 7            ; xcd
    s_lshr_b32 s4, s2, 3           ; idx 0..31
    s_and_b32 s5, s3, 3
    s_lshl_b32 s5, s5, 1
    s_and_b32 s6, s4, 1
    s_add_u32 s5, s5, s6
    s_lshr_b32 s6, s3, 2
    s_lshl_b32 s6, s6, 4
    s_lshr_b32 s7, s4, 1
    s_add_u32 s6, s6, s7
    """)
    p.I(LANES)
    V_X = 224
    V_W = 225
    V_RA = 232
    V_PF = 234
    V_ST = 235
    V_M = 236
    V_T = 240
    p.I(f"""
    v_lshlrev_b32 v{V_X}, 4, v1
    s_lshl_b32 s8, s5, 4
    s_lshl_b32 s9, s7, 2
    s_add_u32 s8, s8, s9
    s_lshl_b32 s9, s8, 15          ; (mb0/4)*128KB
    v_add_u32 v237, s9, v{V_X}
    s_and_b32 s3, s3, {3 if ROT else 0}
    s_lshl_b32 s44, s3, 15
    s_and_b32 s10, s6, 1
    s_and_b32 s11, s7, 1
    s_mul_i32 s13, s6, 224
    s_mul_i32 s12, s11, {32*F*2}
    s_add_u32 s13, s13, s12
    s_movk_i32 s14, {F*2}
    s_mov_b32 s15, 0x4925          ; ceil(2^18/14)
    """)
    def lines(j):
        t = 8 + 4 * j
        return f"""
        v_add_u32 v{t}, {64*j}, v1
        v_mul_u32_u24 v{t+1}, s15, v{t}
        v_lshrrev_b32 v{t+1}, 18, v{t+1}
        v_mul_u32_u24 v{t+2}, 14, v{t+1}
        v_sub_u32 v{t+2}, v{t}, v{t+2}
        v_lshrrev_b32 v{t+3}, 1, v{t+2}
        v_add_u32 v{t+3}, s10, v{t+3}
        v_cmp_eq_u32 s[{48+2*j}:{49+2*j}], 7, v{t+3}
        v_and_b32 v{t+2}, 1, v{t+2}
        v_mul_u32_u24 v{t+1}, s14, v{t+1}
        v_cndmask_b32 v{t+3}, v{t+3}, 0, s[{48+2*j}:{49+2*j}]
        v_lshlrev_b32 v{t+3}, 5, v{t+3}
        v_lshl_add_u32 v{t+3}, v{t+2}, 4, v{t+3}
        v_add3_u32 v{V_W+j}, v{t+1}, v{t+3}, s13
        v_subrev_u32 v{V_W+j}, {1024*(j%4)}, v{V_W+j}
        """.strip().split("\n")
    ls = [lines(j) for j in range(7)]
    for i in range(len(ls[0])):
        for j in range(7):
            if "v_subrev_u32" in ls[j][i] and j % 4 == 0:
                continue
            p.I(ls[j][i])
    p.I(f"""
    s_mul_i32 s45, s3, {256*F*2}
    s_sub_u32 s45, s45, {64*F*2}
    s_lshr_b32 s12, s7, 1
    s_mul_i32 s46, s7, 7168
    s_waitcnt lgkmcnt(0)
    s_cmp_eq_u32 s12, 1
    s_cselect_b32 s40, s{P_WU}, s{P_WG}
    s_cselect_b32 s41, s{P_WU+1}, s{P_WG+1}
    s_mov_b32 s42, {D*F*2}
    s_mov_b32 s43, 0x00020000
    """)
    srd(p, 36, P_WS, WS_H, S_TOK * D * 2)

    AX, AW = 0, 128

    def wdma(st):
        slot = st % S
        g = []
        for j in range(7):
            pre = []
            if j == 0:
                pre = [f"s_add_u32 m0, s46, {slot*STG}", f"s_add_u32 s45, s45, {64*F*2}",
                       f"s_cmp_lg_u32 s45, {D*F*2}", "s_cselect_b32 s45, s45, 0"]
            if j == 4:
                g[-1].append(f"s_add_u32 m0, s46, {slot*STG+4096}")
            g.append(pre + [f"buffer_load_dwordx4 v{V_W+j}, s[40:43], s45 offen offset:{1024*(j%4)} lds"])
        return g

    def xload(t):
        a = AX + (t % RX) * 16
        g = [[f"buffer_load_dwordx4 a[{a+4*j}:{a+4*j+3}], v237, s[36:39], s44 offen offset:{1024*j}"] for j in range(4)]
        g[-1] += ["s_add_u32 s44, s44, 4096", "s_and_b32 s44, s44, 0x1ffff"]
        return g

    vs = []
    for t in range(KB):
        st, sub = divmod(t, 2)
        slot = st % S
        ra = V_RA + (slot >= 2)
        base = (slot % 2) * STG + sub * 7168
        a = AW + (t & 1) * 56
        ax = AX + (t % RX) * 16
        rd = []
        for s in range(14):
            mat, sl = divmod(s, 7)
            for hh in range(2):
                off = base + mat * 14336 + hh * 3584 + sl * 32
                rd.append([f"ds_read_b64_tr_b16 a[{a+4*s+2*hh}:{a+4*s+2*hh+1}], v{ra} offset:{off}"])
        order = [(s, tb) for s in range(14) for tb in range(4)]
        if t == KB - 1:
            order = [(s, tb) for tb in range(4) for s in range(14)]
        mf = []
        for s, tb in order:
            c = tb * 56 + s * 4
            cin = "0" if t == 0 else f"v[{c}:{c+3}]"
            mf.append(f"{MFMA} v[{c}:{c+3}], a[{a+4*s}:{a+4*s+3}], a[{ax+4*tb}:{ax+4*tb+3}], {cin}")
        extra = []
        if PF4 == 2 and t == KB - 7:
            extra.append([f"buffer_load_dword v239, v{V_PF}, s[52:55], s12 offen"])
        if PF4 == 1 and t < 28:
            extra.append([f"buffer_load_dword v239, v{V_PF}, s[52:55], s12 offen",
                          f"s_add_u32 s12, s12, 256"])
        if t == KB - 8:
            for j in range(4):
                extra.append([f"buffer_load_dwordx4 v[{V_T+4*j}:{V_T+4*j+3}], v{V_ST}, s[48:51], s9 offen offset:{16*j}"])
        vs.append(VStep(mf, rd, [t], [st], extra=extra))

    L = Loop(name, vs, KB // 2, SUB, S, RX, U, wdma, xload, cnt_sreg=47, lead=1, tail_free=8, P0=K4_P0, RATE=K4_RATE)
    pstamp(p, 0)
    L.prologue_issue(p, upto=1)
    hop(p, name)
    L.prologue_issue(p)
    p.I(f"""
    v_lshrrev_b32 v8, 2, v3
    v_and_b32 v9, 3, v3
    v_lshl_add_u32 v8, v4, 2, v8
    v_mul_u32_u24 v8, 224, v8
    v_lshl_add_u32 v{V_RA}, v9, 3, v8
    v_add_u32 v{V_RA+1}, {2*STG}, v{V_RA}
    v_lshlrev_b32 v{V_PF}, 7, v1
    v_mov_b32 v8, 0x7fffffff
    v_cmp_gt_u32 vcc, {2 if PF4 == 1 else 56}, v1
    v_lshlrev_b32 v{V_ST}, 6, v1
    v_lshlrev_b32 v{V_M}, 2, v3             ; m*4
    v_cndmask_b32 v{V_PF}, v8, v{V_PF}, vcc
    s_lshl_b32 s9, s8, 10                   ; mb0*16*64
    s_lshl_b32 s12, s2, 2
    s_add_u32 s12, s12, s7
    s_mul_i32 s12, s12, {28*256}
    """)
    srd(p, 48, P_WS, WS_ST, S_TOK * 64)
    srd(p, 52, P_WD, 0, F * D * 2)
    srd(p, 56, P_WS, WS_ACT, S_TOK * F * 2)
    L.start(p)
    L.body(p)
    p.I(f"s_waitcnt vmcnt({L.wait_for(('e', KB - 8))})")
    C1 = -2.0 * 1.4426950408889634 * 0.7978845608028654
    C2 = C1 * 0.044715
    T = V_T
    for j in range(1, 8):
        p.I(f"v_pk_add_f32 v[{T}:{T+1}], v[{T}:{T+1}], v[{T+2*j}:{T+2*j+1}]")
    p.I(f"""
    v_add_f32 v{T}, v{T}, v{T+1}
    v_mov_b32 v{T+1}, {f2u(1e-5):#x}
    v_fmac_f32 v{T+1}, 0x3a800000, v{T}       ; var+eps
    """)
    VR = 226
    for tb in range(4):
        p.I(f"ds_bpermute_b32 v{VR+2*tb}, v{V_M}, v{T+1} offset:{64*tb}")
    p.I(f"""
    s_mul_i32 s9, s6, 7
    s_add_u32 s12, s9, s10
    s_lshr_b32 s12, s12, 1
    s_add_u32 s13, s9, 6
    s_cmp_eq_u32 s10, 1
    s_cselect_b32 s13, s9, s13
    s_lshr_b32 s13, s13, 1
    s_mul_i32 s14, s8, {112*1024}
    s_lshl_b32 s12, s12, 11
    s_lshl_b32 s13, s13, 11
    s_add_u32 s12, s12, s14
    s_add_u32 s13, s13, s14
    s_lshl_b32 s14, s10, 3
    s_add_u32 s13, s13, s14
    s_add_u32 s11, s12, 4096
    s_mov_b32 s14, {f2u(C1):#x}
    s_mov_b32 s15, {f2u(C2):#x}
    s_waitcnt lgkmcnt(0)
    """)
    c1, c2 = T, T + 2
    for tb in range(4):
        vrr = VR + 2 * tb
        p.I(f"""
        v_rsq_f32 v{T+4}, v{vrr}
        v_rcp_f32 v{T+5}, v{vrr}
        v_mul_f32 v{c1}, s14, v{T+4}
        v_mul_f32 v{c2}, s15, v{T+4}
        v_mul_f32 v{c2}, v{c2}, v{T+5}
        """)
        o = 1024 * (tb & 1)
        for sl in range(7):
            g = tb * 56 + sl * 4
            u = tb * 56 + (7 + sl) * 4
            E = T + 8 + 4 * (sl & 1)
            for r in (0, 2):
                p.I(f"v_pk_mul_f32 v[{E+r}:{E+r+1}], v[{g+r}:{g+r+1}], v[{g+r}:{g+r+1}]")
            for r in (0, 2):
                p.I(f"v_pk_fma_f32 v[{E+r}:{E+r+1}], v[{E+r}:{E+r+1}], v[{c2}:{c2+1}], v[{c1}:{c1+1}] op_sel_hi:[1,0,0]")
            for r in (0, 2):
                p.I(f"v_pk_mul_f32 v[{E+r}:{E+r+1}], v[{E+r}:{E+r+1}], v[{g+r}:{g+r+1}]")
            for r in range(4):
                p.I(f"v_exp_f32 v{E+r}, v{E+r}")
            for r in (0, 2):
                p.I(f"v_pk_mul_f32 v[{u+r}:{u+r+1}], v[{u+r}:{u+r+1}], v[{g+r}:{g+r+1}]")
            for r in (0, 2):
                p.I(f"v_pk_fma_f32 v[{E+r}:{E+r+1}], v[{E+r}:{E+r+1}], v[{vrr}:{vrr+1}], v[{vrr}:{vrr+1}] op_sel_hi:[1,0,0]")
            for r in range(4):
                p.I(f"v_rcp_f32 v{E+r}, v{E+r}")
            for r in (0, 2):
                p.I(f"v_pk_mul_f32 v[{u+r}:{u+r+1}], v[{u+r}:{u+r+1}], v[{E+r}:{E+r+1}]")
            dq = tb * 56 + sl * 2
            p.I(f"v_cvt_pk_bf16_f32 v{dq}, v{u}, v{u+1}")
            p.I(f"v_cvt_pk_bf16_f32 v{dq+1}, v{u+2}, v{u+3}")
            if sl in (1, 3, 5):
                d0 = tb * 56 + (sl - 1) * 2
                so, oo = ("s12", o + 2048 * (sl // 2)) if sl < 5 else ("s11", o)
                p.I(f"buffer_store_dwordx4 v[{d0}:{d0+3}], v{V_X}, s[56:59], {so} offen offset:{oo}{STPOL}")
            if sl == 6:
                p.I(f"buffer_store_dwordx2 v[{dq}:{dq+1}], v{V_X}, s[56:59], s13 offen offset:{o}{STPOL}")
        if tb == 1:
            p.I(f"s_add_u32 s12, s12, {112*2048}")
            p.I(f"s_add_u32 s11, s11, {112*2048}")
            p.I(f"s_add_u32 s13, s13, {112*2048}")
    stamp_out(p, 4, 4)
    tail(p, name)
    return name, p, kernel_desc(name, 256 + 240, 256), (256, 256, S * STG)


def gen_k2():
    name = "k2_qkv_kernel"
    KB = D // 32
    SUB, S, RX, U = 2, 4, 8, 8
    STG = 24576
    HALO = S * STG
    p = Prog()
    head(p, name, 256)
    p.I(WGMAP_4x8)
    p.I(LANES)
    V_X = 5
    V_W = 7
    V_RA = 10
    V_HA = 18
    V_PF = 19
    ACC = 32
    ACCH = 128
    p.I(f"""
    v_lshlrev_b32 v{V_X}, 4, v1
    s_lshl_b32 s8, s5, 3
    s_lshl_b32 s9, s7, 1
    s_add_u32 s8, s8, s9
    s_lshl_b32 s9, s8, 15
    v_add_u32 v6, s9, v{V_X}
    s_and_b32 s14, s3, {3 if ROT else 0}
    s_lshl_b32 s44, s14, 14
    v_lshrrev_b32 v20, 3, v1        ; r8
    v_bfe_u32 v21, v1, 4, 1         ; (r8>>1)&1
    s_and_b32 s9, s7, 1
    s_lshl_b32 s9, s9, 1
    v_or_b32 v21, s9, v21           ; f
    v_bfe_u32 v22, v1, 1, 2
    v_xor_b32 v22, v22, v21         ; unit
    v_and_b32 v23, 1, v1
    v_lshlrev_b32 v22, 5, v22
    v_lshl_add_u32 v22, v23, 4, v22
    v_lshl_add_u32 v20, s7, 3, v20  ; row
    s_movk_i32 s9, 6144
    v_mul_u32_u24 v20, s9, v20
    s_lshl_b32 s9, s6, 7            ; hp*128
    v_add3_u32 v{V_W}, v20, v22, s9
    v_add_u32 v{V_W+1}, 1024, v{V_W}
    v_add_u32 v{V_W+2}, 2048, v{V_W}
    s_mul_i32 s45, s14, {256*6144}
    s_sub_u32 s45, s45, {32*6144}
    s_mul_i32 s46, s7, 3072
    s_waitcnt lgkmcnt(0)
    """)
    srd(p, 40, P_WQKV, 0, D * 3 * D * 2)
    srd(p, 36, P_WS, WS_XN, S_TOK * D * 2)

    AX, AW, AH = 0, 64, 160

    def accr(tb, part, u):
        return ACC + ((tb * 3 + part) * 4 + u) * 4

    def wdma(st):
        slot = st % S
        g = []
        for sub in range(2):
            for part in range(3):
                pre = []
                if part == 0:
                    pre = [f"s_add_u32 m0, s46, {slot*STG + sub*12288}", f"s_add_u32 s45, s45, {32*6144}"]
                    if sub == 0:
                        pre += [f"s_cmp_lg_u32 s45, {D*6144}", "s_cselect_b32 s45, s45, 0"]
                g.append(pre + [f"buffer_load_dwordx4 v{V_W+part}, s[40:43], s45 offen offset:{1024*part} lds"])
        return g

    def xload(t):
        a = AX + (t % RX) * 8
        o = (t & 1) * 2048
        g = [[f"buffer_load_dwordx4 a[{a}:{a+3}], v6, s[36:39], s44 offen offset:{o}"],
             [f"buffer_load_dwordx4 a[{a+4}:{a+7}], v6, s[36:39], s44 offen offset:{o+1024}"]]
        if t & 1:
            g[-1] += ["s_add_u32 s44, s44, 4096", "s_and_b32 s44, s44, 0xffff"]
        return g

    vs = []
    for t in range(KB):
        st, sub = divmod(t, 2)
        slot = st % S
        hi = 4 if slot >= 2 else 0
        base = (slot % 2) * STG + sub * 12288
        aw = AW + (t & 1) * 48
        ah = AH + (t & 1) * 4
        ax = AX + (t % RX) * 8
        rd = []
        for part in range(3):
            for u in range(4):
                for hh in range(2):
                    r = aw + (part * 4 + u) * 4 + 2 * hh
                    rd.append([f"ds_read_b64_tr_b16 a[{r}:{r+1}], v{V_RA+hi+u} offset:{base+part*1024+hh*512}"])
        rd.append([f"ds_read_b128 a[{ah}:{ah+3}], v{V_HA} offset:{(t%U)*1024}"] +
                  ([f"v_add_u32 v{V_HA}, {U*1024}, v{V_HA}"] if t % U == U - 1 else []))
        first = t == 0
        mf = []
        for part in range(3):
            for u in range(4):
                w = f"a[{aw+(part*4+u)*4}:{aw+(part*4+u)*4+3}]"
                for tb in range(2):
                    c = accr(tb, part, u)
                    x = f"a[{ax+4*tb}:{ax+4*tb+3}]"
                    cc = f"v[{c}:{c+3}]"
                    a_, b_ = (w, x) if part < 2 else (x, w)
                    mf.append(f"{MFMA} {cc}, {a_}, {b_}, {'0' if first else cc}")
        for part in (1, 2):
            w = f"a[{aw+(part*4)*4}:{aw+(part*4)*4+3}]"
            x = f"a[{ah}:{ah+3}]"
            cc = f"v[{ACCH+4*(part-1)}:{ACCH+4*(part-1)+3}]"
            a_, b_ = (w, x) if part < 2 else (x, w)
            mf.append(f"{MFMA} {cc}, {a_}, {b_}, {'0' if first else cc}")
        extra = []
        if PF2T <= t < PF2T + PF2:
            extra.append([f"buffer_load_dword v{26+t-PF2T}, v{V_PF}, s[48:51], s12 offen",
                          f"s_add_u32 s12, s12, {512*7168}"])
        vs.append(VStep(mf, rd, [t], [st], extra=extra))

    L = Loop(name, vs, KB // 2, SUB, S, RX, U, wdma, xload, cnt_sreg=47, lead=1, tail_free=4, P0=K2_P0, RATE=K2_RATE)
    pstamp(p, 0)
    L.prologue_issue(p, upto=1)
    p.I(f"""
    s_lshl_b32 s9, s5, 3
    s_sub_u32 s9, s9, 2
    s_max_i32 s9, s9, 0
    s_lshl_b32 s9, s9, 15           ; (mb>>1)*64KB
    s_add_u32 s9, s9, 1024          ; (mb&1)*1024
    s_lshl_b32 s10, s7, 11
    s_add_u32 s9, s9, s10           ; + w*2048
    v_add_u32 v25, s9, v{V_X}
    s_lshl_b32 s9, s14, 14
    s_lshl_b32 s10, s7, 10
    s_add_u32 s10, s10, {HALO}
    """)
    def halo_dma(j):
        p.I(f"s_add_u32 m0, s10, {4096*j}")
        if j:
            p.I("s_add_u32 s9, s9, 8192")
            p.I("s_and_b32 s9, s9, 0xffff")
        p.I(f"buffer_load_dwordx4 v25, s[36:39], s9 offen lds")
        L.extra_vm(("w", max(0, 2 * j - 1)), 1)
    halo_dma(0)
    halo_dma(1)
    L.prologue_issue(p, upto=min(2, K2_P0))
    hop(p, name)
    for j in range(2, 8):
        halo_dma(j)
    L.prologue_issue(p)
    p.I(f"""
    v_add_u32 v{V_HA}, {HALO}, v{V_X}
    v_lshrrev_b32 v20, 2, v3        ; r
    v_and_b32 v21, 3, v3            ; c
    v_lshrrev_b32 v23, 1, v20
    v_and_b32 v24, 1, v4
    v_lshl_or_b32 v23, v24, 1, v23  ; f
    v_xor_b32 v23, s7, v23          ; f ^ w
    v_mul_u32_u24 v22, 3072, v4
    v_lshl_add_u32 v22, v20, 7, v22
    v_lshl_add_u32 v22, v21, 3, v22
    v_lshl_add_u32 v22, v23, 5, v22
    """)
    for u in range(4):
        p.I(f"""
        v_xor_b32 v{V_RA+u}, {32*u}, v22
        v_add_u32 v{V_RA+4+u}, {2*STG}, v{V_RA+u}
        """)
    p.I(f"""
    v_lshlrev_b32 v{V_PF}, 7, v1
    v_mov_b32 v20, 0x7fffffff
    v_cmp_gt_u32 vcc, 56, v1
    s_lshl_b32 s12, s2, 1
    s_and_b32 s13, s7, 1
    s_add_u32 s12, s12, s13
    s_mul_i32 s12, s12, 7168
    v_cndmask_b32 v{V_PF}, v20, v{V_PF}, vcc
    s_cmp_ge_u32 s7, 2
    s_cselect_b32 s48, s{P_WU}, s{P_WG}
    s_cselect_b32 s49, s{P_WU+1}, s{P_WG+1}
    s_mov_b32 s50, {D*F*2}
    s_mov_b32 s51, 0x00020000
    """)
    srd(p, 52, P_WS, WS_O, S_TOK * D * 2)
    BIAS = 204
    EXA = 216
    NEG = f2u(-1e30)
    p.I(f"""
    v_lshlrev_b32 v20, 2, v4          ; 4g
    v_sub_u32 v20, v20, v3            ; 4g - m
    v_mov_b32 v21, {NEG:#x}
    s_or_b32 s9, s5, s7
    s_cmp_eq_u32 s9, 0
    s_cselect_b32 s9, 64, 2
    """)
    for r in range(4):
        p.I(f"""
        v_add_u32 v22, {r}, v20           ; d = j - m
        v_and_b32 v23, 1, v22
        v_lshl_add_u32 v24, v23, 8, v22
        v_cmp_ge_i32 vcc, 0, v24
        v_cndmask_b32 v{BIAS+8+r}, v21, 0, vcc
        v_lshlrev_b32 v23, 8, v23
        v_sub_u32 v24, v22, v23
        v_cmp_le_i32 vcc, 2, v24
        v_cndmask_b32 v{BIAS+4+r}, v21, 0, vcc
        v_cmp_le_i32 vcc, s9, v24
        v_cndmask_b32 v{BIAS+r}, v21, 0, vcc
        """)
    p.I(f"""
    s_lshr_b32 s9, s7, 1
    s_lshl_b32 s9, s9, 11
    s_and_b32 s10, s7, 1
    s_lshl_b32 s10, s10, 3
    s_add_u32 s9, s9, s10
    v_add_u32 v{EXA}, s9, v{V_X}
    v_xor_b32 v{EXA+1}, 8, v{EXA}
    v_xor_b32 v{EXA+2}, 0x800, v{EXA}
    v_xor_b32 v{EXA+3}, 0x800, v{EXA+1}
    """)
    L.start(p)
    L.body(p)
    QP = 136
    KP = 152
    VP = 176
    HP = 200

    def qp(hd, tb): return QP + (hd * 2 + tb) * 4
    def kp(hd, i): return KP + (hd * 3 + i) * 4
    def vp(hd, db, i): return VP + ((hd * 2 + db) * 3 + i) * 2

    def pack(hd, tb, parts):
        for db in range(2):
            for part, dst in ((0, qp(hd, tb) + 2 * db), (1, kp(hd, 1 + tb) + 2 * db), (2, vp(hd, db, 1 + tb))):
                if part not in parts:
                    continue
                c = accr(tb, part, 2 * hd + db)
                p.I(f"v_cvt_pk_bf16_f32 v{dst}, v{c}, v{c+1}")
                p.I(f"v_cvt_pk_bf16_f32 v{dst+1}, v{c+2}, v{c+3}")
    p.I(f"""
    s_lshl_b32 s9, s7, 12
    v_add_u32 v20, s9, v{EXA}
    v_add_u32 v21, s9, v{EXA+1}
    v_add_u32 v22, s9, v{EXA+2}
    v_add_u32 v23, s9, v{EXA+3}
    s_barrier
    """)
    for hd in range(2):
        pack(hd, 1, (1, 2))
    for i in range(4):
        p.I(f"v_cvt_pk_bf16_f32 v{HP+i}, v{ACCH+2*i}, v{ACCH+2*i+1}")
    for hd in range(2):
        for db in range(2):
            k = kp(hd, 2) + 2 * db
            v = vp(hd, db, 2)
            p.I(f"ds_write_b64 v{20+2*hd+db}, v[{k}:{k+1}] offset:4096")
            p.I(f"ds_write_b64 v{20+2*hd+db}, v[{v}:{v+1}] offset:{4096+1024}")
    p.I(f"ds_write_b64 v{EXA}, v[{HP}:{HP+1}]")
    p.I(f"ds_write_b64 v{EXA}, v[{HP+2}:{HP+3}] offset:1024")
    for hd in range(2):
        pack(hd, 1, (0,))
        pack(hd, 0, (0, 1, 2))
    p.I("""
    s_waitcnt lgkmcnt(0)
    s_barrier
    """)
    for hd in range(2):
        for db in range(2):
            k = kp(hd, 0) + 2 * db
            v = vp(hd, db, 0)
            p.I(f"ds_read_b64 v[{k}:{k+1}], v{20+2*hd+db}")
            p.I(f"ds_read_b64 v[{v}:{v+1}], v{20+2*hd+db} offset:1024")
    chains = [(0, 1), (1, 1), (0, 0), (1, 0)]
    SR = 32
    MX = 64
    TM = 72
    SM = 76
    PP = 84
    OO = 100
    CSC = f2u(32 ** -0.5 * 1.4426950408889634)
    p.I(f"s_mov_b32 s9, {CSC:#x}")
    p.I(f"s_mov_b32 s10, {CSC:#x}")
    p.I(f"s_mov_b32 s11, {CSC:#x}")
    for ci, (hd, tb) in enumerate(chains):
        s = SR + ci * 8
        q = qp(hd, tb)
        kc = kp(hd, 1 + tb)
        p.I(f"{MFMA} v[{s+4}:{s+7}], v[{kc}:{kc+3}], v[{q}:{q+3}], v[{BIAS+8}:{BIAS+11}]")
    for ci, (hd, tb) in enumerate(chains):
        s = SR + ci * 8
        q = qp(hd, tb)
        kv = kp(hd, tb)
        if ci == 2:
            p.I("s_waitcnt lgkmcnt(0)")
        b = BIAS + 4 * tb
        p.I(f"{MFMA} v[{s}:{s+3}], v[{kv}:{kv+3}], v[{q}:{q+3}], v[{b}:{b+3}]")
    mx = [MX + 2 * i for i in range(4)]
    for ci in range(4):
        s = SR + ci * 8
        p.I(f"v_max3_f32 v{mx[ci]}, v{s+4}, v{s+5}, v{s+6}")
    for ci in range(4):
        s = SR + ci * 8
        p.I(f"v_max3_f32 v{mx[ci]}, v{mx[ci]}, v{s+7}, v{s}")
        p.I(f"v_max3_f32 v{mx[ci]}, v{mx[ci]}, v{s+1}, v{s+2}")
        p.I(f"v_max_f32 v{mx[ci]}, v{mx[ci]}, v{s+3}")
    xgroup_reduce_multi(p, mx, [TM + i for i in range(4)], "v_max_f32")
    for ci in range(4):
        p.I(f"v_mul_f32 v{mx[ci]}, s9, v{mx[ci]}")
    for ci in range(4):
        s = SR + ci * 8
        for r in range(0, 8, 2):
            p.I(f"v_pk_fma_f32 v[{s+r}:{s+r+1}], v[{s+r}:{s+r+1}], s[10:11], v[{mx[ci]}:{mx[ci]+1}] op_sel_hi:[1,1,0] neg_lo:[0,0,1] neg_hi:[0,0,1]")
        for r in range(8):
            p.I(f"v_exp_f32 v{s+r}, v{s+r}")
    for ci, (hd, tb) in enumerate(chains):
        s = SR + ci * 8
        for r in range(4):
            p.I(f"v_cvt_pk_bf16_f32 v{PP+4*ci+r}, v{s+2*r}, v{s+2*r+1}")
    for ci, (hd, tb) in enumerate(chains):
        for db in range(2):
            v = vp(hd, db, tb)
            o = OO + ci * 8 + db * 4
            p.I(f"{MFMA} v[{o}:{o+3}], v[{v}:{v+3}], v[{PP+4*ci}:{PP+4*ci+3}], 0")
    sm = [SM + 2 * i for i in range(4)]
    for ci in range(4):
        s = SR + ci * 8
        p.I(f"v_pk_add_f32 v[{s}:{s+1}], v[{s}:{s+1}], v[{s+2}:{s+3}]")
        p.I(f"v_pk_add_f32 v[{s+4}:{s+5}], v[{s+4}:{s+5}], v[{s+6}:{s+7}]")
        p.I(f"v_pk_add_f32 v[{s}:{s+1}], v[{s}:{s+1}], v[{s+4}:{s+5}]")
        p.I(f"v_add_f32 v{sm[ci]}, v{s}, v{s+1}")
    xgroup_reduce_multi(p, sm, [TM + i for i in range(4)], "v_add_f32")
    for ci in range(4):
        p.I(f"v_rcp_f32 v{sm[ci]}, v{sm[ci]}")
    p.I(f"""
    s_lshl_b32 s9, s8, 15
    s_lshl_b32 s10, s6, 12
    s_add_u32 s9, s9, s10
    """)
    for ci, (hd, tb) in enumerate(chains):
        o = OO + ci * 8
        for r in range(0, 8, 2):
            p.I(f"v_pk_mul_f32 v[{o+r}:{o+r+1}], v[{o+r}:{o+r+1}], v[{sm[ci]}:{sm[ci]+1}] op_sel_hi:[1,0]")
        d = SR + ci * 4
        for r in range(4):
            p.I(f"v_cvt_pk_bf16_f32 v{d+r}, v{o+2*r}, v{o+2*r+1}")
        for db in range(2):
            p.I(f"buffer_store_dwordx2 v[{d+2*db}:{d+2*db+1}], v{EXA+2*hd+db}, s[52:55], s9 offen offset:{1024*tb}{STPOL}")
    stamp_out(p, 2, 4)
    tail(p, name)
    return name, p, kernel_desc(name, 256 + 168, 256), (256, 256, HALO + 32768)


MACROS = r"""
.macro MF d, a, b
    v_mfma_f32_16x16x32_bf16 v[\d:\d+3], a[\a:\a+3], a[\b:\b+3], v[\d:\d+3]
.endm
.macro TR d, r, o
    ds_read_b64_tr_b16 a[\d:\d+1], v[\r] offset:\o
.endm
.macro XL d, r, o
    buffer_load_dwordx4 a[\d:\d+3], v[\r], s[36:39], s44 offen offset:\o XPOL
.endm
.macro WN r, o
    buffer_load_dwordx4 v[\r], s[40:43], s45 offen offset:\o nt lds
.endm
.macro WL r, o
    buffer_load_dwordx4 v[\r], s[40:43], s45 offen offset:\o WPOL lds
.endm
""".replace("XPOL", os.environ.get("XPOL", "")).replace("WPOL", os.environ.get("WPOL", ""))


def compress(txt):
    import re
    txt = re.sub(r"v_mfma_f32_16x16x32_bf16 v\[(\d+):\d+\], a\[(\d+):\d+\], a\[(\d+):\d+\], v\[\1:\d+\]",
                 r"MF \1,\2,\3", txt)
    txt = re.sub(r"ds_read_b64_tr_b16 a\[(\d+):\d+\], v(\d+) offset:(\d+)", r"TR \1,\2,\3", txt)
    txt = re.sub(r"buffer_load_dwordx4 a\[(\d+):\d+\], v(\d+), s\[36:39\], s44 offen offset:(\d+)\n", r"XL \1,\2,\3\n", txt)
    txt = re.sub(r"buffer_load_dwordx4 a\[(\d+):\d+\], v(\d+), s\[36:39\], s44 offen\n", r"XL \1,\2,0\n", txt)
    txt = re.sub(r"buffer_load_dwordx4 v(\d+), s\[40:43\], s45 offen offset:(\d+) nt lds", r"WN \1,\2", txt)
    txt = re.sub(r"buffer_load_dwordx4 v(\d+), s\[40:43\], s45 offen offset:(\d+) lds", r"WL \1,\2", txt)
    txt = re.sub(r"buffer_load_dwordx4 v(\d+), s\[40:43\], s45 offen lds", r"WL \1,0", txt)
    txt = re.sub(r"^    ", " ", txt, flags=re.M)
    return txt


def main():
    ks = [gen_k1(), gen_k2(), gen_k3(), gen_k4(), gen_k5()]
    ref = open(f"cdna_kernels/{NAME}.s.ref").read().split("\n")
    hdr = [l for l in ref if l.startswith(";") and "@launch" not in l]
    out = "\n".join(hdr) + "\n"
    for name, p, desc, (g, b, lds) in ks:
        out += f"; @launch kernel={name} grid=({g},1,1) block=({b},1,1) lds={lds}\n"
    out += '.amdgcn_target "amdgcn-amd-amdhsa--gfx950"\n'
    out += MACROS
    for name, p, desc, _ in ks:
        out += compress(p.finalize())
    out += '.section .rodata,"a"\n'
    for name, p, desc, _ in ks:
        out += ".p2align 6\n" + desc
    dst = sys.argv[1] if len(sys.argv) > 1 else f"cdna_kernels/{NAME}.s"
    open(dst, "w").write(out)
    print("wrote", dst, len(out), "bytes")


if __name__ == "__main__":
    main()
```

```python
import sys, os
import gen as G
from gen import *

FL2, FL3, FL4, FL5 = 0x0000, 0x2000, 0x4000, 0x20000
FLAG_BYTES = 0x40000
WT = os.environ.get("WT", " sc0 sc1")
WT4 = os.environ.get("WT4", WT)
XRX3 = envint("XRX3", 16)
M4_RATE = float(os.environ.get("M4_RATE", 1.3))
M5_RATE = float(os.environ.get("M5_RATE", 1.5))
M3_RATE = float(os.environ.get("M3_RATE", 2.0))
M3_P0, M4_P0, M5_P0 = envint("M3_P0", 4), envint("M4_P0", 2), envint("M5_P0", 4)
MSTAMP = envint("MSTAMP", 0)
NAMEK = NAME + "_kernel"
PFD0 = envint("PFD0", 12)
FL1, FL1B = 0x6000, 0x6400
SNON = 96
NT2 = " nt" if envint("NT2", 0) else ""
NT4 = " nt" if envint("NT4", 0) else ""
PFS_LEAD = envint("PFS_LEAD", 14)
PFS_FROM = envint("PFS_FROM", 16)
NT5 = " nt" if envint("NT5", 0) else ""
MAP2, MAP3, MAP5 = envint("MAP2", 3), envint("MAP3", 2), envint("MAP5", 2)


def mapcode(lr, nrb_bits, d_rb, d_cb, tmp):
    xb = nrb_bits - lr
    return f"""
    s_and_b32 s{d_rb}, s3, {(1 << xb) - 1}
    s_lshl_b32 s{d_rb}, s{d_rb}, {lr}
    s_and_b32 s{tmp}, s4, {(1 << lr) - 1}
    s_add_u32 s{d_rb}, s{d_rb}, s{tmp}
    s_lshr_b32 s{d_cb}, s3, {xb}
    s_lshl_b32 s{d_cb}, s{d_cb}, {5 - lr}
    s_lshr_b32 s{tmp}, s4, {lr}
    s_add_u32 s{d_cb}, s{d_cb}, s{tmp}
    """

MAP4 = envint("MAP4", 2)
ORD = envint("ORD", 1)


def streg(i):
    return {14: 0, 15: 22, 16: 32}.get(i, 64 + 2 * i)


def mstamp(p, i):
    if MSTAMP:
        p.I(f"""
        s_waitcnt lgkmcnt(0)
        s_memrealtime s[98:99]
        s_memtime s[100:101]
        s_waitcnt lgkmcnt(0)
        s_mov_b32 s{streg(i)}, s98
        s_mov_b32 s{streg(i)+1}, s100
        """)


def mstamp_out(p, n, nout):
    if not MSTAMP:
        return
    p.I("s_waitcnt vmcnt(0)")
    mstamp(p, n - 1)
    p.I("s_mov_b64 exec, -1")
    srd(p, 36, P_WS, WS_STAMP, 1 << 20)
    p.I("""
    s_lshl_b32 s100, s2, 10
    s_lshl_b32 s101, s7, 8
    s_add_u32 s100, s100, s101
    v_mov_b32 v0, 0
    s_mov_b64 exec, 1
    """)
    for i in range(nout):
        p.I(f"v_mov_b32 v4, s{streg(i)}")
        p.I(f"v_mov_b32 v5, s{streg(i)+1}")
        p.I(f"buffer_store_dwordx2 v[4:5], v0, s[36:39], s100 offen offset:{8*i}")
        p.I("s_nop 1")


def sprinkle(p, q, groups, first=0):
    lines = q.lines
    safe = [i for i in range(first, len(lines) - 1)
            if lines[i].startswith("v_") and lines[i + 1].startswith("v_")
            and not lines[i].startswith("v_cmp") and not lines[i + 1].startswith("v_cndmask")]
    n = len(groups)
    pos = {}
    for j in range(n):
        i = safe[min(len(safe) - 1, (j * len(safe)) // n)]
        pos.setdefault(i, []).append(groups[j])
    for i, l in enumerate(lines):
        p.lines.append(l)
        for g in pos.get(i, []):
            p.lines += g


LANES2 = """
    v_mbcnt_lo_u32_b32 v1, -1, 0
    v_mbcnt_hi_u32_b32 v1, -1, v1  ; lane
    v_and_b32 v3, 15, v1           ; m / i
    v_lshrrev_b32 v4, 4, v1        ; g
"""
MAP4x8 = """
    s_and_b32 s5, s3, 3
    s_lshl_b32 s5, s5, 2
    s_and_b32 s6, s4, 3
    s_add_u32 s5, s5, s6
    s_lshr_b32 s6, s3, 2
    s_lshl_b32 s6, s6, 3
    s_lshr_b32 s9, s4, 2
    s_add_u32 s6, s6, s9
"""


def signal(p, soff, vzero, vone, later=()):
    n = 0
    for g in later:
        p.I("\n".join(g))
        n += sum(1 for t in g if t.startswith("buffer_"))
    p.I(f"""
    v_mov_b32 v{vzero}, 0
    v_mov_b32 v{vone}, s{SNON}
    s_waitcnt vmcnt({n})
    buffer_store_dword v{vone}, v{vzero}, s[60:63], s{soff} offen sc0 sc1
    """)


def poll(p, tag, vaddr, vtmp, soff):
    p.I("s_mov_b32 s47, 0x100000")
    p.label(f"L_poll_{tag}")
    p.I(f"""
    buffer_load_dword v{vtmp}, v{vaddr}, s[60:63], s{soff} offen sc0 sc1
    s_sub_u32 s47, s47, 1
    s_cbranch_scc1 L_poll_{tag}_x
    s_waitcnt vmcnt(0)
    v_cmp_ne_u32 vcc, s{SNON}, v{vtmp}
    s_nop 1
    s_cmp_eq_u64 vcc, 0
    s_cbranch_scc0 L_poll_{tag}
    """)
    p.label(f"L_poll_{tag}_x")
    p.I("s_waitcnt vmcnt(0)")


def xload2(vx, AX, RX, wrap=None):
    def f(t):
        a = AX + (t % RX) * 8
        o = (t & 1) * 2048
        g = [[f"buffer_load_dwordx4 a[{a}:{a+3}], v{vx}, s[36:39], s44 offen offset:{o}"],
             [f"buffer_load_dwordx4 a[{a+4}:{a+7}], v{vx}, s[36:39], s44 offen offset:{o+1024}"]]
        if t & 1:
            g[-1].append("s_add_u32 s44, s44, 4096")
        return g
    return f


def gen_mega():
    name = NAMEK
    p = Prog()
    head(p, name, 256)
    p.I("""
    s_and_b32 s3, s2, 7            ; xcd
    s_lshr_b32 s4, s2, 3           ; idx 0..31
    v_lshrrev_b32 v2, 6, v0
    v_and_b32 v1, 63, v0           ; lane
    v_readfirstlane_b32 s7, v2     ; wave
    v_and_b32 v3, 15, v1           ; m / i
    v_lshrrev_b32 v4, 4, v1        ; g
    """)
    p.I(mapcode(MAP2, 4, 5, 6, 9))
    KB = D // 32

    S2, RX2, U2 = 4, 8, 8
    STG2 = 24576
    HALO = S2 * STG2
    EXB = 139264
    V_X, V_W2, V_RA2, V_HA, V_PF = 5, 7, 10, 18, 19
    ACC2, ACCH = 32, 128
    AX2, AW2, AH2 = 0, 64, 160
    TAB, ZERO = 131072, 135168
    RESX = 232
    TCHK = envint("TCHK", 24)
    RES0, RESN = envint("RES0", 8), envint("RESN", 8)

    def accr(tb, part, u):
        return ACC2 + ((tb * 3 + part) * 4 + u) * 4

    def wdma2(st):
        slot = st % S2
        g = []
        for sub in range(2):
            for part in range(3):
                pre = []
                if part == 0:
                    pre = [f"s_add_u32 m0, s46, {slot*STG2 + sub*12288}", f"s_add_u32 s45, s45, {32*6144}"]
                g.append(pre + [f"buffer_load_dwordx4 v{V_W2+part}, s[40:43], s45 offen offset:{1024*part}{NT2} lds"])
        return g

    vs2 = []
    for t in range(KB):
        st, sub = divmod(t, 2)
        slot = st % S2
        hi = 4 if slot >= 2 else 0
        base = (slot % 2) * STG2 + sub * 12288
        aw = AW2 + (t & 1) * 48
        ah = AH2 + (t & 1) * 4
        ax = AX2 + (t % RX2) * 8
        rd = []
        for part in range(3):
            for u in range(4):
                for hh in range(2):
                    r = aw + (part * 4 + u) * 4 + 2 * hh
                    rd.append([f"ds_read_b64_tr_b16 a[{r}:{r+1}], v{V_RA2+hi+u} offset:{base+part*1024+hh*512}"])
        rd.append([f"ds_read_b128 a[{ah}:{ah+3}], v{V_HA} offset:{(t%U2)*1024}"] +
                  ([f"v_add_u32 v{V_HA}, {U2*1024}, v{V_HA}"] if t % U2 == U2 - 1 else []))
        first = t == 0
        mf = []
        o2 = [(part, u, tb) for part in range(3) for u in range(4) for tb in range(2)]
        if ORD:
            pu = [(part, u) for part in range(3) for u in range(4)]
            o2 = [(a, b, 0) for a, b in pu] + [(a, b, 1) for a, b in reversed(pu)]
        for part, u, tb in o2:
            w = f"a[{aw+(part*4+u)*4}:{aw+(part*4+u)*4+3}]"
            c = accr(tb, part, u)
            x = f"a[{ax+4*tb}:{ax+4*tb+3}]"
            cc = f"v[{c}:{c+3}]"
            a_, b_ = (w, x) if part < 2 else (x, w)
            mf.append(f"{MFMA} {cc}, {a_}, {b_}, {'0' if first else cc}")
        for part in (1, 2):
            w = f"a[{aw+(part*4)*4}:{aw+(part*4)*4+3}]"
            x = f"a[{ah}:{ah+3}]"
            cc = f"v[{ACCH+4*(part-1)}:{ACCH+4*(part-1)+3}]"
            a_, b_ = (w, x) if part < 2 else (x, w)
            mf.append(f"{MFMA} {cc}, {a_}, {b_}, {'0' if first else cc}")
        extra = []
        if PF2T <= t < PF2T + PF2:
            extra.append([f"buffer_load_dword v{26+t-PF2T}, v{V_PF}, s[48:51], s12 offen",
                          f"s_add_u32 s12, s12, {512*7168}"])
        if t == 3:
            extra.append([f"buffer_store_short v25, v30, s[56:59], s95 offen{WT}"])
            extra.append([f"buffer_store_short v29, v30, s[56:59], s95 offen offset:2048{WT}"])
        if t == 14:
            extra.append([f"buffer_store_dword v31, v30, s[60:63], s97 offen offset:{FL1B-FL1} sc0 sc1"])
        if t == RES0 - 1:
            extra.append([f"s_mov_b32 s92, s{P_X}", f"s_mov_b32 s93, s{P_X+1}", f"s_mov_b32 s94, {S_TOK*D*2}", "s_mov_b32 s95, 0x00020000"])
        for i in range(8):
            if t == RES0 + (i * RESN) // 8:
                tb, u = divmod(i, 4)
                r = RESX + i * 2
                extra.append([f"buffer_load_dwordx2 v[{r}:{r+1}], v{222+tb}, s[92:95], 0 offen offset:{32*u}"])
        post = None
        all_ld = f"buffer_load_dwordx4 v[252:255], v{V_X}, s[60:63], s13 offen offset:{FL1B-FL1} sc0 sc1"
        if t == TCHK - 3:
            extra.append([all_ld])
        if t == TCHK:
            def post(L):
                out = [f"s_waitcnt vmcnt({min(63, L.wait_for(('e', TCHK - 3)))})", "s_mov_b32 s47, 0x100000", "L_chkall:"]
                out += [f"v_xor_b32 v{252+i}, s{SNON}, v{252+i}" for i in range(4)]
                out += ["v_or3_b32 v252, v252, v253, v254", "v_or_b32 v252, v252, v255", "v_cmp_ne_u32 vcc, 0, v252",
                        "s_nop 1", "s_cmp_eq_u64 vcc, 0", "s_cbranch_scc1 L_chkall_ok", "s_sub_u32 s47, s47, 1",
                        "s_cbranch_scc1 L_chkall_ok", all_ld, "s_waitcnt vmcnt(0)", "s_branch L_chkall", "L_chkall_ok:"]
                out += ["s_lshl_b32 s9, s7, 10", f"s_add_u32 m0, s9, {TAB}", "s_nop 0",
                        f"buffer_load_dwordx4 v{V_X}, s[56:59], s9 offen lds"]
                out += [f"s_add_u32 s56, s{P_WS}, {WS_MX}", f"s_addc_u32 s57, s{P_WS+1}, 0", f"s_mov_b32 s58, {S_TOK*4}",
                        f"buffer_load_dword v{RESX+16}, v224, s[56:59], 0 offen",
                        f"buffer_load_dword v{RESX+18}, v224, s[56:59], 0 offen offset:64"]
                L.extra_vm("p3", 3)
                return out
        vs2.append(VStep(mf, rd, [t], [st, 100 + t // 4], extra=extra, post=post))
    L2 = Loop("m2", vs2, KB // 2, 2, S2, RX2, U2, wdma2, xload2(6, AX2, RX2), cnt_sreg=47, lead=1, tail_free=4,
              P0=K2_P0, RATE=K2_RATE)

    TAB, ZERO = 131072, 135168
    RX3 = XRX3
    ACC3, ACCM, RES3 = 32, 84, 64
    V_W3 = 220
    V_RA3, V_TAB = 10, 9
    AX3, AW3, AM3 = 0, 128, 192

    def wdma3(st):
        g0 = [f"s_add_u32 m0, s46, {st*8192}"]
        if st:
            g0.append(f"s_add_u32 s45, s45, {64*2048}")
        else:
            g0.append("s_nop 0")
        g0.append(f"buffer_load_dwordx4 v{V_W3}, s[40:43], s45 offen lds")
        return [g0, [f"buffer_load_dwordx4 v{V_W3+1}, s[40:43], s45 offen offset:1024 lds"]]

    vs3 = []
    for st in range(KB // 2):
        rd, mf = [], []
        hi = 4 if st >= 8 else 0
        for sub in range(2):
            t = 2 * st + sub
            base = (st % 8) * 8192 + sub * 4096
            aw = AW3 + (st & 1) * 32 + sub * 16
            am = AM3 + (st & 1) * 8 + sub * 4
            ax = AX3 + (t % RX3) * 8
            for u in range(4):
                for hh in range(2):
                    rd.append([f"ds_read_b64_tr_b16 a[{aw+4*u+2*hh}:{aw+4*u+2*hh+1}], v{V_RA3+hi+u} offset:{base+hh*2048}"])
            rd.append([f"ds_read_b128 a[{am}:{am+3}], v{V_TAB} offset:{64*t}"])
            for u in range(4):
                for tb in range(2):
                    c = ACC3 + (tb * 4 + u) * 4
                    mf.append(f"{MFMA} v[{c}:{c+3}], a[{aw+4*u}:{aw+4*u+3}], a[{ax+4*tb}:{ax+4*tb+3}], v[{c}:{c+3}]")
            for tb in range(2):
                c = ACCM + 4 * tb
                cin = "0" if t == 0 else f"v[{c}:{c+3}]"
                mf.append(f"{MFMA} v[{c}:{c+3}], a[{am}:{am+3}], a[{ax+4*tb}:{ax+4*tb+3}], {cin}")
        vs3.append(VStep(mf, rd, [2 * st, 2 * st + 1], [st]))
    L3 = Loop("m3", vs3, KB // 2, 2, 16, RX3, 8, wdma3, xload2(6, AX3, RX3), cnt_sreg=47, lead=1, tail_free=6,
              P0=M3_P0, RATE=M3_RATE)
    fill3 = L3.take_prefill(16)

    S4, RX4, U4 = 4, 8, 8
    STG4 = 28672
    V_X4, V_W4, V_RA4, V_PF4, V_ST, V_M, V_XB4, V_T = 224, 225, 232, 234, 235, 236, 237, 240
    AX4, AW4 = 0, 128

    def wdma4(st):
        slot = st % S4
        g = []
        for j in range(7):
            pre = []
            if j == 0:
                pre = [f"s_add_u32 m0, s46, {slot*STG4}", f"s_add_u32 s45, s45, {64*F*2}"]
            if j == 4:
                g[-1].append(f"s_add_u32 m0, s46, {slot*STG4+4096}")
            g.append(pre + [f"buffer_load_dwordx4 v{V_W4+j}, s[40:43], s45 offen offset:{1024*(j%4)}{NT4} lds"])
        return g

    def xload4(t):
        a = AX4 + (t % RX4) * 16
        g = [[f"buffer_load_dwordx4 a[{a+4*j}:{a+4*j+3}], v{V_XB4}, s[36:39], s44 offen offset:{1024*j}"] for j in range(4)]
        g[-1] += ["s_add_u32 s44, s44, 4096"]
        return g

    vs4 = []
    for t in range(KB):
        st, sub = divmod(t, 2)
        slot = st % S4
        ra = V_RA4 + (slot >= 2)
        base = (slot % 2) * STG4 + sub * 7168
        a = AW4 + (t & 1) * 56
        ax = AX4 + (t % RX4) * 16
        rd = []
        for s in range(14):
            mat, sl = divmod(s, 7)
            for hh in range(2):
                off = base + mat * 14336 + hh * 3584 + sl * 32
                rd.append([f"ds_read_b64_tr_b16 a[{a+4*s+2*hh}:{a+4*s+2*hh+1}], v{ra} offset:{off}"])
        order = [(s, tb) for s in range(14) for tb in range(4)]
        if t == KB - 1 or ORD:
            order = [(s, tb) for tb in range(4) for s in (range(14) if tb % 2 == 0 else range(13, -1, -1))]
        mf = []
        for s, tb in order:
            c = tb * 56 + s * 4
            cin = "0" if t == 0 else f"v[{c}:{c+3}]"
            mf.append(f"{MFMA} v[{c}:{c+3}], a[{a+4*s}:{a+4*s+3}], a[{ax+4*tb}:{ax+4*tb+3}], {cin}")
        extra = []
        if PFS_LEAD and PFS_FROM <= t + PFS_LEAD < KB:
            extra.append([f"buffer_load_dword v239, v238, s[40:43], s11 offen", f"s_add_u32 s11, s11, {32*F*2}"])
        if PF4 == 1 and PFD0 <= t < PFD0 + 14:
            extra.append([f"buffer_load_dword v239, v238, s[52:55], s12 offen", "s_add_u32 s12, s12, 512"])
        if PF4 == 2 and t == KB - envint("PFDT", 7):
            extra.append([f"buffer_load_dword v239, v{V_PF4}, s[52:55], s12 offen"])
        if t == KB - 8:
            for j in range(16):
                extra.append([f"buffer_load_dword v{V_T+j}, v{V_ST}, s[48:51], s9 offen offset:{128*j}"])
        vs4.append(VStep(mf, rd, [t], [st], extra=extra))
    L4 = Loop("m4", vs4, KB // 2, 2, S4, RX4, U4, wdma4, xload4, cnt_sreg=47, lead=1, tail_free=8,
              P0=M4_P0, RATE=M4_RATE)
    fill4 = L4.take_prefill(S4)

    KBT = F // 32
    KB5 = KBT // 2
    S5 = 8
    RX5 = 16
    R = K5_R
    STG5 = 16384
    ACC5, RES5 = 32, 96
    V_W5 = (225, 227, 229, 231)
    V_RA5 = 12
    AX5, AW5 = 0, 128

    def wdma5(st):
        slot = st % S5
        g = [[f"s_add_u32 m0, s46, {slot*STG5}", f"s_add_u32 s45, s45, {64*2048}",
              f"buffer_load_dwordx4 v{V_W5[0]}, s[40:43], s45 offen offset:0{NT5} lds"]]
        for j in range(1, 4):
            g.append([f"buffer_load_dwordx4 v{V_W5[j]}, s[40:43], s45 offen offset:{1024*j}{NT5} lds"])
        return g

    def rd5(t, u, areg):
        st, sub = divmod(t, 2)
        slot = st % S5
        hi = 8 if slot >= 4 else 0
        base = (slot % 4) * STG5 + sub * 8192
        return [[f"ds_read_b64_tr_b16 a[{areg+2*hh}:{areg+2*hh+1}], v{V_RA5+hi+u} offset:{base+hh*4096}"] for hh in range(2)]

    def mf5(t, u, areg):
        ax = AX5 + (t % RX5) * 8
        out = []
        for tb in range(2):
            c = ACC5 + (tb * 8 + u) * 4
            cin = "0" if t == 0 else f"v[{c}:{c+3}]"
            out.append(f"{MFMA} v[{c}:{c+3}], a[{areg}:{areg+3}], a[{ax+4*tb}:{ax+4*tb+3}], {cin}")
        return out

    send = []
    for tb in range(2):
        for u in range(4):
            c = ACC5 + (tb * 8 + 4 + u) * 4
            send.append([f"buffer_store_dwordx4 v[{c}:{c+3}], v5, s[56:59], s{9+tb} offen offset:{1024*u} sc0 sc1"])
    items = [[(t, 4), (t, 0)] for t in range(KB5 - R)]
    items += [[(t, 4)] for t in range(KB5 - R, KB5)] + [[(t, 0)] for t in range(KB5 - R, KB5)]
    merged = []
    for it in items:
        if merged and len(merged[-1]) == 1 and len(it) == 1:
            merged[-1] = merged[-1] + it
        else:
            merged.append(list(it))
    vs5 = []
    i_own = None
    for it in merged:
        aw = AW5 + (len(vs5) & 1) * 32
        r_, m_ = [], []
        f = 0
        for t, half in it:
            for uu in range(4):
                r_ += rd5(t, half + uu, aw + 4 * f)
                m_ += mf5(t, half + uu, aw + 4 * f)
                f += 1
        if ORD:
            mm = []
            if it[0][0] == it[-1][0]:
                mm = m_[0::2] + m_[1::2][::-1]
            else:
                for h in range(len(it)):
                    blk = m_[8 * h: 8 * h + 8]
                    mm += blk[0::2] + blk[1::2][::-1]
            m_ = mm
        if i_own is None and all(h == 0 for _, h in it):
            i_own = len(vs5)
        vs5.append(VStep(m_, r_, sorted({t for t, _ in it}), sorted({t // 2 for t, _ in it})))
    vs5[i_own].extra = send
    fl = min(i_own + K5_FLAGLAG, len(vs5) - 1)
    vs5[fl].post = ["s_waitcnt vmcnt(0)", "buffer_store_dword v29, v28, s[60:63], s15 offen sc0 sc1"]
    resl = []
    for tb in range(2):
        for j in range(2):
            r = RES5 + (tb * 2 + j) * 4
            resl.append([f"buffer_load_dwordx4 v[{r}:{r+3}], v5, s[48:51], s{52+j} offen offset:{1024*tb}"])
    resl.append(["buffer_load_dword v112, v7, s[48:51], s54 offen"])
    resl.append(["buffer_load_dword v114, v7, s[48:51], s54 offen offset:64"])
    vs5[KB5 - R + 1].extra = resl
    def xload5(t):
        if t % 7 != 3:
            return xload2(6, AX5, RX5)(t)
        a = AX5 + (t % RX5) * 8
        o = (t & 1) * 2048
        g = []
        for tb in range(2):
            for h in range(2):
                g.append([f"buffer_load_dwordx2 a[{a+4*tb+2*h}:{a+4*tb+2*h+1}], v8, s[36:39], s44 offen offset:{o+1024*tb+512*h}"])
        if t & 1:
            g[-1].append("s_add_u32 s44, s44, 4096")
        return g
    L5 = Loop("m5", vs5, KB5 // 2, 2, S5, RX5, 16, wdma5, xload5, cnt_sreg=47, lead=1, tail_free=5,
              P0=M5_P0, RATE=M5_RATE)
    fill5 = L5.take_prefill(S5)

    p.I(f"""
    v_lshlrev_b32 v{V_X}, 4, v1
    s_lshl_b32 s8, s5, 3
    s_lshl_b32 s9, s7, 1
    s_add_u32 s8, s8, s9
    s_lshl_b32 s9, s8, 15
    v_add_u32 v6, s9, v{V_X}
    s_mov_b32 s44, 0
    v_lshrrev_b32 v20, 3, v1        ; r8
    v_bfe_u32 v21, v1, 4, 1         ; (r8>>1)&1
    s_and_b32 s9, s7, 1
    s_lshl_b32 s9, s9, 1
    v_or_b32 v21, s9, v21           ; f
    v_bfe_u32 v22, v1, 1, 2
    v_xor_b32 v22, v22, v21         ; unit
    v_and_b32 v23, 1, v1
    v_lshlrev_b32 v22, 5, v22
    v_lshl_add_u32 v22, v23, 4, v22
    v_lshl_add_u32 v20, s7, 3, v20  ; row
    s_movk_i32 s9, 6144
    v_mul_u32_u24 v20, s9, v20
    s_lshl_b32 s9, s6, 7            ; hp*128
    v_add3_u32 v{V_W2}, v20, v22, s9
    v_add_u32 v{V_W2+1}, 1024, v{V_W2}
    v_add_u32 v{V_W2+2}, 2048, v{V_W2}
    s_mov_b32 s45, {(-32*6144) & 0xffffffff:#x}
    s_mul_i32 s46, s7, 3072
    s_waitcnt lgkmcnt(0)
    """)
    mstamp(p, 0)
    fill2 = L2.take_prefill(envint("PRE2", 3))
    srd(p, 48, P_X, 0, S_TOK * D * 2)
    p.I(f"""
    v_and_b32 v20, 7, v1            ; t
    v_lshrrev_b32 v21, 3, v1        ; c
    v_lshlrev_b32 v22, 11, v20
    v_lshl_add_u32 v22, v21, 4, v22
    s_lshl_b32 s9, s2, 14
    s_lshl_b32 s10, s7, 9
    s_add_u32 s9, s9, s10
    """)
    for j in range(4):
        p.I(f"buffer_load_dwordx4 v[{32+4*j}:{35+4*j}], v22, s[48:51], s9 offen offset:{128*j}{INPOL}")
    srd(p, 52, P_WO, 0, D * D * 2)
    srd(p, 56, P_DBG, 0, 256)
    p.I(f"""
    s_lshl_b32 s11, s2, 2
    s_add_u32 s11, s11, s7
    v_mov_b32 v30, 0
    s_cmp_lg_u32 s11, 0
    s_cbranch_scc1 L_nononce
    s_memrealtime s[98:99]
    s_waitcnt lgkmcnt(0)
    s_or_b32 s98, s98, 1
    v_mov_b32 v31, s98
    buffer_store_dword v31, v30, s[56:59], 0 offen sc0 sc1
    s_waitcnt vmcnt(0)
    """)
    p.label("L_nononce")
    srd(p, 40, P_WQKV, 0, D * 3 * D * 2)
    npf = 0
    PFPOS = envint("PFPOS", 0)
    nfa = min(len(fill2), envint("FILL2_A", 9))

    def early_loads():
        n = 0
        if PF1:
            p.I(f"""
            v_lshlrev_b32 v61, 7, v1
            v_mov_b32 v62, 0x7fffffff
            v_cmp_gt_u32 vcc, 48, v1
            s_mul_i32 s12, s11, 6144
            v_cndmask_b32 v61, v62, v61, vcc
            buffer_load_dword v60, v61, s[40:43], s12 offen
            """)
            n = 1
        for gg in fill2[:nfa]:
            p.I("\n".join(gg))
        return n + nfa
    if PFPOS == 0:
        npf = early_loads()
    hop(p, name, chain="0")
    srd(p, 36, P_WS, WS_XN, S_TOK * D * 2)
    srd(p, 60, P_WS, WS_FLAG, FLAG_BYTES)
    p.I(f"""
    v_lshlrev_b32 v23, 4, v20
    v_add_u32 v23, {EXB}, v23
    s_lshl_b32 s9, s7, 2
    v_add_u32 v24, s9, v23
    v_lshrrev_b32 v25, 2, v21
    v_lshlrev_b32 v25, 11, v25
    v_and_b32 v26, 3, v21
    v_lshl_add_u32 v25, v26, 8, v25
    v_lshl_add_u32 v25, v20, 4, v25
    s_lshr_b32 s9, s2, 2
    s_lshl_b32 s9, s9, 16
    s_bfe_u32 s10, s2, 0x10001
    s_lshl_b32 s10, s10, 10
    s_add_u32 s9, s9, s10
    s_and_b32 s10, s2, 1
    s_lshl_b32 s10, s10, 7
    s_add_u32 s9, s9, s10
    s_lshl_b32 s10, s7, 14
    s_add_u32 s9, s9, s10
    """)
    for j in range(4):
        p.I(f"s_waitcnt vmcnt({3-j+npf})")
        for r in range(4):
            x = 32 + 4 * j + r
            p.I(f"v_lshlrev_b32 v{64+2*(4*j+r)}, 16, v{x}")
            p.I(f"v_and_b32 v{65+2*(4*j+r)}, 0xffff0000, v{x}")
    if PFPOS == 1:
        early_loads()
    p.I("v_pk_add_f32 v[26:27], v[64:65], v[66:67]")
    p.I("v_pk_add_f32 v[28:29], v[68:69], v[70:71]")
    for i in range(2, 8):
        p.I(f"v_pk_add_f32 v[26:27], v[26:27], v[{64+4*i}:{65+4*i}]")
        p.I(f"v_pk_add_f32 v[28:29], v[28:29], v[{66+4*i}:{67+4*i}]")

    def red8(off):
        p.I("""
        v_pk_add_f32 v[26:27], v[26:27], v[28:29]
        v_add_f32 v26, v26, v27
        v_add_f32_dpp v27, v26, v26 row_ror:8 row_mask:0xf bank_mask:0xf
        """)
        xgroup_reduce(p, 27, 26, "v_add_f32")
        p.I(f"""
        ds_write_b32 v24, v27 offset:{off}
        s_waitcnt lgkmcnt(0)
        s_barrier
        ds_read_b128 v[26:29], v23 offset:{off}
        s_waitcnt lgkmcnt(0)
        v_pk_add_f32 v[26:27], v[26:27], v[28:29]
        v_add_f32 v26, v26, v27
        """)
    red8(0)
    p.I("v_mul_f32 v56, 0x3a800000, v26     ; mean")
    for i in range(16):
        p.I(f"v_pk_add_f32 v[{64+2*i}:{65+2*i}], v[{64+2*i}:{65+2*i}], v[56:57] op_sel_hi:[1,0] neg_lo:[0,1] neg_hi:[0,1]")
    p.I("v_pk_mul_f32 v[26:27], v[64:65], v[64:65]")
    p.I("v_pk_mul_f32 v[28:29], v[66:67], v[66:67]")
    for i in range(1, 8):
        p.I(f"v_pk_fma_f32 v[26:27], v[{64+4*i}:{65+4*i}], v[{64+4*i}:{65+4*i}], v[26:27]")
        p.I(f"v_pk_fma_f32 v[28:29], v[{66+4*i}:{67+4*i}], v[{66+4*i}:{67+4*i}], v[28:29]")
    red8(256)
    p.I(f"""
    v_mov_b32 v27, {f2u(1e-5):#x}
    v_fmac_f32 v27, 0x3a800000, v26
    v_rsq_f32 v58, v27
    """)
    for j in range(4):
        for r in range(4):
            qq = 4 * j + r
            p.I(f"v_pk_mul_f32 v[{64+2*qq}:{65+2*qq}], v[{64+2*qq}:{65+2*qq}], v[58:59] op_sel_hi:[1,0]")
        for r in range(4):
            qq = 4 * j + r
            p.I(f"v_cvt_pk_bf16_f32 v{32+qq}, v{64+2*qq}, v{65+2*qq}")
        p.I(f"buffer_store_dwordx4 v[{32+4*j}:{35+4*j}], v25, s[36:39], s9 offen{WT}")
        if j < 3:
            p.I("s_add_u32 s9, s9, 4096")
    srd(p, 48, P_WS, WS_MX, WS_RM - WS_MX + 4096)
    p.I(f"""
    s_lshl_b32 s10, s2, 5           ; 8 tokens * 4
    s_cmp_eq_u32 s7, 0
    s_cselect_b32 s10, s10, 0x7ffffff0
    v_lshlrev_b32 v29, 2, v20
    s_mov_b64 exec, 0xff
    buffer_store_dword v56, v29, s[48:51], s10 offen{WT}
    s_mov_b64 exec, -1
    buffer_load_dword v31, v30, s[56:59], 0 offen sc0 sc1
    s_lshl_b32 s9, s11, 11
    buffer_load_dwordx4 v[48:51], v{V_X}, s[52:55], s9 offen
    buffer_load_dwordx4 v[52:55], v{V_X}, s[52:55], s9 offen offset:1024
    """)
    nrest = len(fill2) - nfa
    if PFPOS == 2:
        nrest += early_loads()
    for gg in fill2[nfa:]:
        p.I("\n".join(gg))
    p.I(f"s_waitcnt vmcnt({2 + nrest})")
    p.I("s_mov_b32 s47, 0x100000")
    p.label("L_nonce")
    p.I(f"""
    v_readfirstlane_b32 s{SNON}, v31
    s_cmp_lg_u32 s{SNON}, 0
    s_cbranch_scc1 L_nonce_ok
    s_sub_u32 s47, s47, 1
    s_cbranch_scc1 L_nonce_ok
    buffer_load_dword v31, v30, s[56:59], 0 offen sc0 sc1
    s_waitcnt vmcnt(0)
    s_branch L_nonce
    """)
    p.label("L_nonce_ok")
    p.I(f"""
    v_mov_b32 v31, s{SNON}
    s_lshl_b32 s97, s2, 2
    s_add_u32 s97, s97, {FL1}
    s_cmp_eq_u32 s7, 0
    s_cselect_b32 s97, s97, {FLAG_BYTES}
    s_barrier
    buffer_store_dword v31, v30, s[60:63], s97 offen sc0 sc1
    """)
    mstamp(p, 13)
    p.I(f"s_waitcnt vmcnt({1 + nrest})")
    for r in range(8):
        p.I(f"v_lshlrev_b32 v{64+2*r}, 16, v{48+r}")
        p.I(f"v_and_b32 v{65+2*r}, 0xffff0000, v{48+r}")
    p.I("v_pk_add_f32 v[26:27], v[64:65], v[66:67]")
    for i in range(2, 8):
        p.I(f"v_pk_add_f32 v[26:27], v[26:27], v[{64+2*i}:{65+2*i}]")
    p.I("v_add_f32 v26, v26, v27")
    for sh in (1, 2, 4, 8):
        p.I(f"v_add_f32_dpp v27, v26, v26 row_ror:{sh} row_mask:0xf bank_mask:0xf")
        p.I("v_mov_b32 v26, v27")
    xgroup_reduce(p, 26, 27, "v_add_f32")
    p.I(f"""
    v_mul_f32 v26, 0x3a800000, v26
    v_cvt_pk_bf16_f32 v25, v26, v26
    v_lshlrev_b32 v28, 16, v25
    v_sub_f32 v26, v26, v28
    v_cvt_pk_bf16_f32 v29, v26, v26
    s_lshr_b32 s95, s11, 5
    s_lshl_b32 s95, s95, 6            ; kb*64
    s_bfe_u32 s10, s11, 0x20002     ; g
    s_lshl_b32 s10, s10, 4
    s_add_u32 s95, s95, s10
    s_bfe_u32 s10, s11, 0x10004
    s_lshl_b32 s10, s10, 3
    s_add_u32 s95, s95, s10
    s_and_b32 s10, s11, 3
    s_lshl_b32 s10, s10, 1
    s_add_u32 s95, s95, s10
    """)
    srd(p, 56, P_WS, WS_RM, 4096)
    p.I(f"""
    v_and_b32 v27, 3, v1
    s_lshl_b32 s9, s8, 1
    v_add_u32 v27, s9, v27
    s_lshl_b32 s9, s5, 4
    s_sub_u32 s9, s9, 2
    s_max_i32 s9, s9, 2
    v_and_b32 v28, 1, v1
    v_add_u32 v28, s9, v28
    v_cmp_gt_u32 vcc, 4, v1
    s_movk_i32 s13, {FL1}
    v_cndmask_b32 v27, v28, v27, vcc
    v_lshlrev_b32 v27, 2, v27
    """)

    def phase2_go():
        poll(p, "1", 27, 28, 13)
        mstamp(p, 1)

        p.I(f"""
        s_lshl_b32 s9, s5, 3
        s_sub_u32 s9, s9, 2
        s_max_i32 s9, s9, 0
        s_lshl_b32 s9, s9, 15           ; (mb>>1)*64KB
        s_add_u32 s9, s9, 1024          ; (mb&1)*1024
        s_lshl_b32 s10, s7, 11
        s_add_u32 s9, s9, s10           ; + w*2048
        s_lshl_b32 s10, s7, 10
        s_add_u32 s10, s10, {HALO}
        """)

        def halo_dma(j):
            p.I(f"s_add_u32 m0, s10, {4096*j}")
            if j:
                p.I("s_add_u32 s9, s9, 8192")
            p.I(f"buffer_load_dwordx4 v{V_X}, s[36:39], s9 offen lds")
            L2.extra_vm(("w", 100 + j), 1)
        halo_dma(0)
        L2.prologue_issue(p, upto=1)
        halo_dma(1)
        L2.prologue_issue(p, upto=2)
        for j in range(2, 8):
            halo_dma(j)
        L2.prologue_issue(p)
    p.I(f"""
    v_add_u32 v{V_HA}, {HALO}, v{V_X}
    v_lshrrev_b32 v20, 2, v3        ; r
    v_and_b32 v21, 3, v3            ; c
    v_lshrrev_b32 v23, 1, v20
    v_and_b32 v24, 1, v4
    v_lshl_or_b32 v23, v24, 1, v23  ; f
    v_xor_b32 v23, s7, v23          ; f ^ w
    v_mul_u32_u24 v22, 3072, v4
    v_lshl_add_u32 v22, v20, 7, v22
    v_lshl_add_u32 v22, v21, 3, v22
    v_lshl_add_u32 v22, v23, 5, v22
    """)
    for u in range(4):
        p.I(f"""
        v_xor_b32 v{V_RA2+u}, {32*u}, v22
        v_add_u32 v{V_RA2+4+u}, {2*STG2}, v{V_RA2+u}
        """)
    p.I(f"""
    v_lshlrev_b32 v{V_PF}, 7, v1
    v_mov_b32 v20, 0x7fffffff
    v_cmp_gt_u32 vcc, 56, v1
    s_lshl_b32 s12, s2, 1
    s_and_b32 s13, s7, 1
    s_add_u32 s12, s12, s13
    s_mul_i32 s12, s12, 7168
    v_cndmask_b32 v{V_PF}, v20, v{V_PF}, vcc
    s_cmp_ge_u32 s7, 2
    s_cselect_b32 s48, s{P_WU}, s{P_WG}
    s_cselect_b32 s49, s{P_WU+1}, s{P_WG+1}
    s_mov_b32 s50, {D*F*2}
    s_mov_b32 s51, 0x00020000
    """)
    srd(p, 52, P_WS, WS_O, S_TOK * D * 2)
    BIAS, EXA = 204, 216
    NEG = f2u(-1e30)
    p.I(f"""
    v_lshlrev_b32 v20, 2, v4          ; 4g
    v_sub_u32 v20, v20, v3            ; 4g - m
    v_mov_b32 v21, {NEG:#x}
    s_or_b32 s9, s5, s7
    s_cmp_eq_u32 s9, 0
    s_cselect_b32 s9, 64, 2
    """)
    for r in range(4):
        p.I(f"""
        v_add_u32 v22, {r}, v20           ; d = j - m
        v_and_b32 v23, 1, v22
        v_lshl_add_u32 v24, v23, 8, v22
        v_cmp_ge_i32 vcc, 0, v24
        v_cndmask_b32 v{BIAS+8+r}, v21, 0, vcc
        v_lshlrev_b32 v23, 8, v23
        v_sub_u32 v24, v22, v23
        v_cmp_le_i32 vcc, 2, v24
        v_cndmask_b32 v{BIAS+4+r}, v21, 0, vcc
        v_cmp_le_i32 vcc, s9, v24
        v_cndmask_b32 v{BIAS+r}, v21, 0, vcc
        """)
    p.I(f"""
    s_lshr_b32 s9, s7, 1
    s_lshl_b32 s9, s9, 11
    s_and_b32 s10, s7, 1
    s_lshl_b32 s10, s10, 3
    s_add_u32 s9, s9, s10
    v_add_u32 v{EXA}, s9, v{V_X}
    v_xor_b32 v{EXA+1}, 8, v{EXA}
    v_xor_b32 v{EXA+2}, 0x800, v{EXA}
    v_xor_b32 v{EXA+3}, 0x800, v{EXA+1}
    {mapcode(MAP3, 4, 14, 15, 9)}
    v_lshrrev_b32 v20, 3, v1
    v_lshrrev_b32 v21, 1, v20
    v_and_b32 v21, 3, v21          ; f
    v_bfe_u32 v22, v1, 1, 2        ; pos>>1
    v_xor_b32 v22, v22, v21        ; unit
    v_and_b32 v23, 1, v1
    v_lshlrev_b32 v22, 5, v22
    v_lshl_add_u32 v22, v23, 4, v22
    v_lshl_add_u32 v20, s7, 4, v20
    v_lshl_add_u32 v{V_W3}, v20, 11, v22
    s_lshl_b32 s9, s15, 7
    v_add_u32 v{V_W3}, s9, v{V_W3}
    v_add_u32 v{V_W3+1}, {8*2048-1024}, v{V_W3}
    s_lshl_b32 s10, s14, 3
    s_lshl_b32 s11, s7, 1
    s_add_u32 s10, s10, s11
    s_lshl_b32 s11, s10, 15
    s_add_u32 s11, s11, s9         ; + cb*128
    v_lshlrev_b32 v20, 11, v3
    v_lshl_add_u32 v20, v4, 3, v20
    v_add_u32 v222, s11, v20
    v_add_u32 v223, 32768, v222
    s_lshl_b32 s10, s10, 6
    v_lshlrev_b32 v20, 2, v3
    v_add_u32 v224, s10, v20
    v_mov_b32 v20, 0
    v_mov_b32 v21, 0
    v_lshlrev_b32 v22, 3, v0
    v_add_u32 v22, {ZERO}, v22
    ds_write_b64 v22, v[20:21]
    ds_write_b64 v22, v[20:21] offset:2048
    """)
    p.I(f"s_movk_i32 s13, {FL1}")
    phase2_go()
    L2.start(p)
    L2.body(p)
    mstamp(p, 2)
    QP, KP, VP, HP = 136, 152, 176, 200

    def qp(hd, tb): return QP + (hd * 2 + tb) * 4
    def kp(hd, i): return KP + (hd * 3 + i) * 4
    def vp(hd, db, i): return VP + ((hd * 2 + db) * 3 + i) * 2

    q = Prog()

    def pack(hd, tb, parts):
        for db in range(2):
            for part, dst in ((0, qp(hd, tb) + 2 * db), (1, kp(hd, 1 + tb) + 2 * db), (2, vp(hd, db, 1 + tb))):
                if part not in parts:
                    continue
                c = accr(tb, part, 2 * hd + db)
                q.I(f"v_cvt_pk_bf16_f32 v{dst}, v{c}, v{c+1}")
                q.I(f"v_cvt_pk_bf16_f32 v{dst+1}, v{c+2}, v{c+3}")
    p.I(f"""
    s_lshl_b32 s9, s7, 12
    s_add_u32 s9, s9, {EXB}
    v_add_u32 v20, s9, v{EXA}
    v_add_u32 v21, s9, v{EXA+1}
    v_add_u32 v22, s9, v{EXA+2}
    v_add_u32 v23, s9, v{EXA+3}
    v_add_u32 v24, {EXB}, v{EXA}
    """)
    srd(p, 40, P_WO, 0, D * D * 2)
    p.I(f"""
    s_mov_b32 s45, 0
    s_lshl_b32 s46, s7, 11
    s_barrier
    """)
    for hd in range(2):
        pack(hd, 1, (1, 2))
    for i in range(4):
        q.I(f"v_cvt_pk_bf16_f32 v{HP+i}, v{ACCH+2*i}, v{ACCH+2*i+1}")
    for hd in range(2):
        for db in range(2):
            k = kp(hd, 2) + 2 * db
            v = vp(hd, db, 2)
            q.I(f"ds_write_b64 v{20+2*hd+db}, v[{k}:{k+1}] offset:4096")
            q.I(f"ds_write_b64 v{20+2*hd+db}, v[{v}:{v+1}] offset:{4096+1024}")
    q.I(f"ds_write_b64 v24, v[{HP}:{HP+1}]")
    q.I(f"ds_write_b64 v24, v[{HP+2}:{HP+3}] offset:1024")
    for hd in range(2):
        pack(hd, 1, (0,))
        pack(hd, 0, (0, 1, 2))
    q.I("""
    s_waitcnt lgkmcnt(0)
    s_barrier
    """)
    for hd in range(2):
        for db in range(2):
            k = kp(hd, 0) + 2 * db
            v = vp(hd, db, 0)
            q.I(f"ds_read_b64 v[{k}:{k+1}], v{20+2*hd+db}")
            q.I(f"ds_read_b64 v[{v}:{v+1}], v{20+2*hd+db} offset:1024")
    chains = [(0, 1), (1, 1), (0, 0), (1, 0)]
    SR, MX, TM, SM, PP, OO = 32, 64, 72, 76, 84, 100
    CSC = f2u(32 ** -0.5 * 1.4426950408889634)
    q.I(f"s_mov_b32 s9, {CSC:#x}")
    q.I(f"s_mov_b32 s10, {CSC:#x}")
    q.I(f"s_mov_b32 s11, {CSC:#x}")
    for ci, (hd, tb) in enumerate(chains):
        s = SR + ci * 8
        qq = qp(hd, tb)
        kc = kp(hd, 1 + tb)
        q.I(f"{MFMA} v[{s+4}:{s+7}], v[{kc}:{kc+3}], v[{qq}:{qq+3}], v[{BIAS+8}:{BIAS+11}]")
    for ci, (hd, tb) in enumerate(chains):
        s = SR + ci * 8
        qq = qp(hd, tb)
        kv = kp(hd, tb)
        if ci == 2:
            q.I("s_waitcnt lgkmcnt(0)")
        b = BIAS + 4 * tb
        q.I(f"{MFMA} v[{s}:{s+3}], v[{kv}:{kv+3}], v[{qq}:{qq+3}], v[{b}:{b+3}]")
    mx = [MX + 2 * i for i in range(4)]
    for ci in range(4):
        s = SR + ci * 8
        q.I(f"v_max3_f32 v{mx[ci]}, v{s+4}, v{s+5}, v{s+6}")
    for ci in range(4):
        s = SR + ci * 8
        q.I(f"v_max3_f32 v{mx[ci]}, v{mx[ci]}, v{s+7}, v{s}")
        q.I(f"v_max3_f32 v{mx[ci]}, v{mx[ci]}, v{s+1}, v{s+2}")
        q.I(f"v_max_f32 v{mx[ci]}, v{mx[ci]}, v{s+3}")
    xgroup_reduce_multi(q, mx, [TM + i for i in range(4)], "v_max_f32")
    for ci in range(4):
        q.I(f"v_mul_f32 v{mx[ci]}, s9, v{mx[ci]}")
    for ci in range(4):
        s = SR + ci * 8
        for r in range(0, 8, 2):
            q.I(f"v_pk_fma_f32 v[{s+r}:{s+r+1}], v[{s+r}:{s+r+1}], s[10:11], v[{mx[ci]}:{mx[ci]+1}] op_sel_hi:[1,1,0] neg_lo:[0,0,1] neg_hi:[0,0,1]")
        for r in range(8):
            q.I(f"v_exp_f32 v{s+r}, v{s+r}")
    for ci, (hd, tb) in enumerate(chains):
        s = SR + ci * 8
        for r in range(4):
            q.I(f"v_cvt_pk_bf16_f32 v{PP+4*ci+r}, v{s+2*r}, v{s+2*r+1}")
    for ci, (hd, tb) in enumerate(chains):
        for db in range(2):
            v = vp(hd, db, tb)
            o = OO + ci * 8 + db * 4
            q.I(f"{MFMA} v[{o}:{o+3}], v[{v}:{v+3}], v[{PP+4*ci}:{PP+4*ci+3}], 0")
    sm = [SM + 2 * i for i in range(4)]
    for ci in range(4):
        s = SR + ci * 8
        q.I(f"v_pk_add_f32 v[{s}:{s+1}], v[{s}:{s+1}], v[{s+2}:{s+3}]")
        q.I(f"v_pk_add_f32 v[{s+4}:{s+5}], v[{s+4}:{s+5}], v[{s+6}:{s+7}]")
        q.I(f"v_pk_add_f32 v[{s}:{s+1}], v[{s}:{s+1}], v[{s+4}:{s+5}]")
        q.I(f"v_add_f32 v{sm[ci]}, v{s}, v{s+1}")
    xgroup_reduce_multi(q, sm, [TM + i for i in range(4)], "v_add_f32")
    for ci in range(4):
        q.I(f"v_rcp_f32 v{sm[ci]}, v{sm[ci]}")
    nf = envint("FILL3_EPI", 10)
    nf2 = nf + envint("FILL3_MID", 12)
    sprinkle(p, q, fill3[:nf])
    p.I(f"""
    s_lshl_b32 s9, s8, 15
    s_lshl_b32 s10, s6, 12
    s_add_u32 s9, s9, s10
    """)
    for ci, (hd, tb) in enumerate(chains):
        o = OO + ci * 8
        for r in range(0, 8, 2):
            p.I(f"v_pk_mul_f32 v[{o+r}:{o+r+1}], v[{o+r}:{o+r+1}], v[{sm[ci]}:{sm[ci]+1}] op_sel_hi:[1,0]")
    p.I(f"""
    v_and_b32 v20, -16, v{EXA}
    v_and_b32 v21, -16, v{EXA+2}
    s_bitcmp1_b32 s7, 0
    s_cbranch_scc1 L_ost_odd
    """)
    for par in range(2):
        if par:
            p.label("L_ost_odd")
        for ci, (hd, tb) in enumerate(chains):
            o = OO + ci * 8
            d = SR + ci * 4
            for r in range(4):
                rr = r ^ (2 * par)
                p.I(f"v_cvt_pk_bf16_f32 v{d+rr}, v{o+2*r}, v{o+2*r+1}")
            p.I(f"buffer_store_dwordx4 v[{d}:{d+3}], v{20+hd}, s[52:55], s9 offen offset:{1024*tb}{WT}")
        if not par:
            p.I("s_branch L_ost_done")
    p.label("L_ost_done")
    mstamp(p, 14)
    p.I(f"""
    s_lshl_b32 s13, s8, 6           ; tg*128
    s_lshl_b32 s10, s6, 2
    s_add_u32 s10, s10, s13
    """)
    signal(p, 10, 24, 25, fill3[nf:nf2])
    mstamp(p, 3)

    p.C("@CHAIN 3")
    for g in fill3[nf2:]:
        p.I("\n".join(g))
    p.I(f"""
    s_mov_b32 s5, s14
    s_mov_b32 s6, s15
    s_lshl_b32 s8, s5, 3
    s_lshl_b32 s9, s7, 1
    s_add_u32 s8, s8, s9
    s_lshl_b32 s9, s8, 15
    v_add_u32 v6, s9, v{V_X}
    s_lshl_b32 s13, s8, 6          ; tg*128
    v_lshlrev_b32 v21, 2, v3
    s_lshl_b32 s11, s8, 6
    """)
    for qq in range(16):
        p.I(f"v_lshlrev_b32 v{ACC3+2*qq}, 16, v{RESX+qq}")
        p.I(f"v_and_b32 v{ACC3+2*qq+1}, 0xffff0000, v{RESX+qq}")
    p.I(f"v_mov_b32 v80, v{RESX+16}")
    p.I(f"v_mov_b32 v82, v{RESX+18}")
    for qq in range(16):
        mxr = 80 + 2 * (qq // 8)
        p.I(f"v_pk_add_f32 v[{ACC3+2*qq}:{ACC3+2*qq+1}], v[{ACC3+2*qq}:{ACC3+2*qq+1}], v[{mxr}:{mxr+1}] op_sel_hi:[1,0] neg_lo:[0,1] neg_hi:[0,1]")
    hop(p, name, chain="3")
    p.I(f"""
    v_lshrrev_b32 v22, 2, v3       ; r
    v_and_b32 v23, 3, v3           ; c
    v_lshl_add_u32 v24, v4, 2, v22 ; 4g+r
    v_lshrrev_b32 v25, 1, v24
    v_and_b32 v25, 3, v25          ; f
    v_lshlrev_b32 v24, 7, v24
    v_lshl_add_u32 v24, v23, 3, v24
    """)
    for u in range(4):
        p.I(f"""
        v_xor_b32 v26, {u}, v25
        v_lshl_add_u32 v{V_RA3+u}, v26, 5, v24
        v_add_u32 v{V_RA3+4+u}, 65536, v{V_RA3+u}
        """)
    p.I(f"""
    v_min_u32 v22, 2, v23
    v_lshlrev_b32 v22, 11, v22
    v_lshl_add_u32 v22, v4, 4, v22
    v_add_u32 v{V_TAB}, {TAB}, v22
    s_mov_b32 s44, 0
    """)
    srd(p, 36, P_WS, WS_O, S_TOK * D * 2)
    srd(p, 52, P_WS, WS_H, S_TOK * D * 2)
    p.I(f"""
    {mapcode(MAP4, 3, 15, 14, 9)}
    s_and_b32 s15, s14, 1          ; parity
    s_and_b32 s9, s7, 1
    s_mul_i32 s10, s14, 224
    s_mul_i32 s9, s9, {32*F*2}
    s_add_u32 s10, s10, s9
    s_movk_i32 s9, {F*2}
    s_mov_b32 s12, 0x4925
    """)

    def lines(j):
        t = 100 + 4 * j
        return f"""
        v_add_u32 v{t}, {64*j}, v1
        v_mul_u32_u24 v{t+1}, s12, v{t}
        v_lshrrev_b32 v{t+1}, 18, v{t+1}
        v_mul_u32_u24 v{t+2}, 14, v{t+1}
        v_sub_u32 v{t+2}, v{t}, v{t+2}
        v_lshrrev_b32 v{t+3}, 1, v{t+2}
        v_add_u32 v{t+3}, s15, v{t+3}
        v_cmp_eq_u32 vcc, 7, v{t+3}
        v_and_b32 v{t+2}, 1, v{t+2}
        v_mul_u32_u24 v{t+1}, s9, v{t+1}
        v_cndmask_b32 v{t+3}, v{t+3}, 0, vcc
        v_lshlrev_b32 v{t+3}, 5, v{t+3}
        v_lshl_add_u32 v{t+3}, v{t+2}, 4, v{t+3}
        v_add3_u32 v{V_W4+j}, v{t+1}, v{t+3}, s10
        v_subrev_u32 v{V_W4+j}, {1024*(j%4)}, v{V_W4+j}
        """
    for j in range(7):
        p.I(lines(j))
    poll(p, "2", 21, 22, 13)
    mstamp(p, 4)
    L3.prologue_issue(p)
    L3.start(p)
    L3.body(p)
    mstamp(p, 5)
    srd(p, 56, P_WS, WS_ST, S_TOK * 64)
    srd(p, 48, P_WS, WS_MEAN, S_TOK * 4)
    p.I(f"""
    s_lshr_b32 s12, s7, 1
    s_mul_i32 s46, s7, 7168
    s_cmp_eq_u32 s12, 1
    s_cselect_b32 s40, s{P_WU}, s{P_WG}
    s_cselect_b32 s41, s{P_WU+1}, s{P_WG+1}
    s_mov_b32 s42, {D*F*2}
    s_mov_b32 s43, 0x00020000
    s_mov_b32 s45, {(-64*F*2) & 0xffffffff:#x}
    s_lshr_b32 s9, s8, 2
    s_lshl_b32 s9, s9, 17
    s_lshl_b32 s10, s6, 13
    s_add_u32 s9, s9, s10
    s_and_b32 s10, s8, 3
    s_lshl_b32 s10, s10, 10
    s_add_u32 s9, s9, s10
    s_add_u32 s10, s9, 4096
    v_add_f32 v24, v{ACCM}, v{ACCM+1}
    v_add_f32 v26, v{ACCM+4}, v{ACCM+5}
    """)
    for qq in range(16):
        d = 24 + 2 * (qq // 8)
        p.I(f"v_pk_add_f32 v[{ACC3+2*qq}:{ACC3+2*qq+1}], v[{ACC3+2*qq}:{ACC3+2*qq+1}], v[{d}:{d+1}] op_sel_hi:[1,0] neg_lo:[0,1] neg_hi:[0,1]")
    for qq in range(16):
        p.I(f"v_cvt_pk_bf16_f32 v{RES3+qq}, v{ACC3+2*qq}, v{ACC3+2*qq+1}")
        if qq % 4 == 3:
            tb, j = divmod(qq // 4, 2)
            r = RES3 + (tb * 2 + j) * 4
            p.I(f"buffer_store_dwordx4 v[{r}:{r+3}], v{V_X}, s[52:55], s{9+j} offen offset:{1024*tb}{WT}")
    for qq in range(16):
        p.I(f"v_lshlrev_b32 v{ACC3+2*qq}, 16, v{RES3+qq}")
        p.I(f"v_and_b32 v{ACC3+2*qq+1}, 0xffff0000, v{RES3+qq}")
    for tb in range(2):
        b = ACC3 + tb * 16
        a = 20 + 2 * tb
        p.I(f"v_pk_mul_f32 v[{a}:{a+1}], v[{b}:{b+1}], v[{b}:{b+1}]")
        for i in range(2, 16, 2):
            p.I(f"v_pk_fma_f32 v[{a}:{a+1}], v[{b+i}:{b+i+1}], v[{b+i}:{b+i+1}], v[{a}:{a+1}]")
    p.I("""
    v_add_f32 v20, v20, v21
    v_add_f32 v21, v22, v23
    v_add_f32 v24, v24, v80
    v_add_f32 v26, v26, v82
    """)
    xgroup_reduce_multi(p, [20, 21], [22, 23], "v_add_f32")
    p.I(f"""
    v_cmp_gt_u32 vcc, 16, v1
    v_lshlrev_b32 v22, 2, v1       ; lane*4
    s_lshl_b32 s9, s8, 10          ; tg*2048
    s_lshl_b32 s10, s6, 7
    s_add_u32 s9, s9, s10
    v_cndmask_b32 v20, v21, v20, vcc
    v_cndmask_b32 v24, v26, v24, vcc
    s_lshl_b32 s10, s6, 2
    s_cmp_lg_u32 s6, 0
    s_cselect_b32 s50, 0, {S_TOK*4}
    s_mov_b32 exec_hi, 0
    buffer_store_dword v20, v22, s[56:59], s9 offen{WT}
    buffer_store_dword v24, v22, s[48:51], s11 offen{WT}
    s_mov_b64 exec, -1
    s_lshl_b32 s13, s8, 6
    s_add_u32 s10, s10, s13
    s_add_u32 s10, s10, {FL3}
    """)
    mstamp(p, 15)
    p.I("s_barrier")
    nf4 = envint("FILL4_MID", 14)
    signal(p, 10, 24, 25, fill4[:nf4])
    mstamp(p, 6)

    p.C("@CHAIN 4")
    for g in fill4[nf4:]:
        p.I("\n".join(g))
    hop(p, name, chain="4")
    p.I(f"""
    {mapcode(MAP4, 3, 5, 6, 9)}
    s_mov_b32 s10, s15             ; parity
    v_lshlrev_b32 v{V_X4}, 4, v1
    s_lshl_b32 s8, s5, 4
    s_lshl_b32 s9, s7, 2
    s_add_u32 s8, s8, s9
    s_lshl_b32 s9, s8, 15
    v_add_u32 v{V_XB4}, s9, v{V_X4}
    s_mov_b32 s44, 0
    v_lshrrev_b32 v8, 2, v3
    v_and_b32 v9, 3, v3
    v_lshl_add_u32 v8, v4, 2, v8
    v_mul_u32_u24 v8, 224, v8
    v_lshl_add_u32 v{V_RA4}, v9, 3, v8
    v_add_u32 v{V_RA4+1}, {2*STG4}, v{V_RA4}
    v_lshlrev_b32 v{V_PF4}, 7, v1
    v_mov_b32 v8, 0x7fffffff
    v_cmp_gt_u32 vcc, 56, v1
    v_lshrrev_b32 v9, 5, v1
    v_and_b32 v{V_ST}, 31, v1
    v_lshlrev_b32 v{V_ST}, 2, v{V_ST}
    v_lshl_add_u32 v{V_ST}, v9, 11, v{V_ST}
    v_lshlrev_b32 v{V_M}, 2, v3
    v_cndmask_b32 v{V_PF4}, v8, v{V_PF4}, vcc
    s_lshl_b32 s9, s8, 10
    s_lshl_b32 s12, s2, 2
    s_add_u32 s12, s12, s7
    s_mul_i32 s12, s12, 7168
    v_lshlrev_b32 v238, 7, v1
    v_cmp_gt_u32 vcc, 4, v1
    s_lshl_b32 s11, s2, 1
    s_and_b32 s13, s7, 1
    s_add_u32 s11, s11, s13
    s_mul_i32 s11, s11, 448
    v_cndmask_b32 v238, v8, v238, vcc
    s_add_u32 s11, s11, {max(PFS_FROM, PFS_LEAD)*32*F*2}
    v_and_b32 v8, 1, v4
    v_lshl_add_u32 v8, v8, 7, v{V_M}
    s_lshl_b32 s13, s8, 6
    s_add_u32 s13, s13, {FL3}
    """)
    srd(p, 36, P_WS, WS_H, S_TOK * D * 2)
    srd(p, 48, P_WS, WS_ST, S_TOK * 64)
    srd(p, 52, P_WD, 0, F * D * 2)
    srd(p, 56, P_WS, WS_ACT, S_TOK * F * 2)
    poll(p, "3", 8, 9, 13)
    mstamp(p, 7)
    L4.prologue_issue(p)
    L4.start(p)
    L4.body(p)
    mstamp(p, 8)
    p.I(f"s_waitcnt vmcnt({L4.wait_for(('e', KB - 8))})")
    C1 = -2.0 * 1.4426950408889634 * 0.7978845608028654
    C2 = C1 * 0.044715
    T = V_T
    for j in range(1, 8):
        p.I(f"v_pk_add_f32 v[{T}:{T+1}], v[{T}:{T+1}], v[{T+2*j}:{T+2*j+1}]")
    p.I(f"""
    v_add_f32 v{T}, v{T}, v{T+1}
    v_mov_b32 v{T+1}, {f2u(1e-5):#x}
    v_fmac_f32 v{T+1}, 0x3a800000, v{T}
    """)
    VR = 226
    for tb in range(4):
        p.I(f"ds_bpermute_b32 v{VR+2*tb}, v{V_M}, v{T+1} offset:{64*tb}")
    p.I(f"""
    {mapcode(MAP5, 4, 15, 14, 9)}
    s_lshr_b32 s15, s14, 3         ; kh
    s_and_b32 s14, s14, 7          ; cb5
    v_lshrrev_b32 v233, 8, v{V_X4}       ; l>>4
    v_bfe_u32 v235, v{V_X4}, 5, 3        ; pos>>1
    v_xor_b32 v235, v235, v233
    v_xor_b32 v237, 4, v235
    v_and_b32 v238, 16, v{V_X4}          ; (l&1)*16
    v_lshl_add_u32 v233, s7, 4, v233
    v_lshl_add_u32 v238, v233, 11, v238
    s_lshl_b32 s45, s14, 8
    s_mul_i32 s9, s15, {KB5*32*2048}
    s_add_u32 s45, s45, s9
    v_add_u32 v238, s45, v238
    v_lshl_add_u32 v{V_W5[0]}, v235, 5, v238
    v_lshl_add_u32 v{V_W5[1]}, v237, 5, v238
    v_add_u32 v{V_W5[2]}, {8*2048-2048}, v{V_W5[0]}
    v_add_u32 v{V_W5[3]}, {12*2048-3072}, v{V_W5[1]}
    v_add_u32 v{V_W5[1]}, {4*2048-1024}, v{V_W5[1]}
    s_mov_b32 s45, {(-64*2048) & 0xffffffff:#x}
    s_lshl_b32 s46, s7, 12
    """)
    srd(p, 40, P_WD, 0, F * D * 2)
    p.I(f"""
    s_mul_i32 s9, s6, 7
    s_add_u32 s12, s9, s10
    s_lshr_b32 s12, s12, 1
    s_add_u32 s13, s9, 6
    s_cmp_eq_u32 s10, 1
    s_cselect_b32 s13, s9, s13
    s_lshr_b32 s13, s13, 1
    s_mul_i32 s9, s8, {112*1024}
    s_lshl_b32 s12, s12, 11
    s_lshl_b32 s13, s13, 11
    s_add_u32 s12, s12, s9
    s_add_u32 s13, s13, s9
    s_lshl_b32 s9, s10, 9
    s_add_u32 s13, s13, s9
    v_lshrrev_b32 v234, 1, v{V_X4} ; lane*8
    s_add_u32 s11, s12, 4096
    s_mov_b32 s48, {f2u(C1):#x}
    s_mov_b32 s49, {f2u(C2):#x}
    s_waitcnt lgkmcnt(0)
    s_barrier
    """)
    q = Prog()
    c1, c2 = T, T + 2
    for tb in range(4):
        vrr = VR + 2 * tb
        q.I(f"""
        v_rsq_f32 v{T+4}, v{vrr}
        v_rcp_f32 v{T+5}, v{vrr}
        v_mul_f32 v{c1}, s48, v{T+4}
        v_mul_f32 v{c2}, s49, v{T+4}
        v_mul_f32 v{c2}, v{c2}, v{T+5}
        """)
        o = 1024 * (tb & 1)
        for sl in range(7):
            g = tb * 56 + sl * 4
            u = tb * 56 + (7 + sl) * 4
            E = T + 8 + 4 * (sl & 1)
            for r in (0, 2):
                q.I(f"v_pk_mul_f32 v[{E+r}:{E+r+1}], v[{g+r}:{g+r+1}], v[{g+r}:{g+r+1}]")
            for r in (0, 2):
                q.I(f"v_pk_fma_f32 v[{E+r}:{E+r+1}], v[{E+r}:{E+r+1}], v[{c2}:{c2+1}], v[{c1}:{c1+1}] op_sel_hi:[1,0,0]")
            for r in (0, 2):
                q.I(f"v_pk_mul_f32 v[{E+r}:{E+r+1}], v[{E+r}:{E+r+1}], v[{g+r}:{g+r+1}]")
            for r in range(4):
                q.I(f"v_exp_f32 v{E+r}, v{E+r}")
            for r in (0, 2):
                q.I(f"v_pk_mul_f32 v[{u+r}:{u+r+1}], v[{u+r}:{u+r+1}], v[{g+r}:{g+r+1}]")
            for r in (0, 2):
                q.I(f"v_pk_fma_f32 v[{E+r}:{E+r+1}], v[{E+r}:{E+r+1}], v[{vrr}:{vrr+1}], v[{vrr}:{vrr+1}] op_sel_hi:[1,0,0]")
            for r in range(4):
                q.I(f"v_rcp_f32 v{E+r}, v{E+r}")
            for r in (0, 2):
                q.I(f"v_pk_mul_f32 v[{u+r}:{u+r+1}], v[{u+r}:{u+r+1}], v[{E+r}:{E+r+1}]")
            dq = tb * 56 + sl * 2
            q.I(f"v_cvt_pk_bf16_f32 v{dq}, v{u}, v{u+1}")
            q.I(f"v_cvt_pk_bf16_f32 v{dq+1}, v{u+2}, v{u+3}")
            if sl in (1, 3, 5):
                d0 = tb * 56 + (sl - 1) * 2
                so, oo = ("s12", o + 2048 * (sl // 2)) if sl < 5 else ("s11", o)
                q.I(f"buffer_store_dwordx4 v[{d0}:{d0+3}], v{V_X4}, s[56:59], {so} offen offset:{oo}{WT4}")
            if sl == 6:
                q.I(f"buffer_store_dwordx2 v[{dq}:{dq+1}], v234, s[56:59], s13 offen offset:{o}{WT4}")
        if tb == 1:
            q.I(f"s_add_u32 s12, s12, {112*2048}")
            q.I(f"s_add_u32 s11, s11, {112*2048}")
            q.I(f"s_add_u32 s13, s13, {112*2048}")
    nf5 = envint("FILL5_EPI", 16)
    nf52 = nf5 + envint("FILL5_MID", 12)
    ql = Prog()
    cut = (len(q.lines) * envint("FILL5_PCT", 80)) // 100
    ql.lines = q.lines[:cut]
    sprinkle(p, ql, fill5[:nf5])
    p.lines += q.lines[cut:]
    mstamp(p, 16)
    p.I(f"""
    s_lshl_b32 s13, s8, 5
    s_lshl_b32 s10, s6, 2
    s_add_u32 s10, s10, s13
    s_add_u32 s10, s10, {FL4}
    """)
    signal(p, 10, 240, 241, fill5[nf5:nf52])
    mstamp(p, 9)

    p.C("@CHAIN 5")
    for g in fill5[nf52:]:
        p.I("\n".join(g))
    hop(p, name, chain="5")
    p.I(LANES2)
    p.I(f"""
    {mapcode(MAP5, 4, 5, 6, 9)}
    s_mov_b32 s6, s14              ; cb5
    s_mov_b32 s12, s15             ; kh
    v_lshlrev_b32 v5, 4, v1
    s_lshl_b32 s8, s5, 3
    s_lshl_b32 s9, s7, 1
    s_add_u32 s8, s8, s9           ; mb0
    s_mul_i32 s44, s8, {KBT*1024}
    s_mul_i32 s9, s12, {KB5*2048}
    s_add_u32 s44, s44, s9
    v_add_u32 v6, s44, v5
    v_lshlrev_b32 v8, 3, v1
    v_add_u32 v8, s44, v8
    s_mov_b32 s44, 0
    v_lshrrev_b32 v28, 2, v3       ; r
    v_and_b32 v29, 3, v3           ; c
    v_lshl_add_u32 v30, v4, 2, v28 ; 4g+r
    v_and_b32 v31, 7, v30          ; f
    s_lshl_b32 s9, s12, 2
    v_xor_b32 v31, s9, v31
    v_lshlrev_b32 v30, 8, v30
    v_lshl_add_u32 v30, v29, 3, v30
    v_lshl_add_u32 v30, v31, 5, v30
    """)
    for u in range(8):
        p.I(f"""
        v_xor_b32 v{V_RA5+u}, {32*u}, v30
        v_add_u32 v{V_RA5+8+u}, {4*STG5}, v{V_RA5+u}
        """)
    srd(p, 36, P_WS, WS_ACT, S_TOK * F * 2)
    srd(p, 48, P_WS, WS_H, WS_MEAN - WS_H + S_TOK * 4)
    srd(p, 56, P_WS, WS_EX, 256 * 32768)
    p.I(f"""
    s_lshr_b32 s52, s8, 2
    s_lshl_b32 s52, s52, 17
    s_lshl_b32 s10, s6, 14
    s_add_u32 s52, s52, s10
    s_lshl_b32 s10, s12, 13
    s_add_u32 s52, s52, s10
    s_and_b32 s10, s8, 3
    s_lshl_b32 s10, s10, 10
    s_add_u32 s52, s52, s10
    s_add_u32 s53, s52, 4096
    s_lshl_b32 s54, s8, 6
    s_add_u32 s54, s54, {WS_MEAN - WS_H}
    v_lshlrev_b32 v7, 2, v3        ; m*4
    s_lshr_b32 s13, s8, 2
    s_lshl_b32 s13, s13, 7
    s_lshl_b32 s10, s12, 6
    s_add_u32 s13, s13, s10
    s_add_u32 s13, s13, {FL4}
    """)
    poll(p, "4", 7, 28, 13)
    mstamp(p, 10)
    L5.prologue_issue(p)
    p.I(f"""
    s_lshl_b32 s9, s2, 15
    s_lshl_b32 s10, s7, 13
    s_add_u32 s9, s9, s10
    s_add_u32 s10, s9, 4096
    s_xor_b32 s13, s9, {4<<15}
    s_add_u32 s14, s13, 4096
    s_lshl_b32 s15, s2, 9
    s_lshl_b32 s3, s7, 7
    s_add_u32 s15, s15, s3
    s_add_u32 s15, s15, {FL5}
    s_xor_b32 s3, s15, {4<<9}
    v_mov_b32 v28, 0
    v_mov_b32 v29, s{SNON}
    v_lshlrev_b32 v30, 11, v3      ; m*2048
    v_and_b32 v31, 1, v4
    v_lshl_add_u32 v30, v31, 5, v30
    v_lshrrev_b32 v31, 1, v4
    v_lshl_add_u32 v30, v31, 4, v30
    """)
    L5.start(p)
    L5.body(p)
    mstamp(p, 11)
    for tb in range(2):
        for qq in range(8):
            c = ACC5 + tb * 32 + 2 * qq
            t = 12 + 2 * (qq & 3)
            mxr = 112 + 2 * tb
            p.I(f"v_lshlrev_b32 v{t}, 16, v{RES5+tb*8+qq}")
            p.I(f"v_and_b32 v{t+1}, 0xffff0000, v{RES5+tb*8+qq}")
            p.I(f"v_pk_add_f32 v[{t}:{t+1}], v[{t}:{t+1}], v[{mxr}:{mxr+1}] op_sel_hi:[1,0]")
            p.I(f"v_pk_add_f32 v[{c}:{c+1}], v[{c}:{c+1}], v[{t}:{t+1}]")
    srd(p, 52, P_OUT, 0, S_TOK * D * 2)
    poll(p, "5", 28, 31, 3)
    for tb in range(2):
        for u in range(4):
            c = ACC5 + (tb * 8 + 4 + u) * 4
            p.I(f"buffer_load_dwordx4 v[{c}:{c+3}], v5, s[56:59], s{13+tb} offen offset:{1024*u} sc0 sc1")
    p.I(f"""
    s_lshl_b32 s9, s8, 15
    s_lshl_b32 s10, s6, 8
    s_add_u32 s9, s9, s10
    s_lshl_b32 s10, s12, 7
    s_add_u32 s9, s9, s10
    s_add_u32 s10, s9, 32768
    """)
    for tb in range(2):
        for j in range(2):
            p.I(f"s_waitcnt vmcnt({6 - 2*(tb*2+j) + (tb*2+j)})")
            r = RES5 + (tb * 2 + j) * 4
            for uu in range(2):
                u = 2 * j + uu
                c = ACC5 + (tb * 8 + u) * 4
                o = ACC5 + (tb * 8 + 4 + u) * 4
                p.I(f"v_pk_add_f32 v[{c}:{c+1}], v[{c}:{c+1}], v[{o}:{o+1}]")
                p.I(f"v_pk_add_f32 v[{c+2}:{c+3}], v[{c+2}:{c+3}], v[{o+2}:{o+3}]")
                p.I(f"v_cvt_pk_bf16_f32 v{r+2*uu}, v{c}, v{c+1}")
                p.I(f"v_cvt_pk_bf16_f32 v{r+2*uu+1}, v{c+2}, v{c+3}")
            p.I(f"v_permlane16_swap_b32 v{r}, v{r+2}")
            p.I(f"v_permlane16_swap_b32 v{r+1}, v{r+3}")
            p.I(f"buffer_store_dwordx4 v[{r}:{r+3}], v30, s[52:55], s{9+tb} offen offset:{64*j}")
    mstamp_out(p, 13, 17)
    tail(p, name)
    return name, p, kernel_desc(name, 256 + 240, 256), (256, 256, EXB + 20480)


def gen_k1_mega():
    name, p, desc, launch = gen_k1()
    out = []
    for l in p.lines:
        if l.startswith("s_mov_b32 s42, 131072"):
            l = f"s_mov_b32 s42, {FLAG_BYTES}"
        out.append(l)
    p.lines = out
    i = max(k for k, l in enumerate(p.lines) if l.startswith("v_cmp_gt_u32 vcc, 16, v0"))
    new = f"""
    s_add_u32 s5, s5, {FL5}
    s_mul_i32 s6, s3, 384
    v_lshlrev_b32 v7, 2, v0
    v_cmp_gt_u32 vcc, 96, v0
    s_and_saveexec_b64 s[10:11], vcc
    s_cbranch_execz L_k1_ln_kernel_end
    buffer_store_dword v6, v7, s[40:43], s6 offen sc0 sc1
    """.strip().split("\n")
    p.lines[i:i] = [x.strip() for x in new]
    return name, p, desc, launch


def main():
    ks = [gen_mega()]
    ref = open(f"cdna_kernels/{NAME}.s.ref").read().split("\n")
    hdr = [l for l in ref if l.startswith(";") and "@launch" not in l]
    out = "\n".join(hdr) + "\n"
    for name, p, desc, (g, b, lds) in ks:
        if envint("LIST", 1):
            out += f"; @launch kernel={name} grid=({g},1,1) block=({b},1,1) lds={lds}\n"
        else:
            out += f"; @launch grid=({g},1,1) block=({b},1,1) lds={lds}\n"
    out += '.amdgcn_target "amdgcn-amd-amdhsa--gfx950"\n'
    out += MACROS
    for name, p, desc, _ in ks:
        out += compress(p.finalize())
        print(name, "code bytes", getattr(p, "code_bytes", None), file=sys.stderr)
    out += '.section .rodata,"a"\n'
    for name, p, desc, _ in ks:
        out += ".p2align 6\n" + desc
    dst = sys.argv[1] if len(sys.argv) > 1 else f"cdna_kernels/{NAME}.s"
    open(dst, "w").write(out)
    print("wrote", dst, len(out), "bytes")


if __name__ == "__main__":
    main()
```
